```python
import torch

def _softmax(x, axis=-1):
    return torch.softmax(x, dim=axis)
def _gelu(x):
    return torch.nn.functional.gelu(x, approximate="tanh")
def _silu(x):
    return torch.nn.functional.silu(x)
def _sigmoid(x):
    return torch.sigmoid(x)
def _layernorm(x, axis=-1, eps=1e-5):
    m = x.mean(dim=axis, keepdim=True)
    v = x.var(dim=axis, keepdim=True, unbiased=False)
    return (x - m) / torch.sqrt(v + eps)
def _scatter_add(tgt, idx, src, axis=0):
    return tgt.clone().index_add_(axis, idx, src)
def _segment_sum(src, seg, n):
    out = torch.zeros((n,) + src.shape[1:], dtype=src.dtype)
    return out.index_add_(0, seg, src)
def _pad(x, pw):
    flat = tuple(v for pair in reversed(pw) for v in pair)
    return torch.nn.functional.pad(x, flat)

kernel_name = 'gated_mix__ssm_conv_s4__glu_gated_reglu__prompt'

def setup_inputs():

    _w = (lambda a: (lambda t: t.to(torch.bfloat16) if t.is_floating_point() else t)(torch.as_tensor(a)))
    def _A_setup():
        B, L, D, N = 1, 2048, 512, 128
        A_re = -(lambda _x: torch.exp(torch.as_tensor(_x)))((lambda *s: torch.randn(*s, dtype=torch.bfloat16) * 6.4)(D, N))
        A_im = torch.pi * (lambda *s: torch.randn(*s, dtype=torch.bfloat16) * 0.05)(D, N)
        B_re = (lambda *s: torch.randn(*s, dtype=torch.bfloat16) * 0.1)(D, N)
        B_im = (lambda *s: torch.randn(*s, dtype=torch.bfloat16) * 0.1)(D, N)
        C_re = (lambda *s: torch.randn(*s, dtype=torch.bfloat16) * 0.1)(D, N)
        C_im = (lambda *s: torch.randn(*s, dtype=torch.bfloat16) * 0.1)(D, N)
        log_dt = (lambda *s: torch.randn(*s, dtype=torch.bfloat16) * 0.05)(D) * 0.5 - 4.0
        Dskip = (lambda *s: torch.randn(*s, dtype=torch.bfloat16) * 0.05)(D)
        return {
            "u": _w((lambda *s: torch.randn(*s, dtype=torch.bfloat16) * 0.05)(B, L, D)),
            "A_re": _w(A_re),
            "A_im": _w(A_im),
            "B_re": _w(B_re),
            "B_im": _w(B_im),
            "C_re": _w(C_re),
            "C_im": _w(C_im),
            "log_dt": _w(log_dt),
            "Dskip": _w(Dskip),
        }
    _A_in = _A_setup()

    def _B_setup():
        B, S, D, F = 1, 2048, 512, 1376
        return {
            "x": _w((lambda *s: torch.randn(*s, dtype=torch.bfloat16) * 0.05)(B, S, D)),
            "W_gate": _w((lambda *s: torch.randn(*s, dtype=torch.bfloat16) * 0.8)(D, F) * (2.0 / D) ** 0.5),
            "W_up": _w((lambda *s: torch.randn(*s, dtype=torch.bfloat16) * 0.8)(D, F) * (2.0 / D) ** 0.5),
            "W_down": _w((lambda *s: torch.randn(*s, dtype=torch.bfloat16) * 0.8)(F, D) * (1.0 / F) ** 0.5),
        }
    _B_in = _B_setup()

    return {
        "A_u": _A_in["u"],
        "A_A_re": _A_in["A_re"],
        "A_A_im": _A_in["A_im"],
        "A_B_re": _A_in["B_re"],
        "A_B_im": _A_in["B_im"],
        "A_C_re": _A_in["C_re"],
        "A_C_im": _A_in["C_im"],
        "A_log_dt": _A_in["log_dt"],
        "A_Dskip": _A_in["Dskip"],
        "B_x": _B_in["x"],
        "B_W_gate": _B_in["W_gate"],
        "B_W_up": _B_in["W_up"],
        "B_W_down": _B_in["W_down"],
        "gate_w": _w((lambda *s: torch.randn(*s, dtype=torch.bfloat16) * 0.05)(512) * 16.0),
    }

def reference(A_u, A_A_re, A_A_im, A_B_re, A_B_im, A_C_re, A_C_im, A_log_dt, A_Dskip, B_x, B_W_gate, B_W_up, B_W_down, gate_w):
    def _A_ref(u, A_re, A_im, B_re, B_im, C_re, C_im, log_dt, Dskip):
        Bsz, L, D = u.shape
        dt = torch.exp(log_dt)[:, None]
        A = A_re + 1j * A_im
        Bc = B_re + 1j * B_im
        Cc = C_re + 1j * C_im
        logdA = dt * A
        dB = dt * Bc
        l = (lambda x, dt: x.to(dt))(torch.arange(L), A_re.dtype)
        P = torch.exp(logdA[:, :, None] * l[None, None, :])
        K = torch.einsum("dn,dnl,dn->dl", Cc, P, dB).real
        L2 = 2 * L
        Kp = _pad(K, ((0, 0), (0, L)))
        up = (lambda x, *d: x.permute(*d))(u, 0, 2, 1)
        up = _pad(up, ((0, 0), (0, 0), (0, L)))
        Kf = (lambda x, axes=(-2,-1): torch.fft.rfft2(x.float(), dim=axes))(Kp[:, None, :], axes=(-2, -1))
        Uf = (lambda x, axes=(-2,-1): torch.fft.rfft2(x.float(), dim=axes))(up[:, :, None, :], axes=(-2, -1))
        Yf = Uf * Kf[None, :, :, :]
        y = (lambda x, s, axes=(-2,-1): torch.fft.irfft2(x, s=s, dim=axes).to(torch.bfloat16))(Yf, (1, L2), axes=(-2, -1))[:, :, 0, :L]
        y = (lambda x, *d: x.permute(*d))(y, 0, 2, 1) + u * Dskip[None, None, :]
        return y

    def _B_ref(x, W_gate, W_up, W_down):
        gate = torch.einsum("bsd,df->bsf", x, W_gate)
        up = torch.einsum("bsd,df->bsf", x, W_up)
        gate = gate * (lambda x, dt: x.to(dt))(gate > 0, gate.dtype)
        h = gate * up
        return torch.einsum("bsf,fd->bsd", h, W_down)

    x = A_u
    g = _sigmoid((x * gate_w).sum(-1, keepdims=True))
    a = _A_ref(x, A_A_re, A_A_im, A_B_re, A_B_im, A_C_re, A_C_im, A_log_dt, A_Dskip)
    b = _B_ref(x, B_W_gate, B_W_up, B_W_down)
    return g * a + (1 - g) * b
```

```python
NAME = "gated_mix__ssm_conv_s4__glu_gated_reglu__prompt"

class Asm:
    def __init__(self):
        self.lines = []
        self._lbl = 0
    def __call__(self, s, *a):
        for l in s.split("\n"):
            l = l.strip()
            if l:
                self.lines.append(("" if l.endswith(":") else "    ") + l)
    def raw(self, s):
        self.lines.append(s)
    def label(self, l):
        self.lines.append(l + ":")
    def newlabel(self, p="L"):
        self._lbl += 1
        return f"{p}_{self._lbl}"
    def text(self):
        return "\n".join(self.lines) + "\n"

HEADER = open("cdna_kernels/" + NAME + ".s.ref").read().split("; Override launch geometry")[0]

def kernel_block(name, body, vgpr, sgpr=102, accum=None, extra_desc=""):
    if accum is None:
        accum = (vgpr + 3) // 4 * 4
    s = f".globl {name}\n.p2align 8\n.type {name},@function\n{name}:\n" + body
    d = f""".amdhsa_kernel {name}
  .amdhsa_next_free_vgpr {vgpr}
  .amdhsa_next_free_sgpr {sgpr}
  .amdhsa_accum_offset {accum}
  .amdhsa_group_segment_fixed_size 0
  .amdhsa_kernarg_size 136
  .amdhsa_user_sgpr_count 2
  .amdhsa_user_sgpr_kernarg_segment_ptr 1
  .amdhsa_system_sgpr_workgroup_id_x 1
{extra_desc}.end_amdhsa_kernel
"""
    return s, d

def build_file(launches, kernels):
    s = HEADER
    if len(launches) == 1 and launches[0][0] == NAME + "_kernel":
        n, g, b, l = launches[0]
        s += f"; @launch grid=({g},1,1) block=({b},1,1) lds={l}\n"
    else:
        for n, g, b, l in launches:
            s += f"; @launch kernel={n} grid=({g},1,1) block=({b},1,1) lds={l}\n"
    s += '.amdgcn_target "amdgcn-amd-amdhsa--gfx950"\n.text\n'
    for c, d in kernels:
        s += c
    s += '.section .rodata,"a"\n'
    for c, d in kernels:
        s += ".p2align 6\n" + d
    return s

def srd(a, dst, base, nbytes):
    a(f"s_mov_b32 s{dst}, s{base}")
    a(f"s_mov_b32 s{dst+1}, s{base+1}")
    a(f"s_mov_b32 s{dst+2}, {nbytes}")
    a(f"s_mov_b32 s{dst+3}, 0x00020000")
```

```python
from gen import *

KT_ROW = 1056
KT0 = 1056
KT_CH = 20 * KT_ROW
UB = 42240
RB_W = 8192
CONV_LDS = UB + 8 * 1280

def conv(a, prio=3, D=4, tim=None):
    SKP, SUT, SAT, SDB = 32, 36, 40, 44
    NB = D + 1
    ACC = lambda eta, z: 32 + (eta * 2 + z) * 4
    AF = lambda e, w: 64 + 64 * e + 4 * w
    BF = lambda b: 192 + 6 * b
    a("""
    v_lshrrev_b32 v2, 6, v0
    v_and_b32 v1, 63, v0
    s_lshl_b32 s26, s2, 1
    v_readfirstlane_b32 s28, v2               ; w
    v_lshlrev_b32 v2, 4, v1                   ; lane*16
    s_lshr_b32 s27, s28, 1                    ; cl
    s_and_b32 s29, s28, 1                     ; p
    s_add_u32 s26, s26, s27                   ; ch
    """)
    a("""
    s_lshl_b32 s56, s26, 12
    s_lshl_b32 s57, s29, 11
    s_add_u32 s31, s56, s57
    v_add_u32 v3, s31, v2
    """)
    a("""
    v_lshrrev_b32 v4, 2, v1
    v_sub_u32 v4, 15, v4
    v_lshlrev_b32 v4, 17, v4
    v_and_b32 v5, 3, v1
    v_lshlrev_b32 v5, 4, v5
    s_lshl_b32 s56, s29, 16
    s_lshl_b32 s57, s26, 6
    s_add_u32 s56, s56, s57
    v_add3_u32 v4, v4, v5, s56
    """)
    a(f"""
    s_lshl_b32 s56, s27, 2
    s_lshl_b32 s57, s29, 1
    s_add_u32 s56, s56, s57
    s_mul_i32 s56, s56, 1280
    s_add_u32 s30, s56, {UB}
    s_waitcnt lgkmcnt(0)
    """)
    srd_from(a, SKP, 22, 23, KP_SIZE, WS_KP)
    R0, R1 = 8, 14
    a.vmop(f"buffer_load_dwordx4 v[{R0+2}:{R0+5}], v3, s[{SKP}:{SKP+3}], 0 offen", "k0")
    a.vmop(f"buffer_load_dwordx4 v[{R1+2}:{R1+5}], v3, s[{SKP}:{SKP+3}], 0 offen offset:1024", "k1")
    srd_from(a, SUT, 22, 23, UT_SIZE, WS_UT)
    a("s_mov_b32 m0, s30")
    a("s_mov_b32 s56, 32768")
    a.vmop(f"buffer_load_dwordx4 v4, s[{SUT}:{SUT+3}], 0 offen lds", "u")
    a("s_add_u32 m0, s30, 1280")
    a("s_nop 0")
    a.vmop(f"buffer_load_dwordx4 v4, s[{SUT}:{SUT+3}], s56 offen lds", "u")
    srd_from(a, SAT, 22, 23, AT_SIZE, WS_AT)
    a("""
    v_bfe_u32 v5, v1, 4, 1
    v_mul_u32_u24 v5, 1280, v5
    v_and_b32 v28, 15, v1                     ; i / j
    v_lshlrev_b32 v6, 4, v28
    v_add3_u32 v5, v5, v6, s30
    v_mov_b32 v24, 0
    v_mov_b32 v25, 0
    v_mov_b32 v26, 0
    v_mov_b32 v27, 0
    """)
    a.lgop("ds_write_b128 v5, v[24:27] offset:1024", "z")
    a(f"""
    s_mul_i32 s58, s27, {KT_CH}
    s_mul_i32 s57, s29, {2*KT_ROW}
    s_add_u32 s56, s58, s57
    v_add_u32 v6, s56, v2
    """)
    assert KT0 == KT_ROW
    a(f"""
    v_lshrrev_b32 v29, 4, v1                  ; kg / g
    s_lshl_b32 s57, s29, 1                    ; e0 = 2p
    s_sub_u32 s57, 4, s57                     ; 3 - e0 + 1 (KT0)
    v_add_u32 v30, s57, v28
    v_mul_u32_u24 v30, {KT_ROW}, v30
    v_lshlrev_b32 v31, 4, v29
    v_add3_u32 v30, v30, v31, s58
    v_subrev_u32 v31, {KT_ROW}, v30
    """)
    a("""
    v_sub_u32 v7, v29, v28
    v_add_u32 v7, 15, v7
    v_lshlrev_b32 v7, 4, v7
    v_add_u32 v7, s30, v7
    """)
    a("""
    v_and_b32 v24, 3, v28
    v_lshlrev_b32 v24, 1, v24
    v_bfe_u32 v25, v28, 2, 1
    v_or_b32 v24, v24, v25
    v_xor_b32 v24, v24, v29
    v_lshlrev_b32 v24, 4, v24
    v_lshlrev_b32 v25, 7, v28
    s_lshl_b32 s56, s28, 13
    v_add3_u32 v20, v24, v25, s56
    v_xor_b32 v21, 64, v20
    v_lshrrev_b32 v24, 2, v1                  ; j
    v_and_b32 v25, 3, v24
    v_lshlrev_b32 v25, 1, v25
    v_bfe_u32 v26, v24, 2, 1
    v_or_b32 v25, v25, v26
    v_and_b32 v26, 3, v1
    v_lshlrev_b32 v26, 1, v26
    v_xor_b32 v25, v25, v26
    v_lshlrev_b32 v25, 4, v25
    v_lshlrev_b32 v24, 7, v24
    s_lshl_b32 s56, s27, 14
    s_lshl_b32 s57, s29, 12
    s_add_u32 s56, s56, s57
    v_add3_u32 v22, v24, v25, s56
    v_xor_b32 v23, 16, v22
    """)
    if tim: tim(a, 1)
    T = 64
    for i, R in ((0, R0), (1, R1)):
        a.need(vm=f"k{i}")
        a(f"v_mov_b32_dpp v{R}, v{R+4} wave_shr:1 row_mask:0xf bank_mask:0xf bound_ctrl:1")
        a(f"v_mov_b32_dpp v{R+1}, v{R+5} wave_shr:1 row_mask:0xf bank_mask:0xf bound_ctrl:1")
        tb = T + 12 * i
        def off(m): return (4 * m + 16 + i) * KT_ROW
        a.lgop(f"ds_write_b128 v6, v[{R+2}:{R+5}] offset:{off(0)}", "t")
        for j in range(4):
            a(f"v_alignbit_b32 v{tb+j}, v{R+2+j}, v{R+1+j}, 16")
        a.lgop(f"ds_write_b128 v6, v[{tb}:{tb+3}] offset:{off(-1)}", "t")
        for j in range(4):
            a(f"v_mov_b32 v{tb+4+j}, v{R+1+j}")
        a.lgop(f"ds_write_b128 v6, v[{tb+4}:{tb+7}] offset:{off(-2)}", "t")
        for j in range(4):
            a(f"v_alignbit_b32 v{tb+8+j}, v{R+1+j}, v{R+j}, 16")
        a.lgop(f"ds_write_b128 v6, v[{tb+8}:{tb+11}] offset:{off(-3)}", "t")
        a.lgop(f"ds_write_b128 v6, v[{R}:{R+3}] offset:{off(-4)}", "t")
    a.drain(vm=True, lg=True)
    a("s_barrier")
    if tim: tim(a, 2)
    if prio: a(f"s_setprio {prio}")
    NS = 32
    def rd(s):
        e, st = s >> 4, s & 15
        b = BF(s % NB)
        a.lgop(f"ds_read_b128 v[{AF(e,st)}:{AF(e,st)+3}], v{30+e} offset:{64*st}", ("A", s))
        o = st * 64 + e * 1280
        a.lgop(f"ds_read_b128 v[{b}:{b+3}], v7 offset:{o}", ("B", s))
        a.lgop(f"ds_read_b64 v[{b+4}:{b+5}], v7 offset:{o+16}", ("B", s))
    for s in range(D): rd(s)
    first = set()
    for s in range(NS):
        e, st = s >> 4, s & 15
        v = 12 - st
        b = BF(s % NB)
        a.need(lg=[("A", s), ("B", s)])
        n = 0
        for eta in (3, 2, 1, 0):
            w = 4 * eta - v
            if not (0 <= w <= 15): continue
            for z in (1, 0):
                d = ACC(eta, z)
                c = f"v[{d}:{d+3}]" if (eta, z) in first else "0"
                first.add((eta, z))
                bo = b if z == 1 else b + 2
                a(f"v_mfma_f32_16x16x32_bf16 v[{d}:{d+3}], v[{AF(e,w)}:{AF(e,w)+3}], v[{bo}:{bo+3}], {c}")
                n += 1
                if n == 1 and s + D < NS:
                    rd(s + D)
    if prio: a("s_setprio 0")
    if tim: tim(a, 3)
    a("s_barrier")
    for eta in (3, 2, 1, 0):
        for z in (1, 0):
            d = ACC(eta, z)
            a.lgop(f"ds_write_b128 v{20+z}, v[{d}:{d+3}] offset:{eta*2048}", "rw")
    a.drain(vm=False, lg=True)
    a("s_barrier")
    X = 64
    for n in range(2):
        for s in range(2):
            for h in range(2):
                r = X + n * 16 + s * 8 + h * 4
                a.lgop(f"ds_read_b128 v[{r}:{r+3}], v{22+h} offset:{s*8192 + n*2048}", ("r", n))
    for n in range(2):
        a.need(lg=("r", n))
        r = X + n * 16
        for k in range(8):
            a(f"v_add_f32 v{r+k}, v{r+k}, v{r+8+k}")
        for k in range(4):
            a(f"v_cvt_pk_bf16_f32 v{r+8+k}, v{r+2*k}, v{r+2*k+1}")
        a.vmop(f"buffer_store_dwordx4 v[{r+8}:{r+11}], v3, s[{SAT}:{SAT+3}], 0 offen offset:{n*1024} sc1", "st")
    a.drain(vm=True, lg=False)
    a("s_barrier")
    if tim: tim(a, 4)
    lbl = a.newlabel("CVdone")
    a(f"s_cmp_lg_u32 s28, 0\ns_cbranch_scc1 {lbl}")
    srd_from(a, SDB, 22, 23, 256 * 128, 0x584000)
    a("s_lshl_b32 s56, s2, 7")
    a("v_mov_b32 v2, s56\nv_mov_b32 v3, 1")
    a("s_mov_b64 exec, 1")
    a(f"buffer_store_dword v3, v2, s[{SDB}:{SDB+3}], 0 offen sc1")
    a(f"{lbl}:")
```

```python
from gen import *

WS_FLAG = 0x584000
G2_ST = 49152
G2_LDS = G2_ST + 4 * 2048

def gemm2(a, PF=8, tim=None, poll_at=14, chk_at=19):
    SW, SO = 32, 36
    ACC = lambda i: 16 + 16 * i
    FR = lambda b, k: 80 + (b * 4 + k) * 4
    a("""
    s_load_dwordx2 s[24:25], s[0:1], 112
    s_sub_u32 s3, s2, 256
    v_lshrrev_b32 v2, 6, v0
    v_and_b32 v1, 63, v0
    s_and_b32 s30, s3, 7                      ; x
    v_readfirstlane_b32 s28, v2               ; w
    s_lshr_b32 s31, s3, 3                     ; j
    s_lshr_b32 s56, s30, 1
    s_lshl_b32 s56, s56, 4
    s_and_b32 s57, s31, 7
    s_lshl_b32 s57, s57, 1
    s_add_u32 s26, s56, s57                   ; tb0
    s_and_b32 s56, s30, 1
    s_lshl_b32 s58, s56, 2
    s_lshr_b32 s57, s31, 3
    s_add_u32 s29, s58, s57                   ; group = 4(x&1) + (j>>3)
    s_lshl_b32 s27, s29, 1                    ; cb0
    """)
    a("""
    s_mul_i32 s56, s28, 22
    s_cmp_eq_u32 s28, 3
    s_cselect_b32 s57, 1, 0
    s_sub_u32 s56, s56, s57                   ; ks0
    s_and_b32 s57, s28, 1
    s_lshr_b32 s58, s28, 1
    s_add_u32 s60, s27, s57
    s_add_u32 s61, s26, s58
    s_xor_b32 s62, s60, 1
    s_xor_b32 s63, s61, 1
    v_lshlrev_b32 v2, 4, v1                   ; lane*16
    """)
    for (dst, blk, base) in ((4, 60, WS_WF), (5, 61, WS_H), (6, 62, WS_WF), (7, 63, WS_H)):
        a(f"s_mul_i32 s57, s{blk}, 86\ns_add_u32 s57, s57, s56\ns_lshl_b32 s57, s57, 10")
        if base: a(f"s_add_u32 s57, s57, {base}")
        a(f"v_add_u32 v{dst}, s57, v2")
    a(f"s_mov_b32 s59, {5*4096}\ns_cmp_ge_u32 s28, 2\ns_cselect_b32 s59, 0x10000000, s59")
    a("s_waitcnt lgkmcnt(0)")
    srd_from(a, SW, 22, 23, WS_END)
    cur = [None]
    def ld(s, k):
        so = (s >> 2) * 4096
        if s == 21:
            sreg = "s59"
        elif so == 0:
            sreg = "0"
        else:
            if cur[0] != so:
                a(f"s_mov_b32 s64, {so}"); cur[0] = so
            sreg = "s64"
        r = FR(s % PF, k)
        a.vmop(f"buffer_load_dwordx4 v[{r}:{r+3}], v{4+k}, s[{SW}:{SW+3}], {sreg} offen offset:{(s&3)*1024}", ("f", s, k))
    for s in range(PF):
        for k in range(4): ld(s, k)
    srd_from(a, SO, 24, 25, 2048 * 1024)
    a(f"""
    v_and_b32 v9, 31, v1
    s_lshl_b32 s56, s29, 12
    s_add_u32 s56, s56, {WS_FLAG}
    v_lshlrev_b32 v8, 7, v9
    v_add_u32 v8, s56, v8
    """)
    a(f"""
    s_lshl_b32 s56, s60, 17
    s_lshl_b32 s57, s61, 6
    s_add_u32 s56, s56, s57
    s_add_u32 s56, s56, {WS_AT}
    v_lshrrev_b32 v10, 2, v1
    v_lshlrev_b32 v10, 12, v10
    v_and_b32 v11, 3, v1
    v_lshlrev_b32 v12, 4, v11
    v_add3_u32 v10, v10, v12, s56
    """)
    a(f"""
    s_lshl_b32 s56, s61, 8
    s_add_u32 s56, s56, {WS_G}
    v_lshlrev_b32 v12, 3, v9
    v_add_u32 v12, s56, v12
    """)
    a(f"""
    s_lshl_b32 s56, s28, 11
    s_add_u32 s56, s56, {G2_ST}
    v_add_u32 v13, s56, v2
    v_lshrrev_b32 v14, 5, v1
    v_lshlrev_b32 v14, 2, v14
    v_bfe_u32 v15, v1, 2, 2
    v_add_u32 v14, v14, v15
    v_lshlrev_b32 v14, 6, v14
    v_bfe_u32 v15, v1, 4, 1
    v_lshlrev_b32 v15, 5, v15
    v_lshlrev_b32 v11, 3, v11
    v_add3_u32 v14, v14, v15, v11
    v_add_u32 v14, s56, v14
    """)
    a("""
    s_lshl_b32 s56, s61, 15
    s_lshl_b32 s57, s60, 6
    s_add_u32 s56, s56, s57
    v_lshlrev_b32 v15, 10, v9
    v_lshrrev_b32 v11, 5, v1
    v_lshlrev_b32 v11, 4, v11
    v_add3_u32 v15, v15, v11, s56
    """)
    for i in (1, 2, 3):
        a(f"s_xor_b32 s56, s28, {i}\ns_mul_i32 s56, s56, 12288\ns_add_u32 s{65+i}, s56, {(i-1)*4096}")
    a("s_mul_i32 s69, s28, 12288")
    if tim: tim(a, 1)
    AT0, GV, PV = 208, 216, 218
    spin = a.newlabel("G2spin"); ok = a.newlabel("G2ok")
    for s in range(22):
        b = s % PF
        W0, H0, W1, H1 = (FR(b, k) for k in range(4))
        nxt = s + PF < 22
        def mf(i, W, H):
            d = ACC(i)
            c = "0" if s == 0 else f"v[{d}:{d+15}]"
            a(f"v_mfma_f32_32x32x16_bf16 v[{d}:{d+15}], v[{W}:{W+3}], v[{H}:{H+3}], {c}")
        if s == 0:
            a.need(vm=[("f", s, 1)]); mf(0, W0, H0)
            a.need(vm=[("f", s, 2)]); mf(1, W1, H0)
            a.need(vm=[("f", s, 3)]); mf(2, W0, H1)
            mf(3, W1, H1)
            if nxt:
                for k in range(4): ld(s + PF, k)
        else:
            a.need(vm=[("f", s, 3)])
            mf(0, W0, H0)
            mf(1, W1, H0)
            if nxt: ld(s + PF, 1)
            mf(2, W0, H1)
            if nxt: ld(s + PF, 0)
            mf(3, W1, H1)
            if nxt: ld(s + PF, 2); ld(s + PF, 3)
        if s == poll_at:
            a.vmop(f"buffer_load_dword v{PV}, v8, s[{SW}:{SW+3}], 0 offen sc1", "poll")
        if s == chk_at:
            if tim: tim(a, 5)
            a.need(vm="poll")
            a(f"v_cmp_ne_u32 vcc, 1, v{PV}")
            a(f"s_cbranch_vccz {ok}")
            a("s_mov_b32 s70, 0x20000")
            a(f"{spin}:")
            a(f"buffer_load_dword v{PV}, v8, s[{SW}:{SW+3}], 0 offen sc1")
            a("s_sub_u32 s70, s70, 1")
            a(f"s_cbranch_scc1 {ok}")
            a("s_waitcnt vmcnt(0)")
            a(f"v_cmp_ne_u32 vcc, 1, v{PV}")
            a(f"s_cbranch_vccnz {spin}")
            a(f"{ok}:")
            if tim: tim(a, 4)
            a.vmop(f"buffer_load_dwordx4 v[{AT0}:{AT0+3}], v10, s[{SW}:{SW+3}], 0 offen sc1", "at")
            a("s_mov_b32 s64, 65536"); cur[0] = 65536
            a.vmop(f"buffer_load_dwordx4 v[{AT0+4}:{AT0+7}], v10, s[{SW}:{SW+3}], s64 offen sc1", "at")
            a.vmop(f"buffer_load_dwordx2 v[{GV}:{GV+1}], v12, s[{SW}:{SW+3}], 0 offen", "g")
    if tim: tim(a, 2)
    for i in (1, 2, 3):
        a(f"v_add_u32 v{3+i}, s{65+i}, v2")
    a("v_add_u32 v7, s69, v2")
    for i in (1, 2, 3):
        for q in range(4):
            r = ACC(i) + 4 * q
            a.lgop(f"ds_write_b128 v{3+i}, v[{r}:{r+3}] offset:{q*1024}", "rw")
    a.need(vm="at")
    a.lgop(f"ds_write_b128 v13, v[{AT0}:{AT0+3}]", "sa")
    a.lgop(f"ds_write_b128 v13, v[{AT0+4}:{AT0+7}] offset:1024", "sa")
    a.drain(vm=False, lg=True)
    a("s_barrier")
    X = 80
    for i in range(3):
        for q in range(4):
            r = X + 16 * i + 4 * q
            a.lgop(f"ds_read_b128 v[{r}:{r+3}], v7 offset:{i*4096 + q*1024}", ("p", i))
    AV = 128
    for q in range(4):
        a.lgop(f"ds_read_b64_tr_b16 v[{AV+2*q}:{AV+2*q+1}], v14 offset:{q*512}", "a")
    A0 = ACC(0)
    for i in range(3):
        a.need(lg=("p", i))
        for r in range(16):
            a(f"v_add_f32 v{A0+r}, v{A0+r}, v{X+16*i+r}")
    if tim: tim(a, 3)
    a.need(lg="a", vm="g")
    U = 136
    for q in range(4):
        for k in range(2):
            a(f"v_lshlrev_b32 v{U+4*q+2*k}, 16, v{AV+2*q+k}")
            a(f"v_and_b32 v{U+4*q+2*k+1}, 0xffff0000, v{AV+2*q+k}")
    for r in range(16):
        a(f"v_cvt_pk_bf16_f32 v{A0+r}, 0, v{A0+r}")
    for r in range(16):
        a(f"v_mul_f32 v{U+r}, v{GV}, v{U+r}")
    for r in range(16):
        a(f"v_mul_f32 v{A0+r}, v{GV+1}, v{A0+r}")
    for r in range(16):
        a(f"v_cvt_pk_bf16_f32 v{U+r}, 0, v{U+r}")
    for r in range(16):
        a(f"v_cvt_pk_bf16_f32 v{A0+r}, 0, v{A0+r}")
    for r in range(16):
        a(f"v_add_f32 v{U+r}, v{U+r}, v{A0+r}")
    P = 152
    for k in range(8):
        a(f"v_cvt_pk_bf16_f32 v{P+k}, v{U+2*k}, v{U+2*k+1}")
    for pr in range(2):
        n = P + 4 * pr
        a(f"v_permlane32_swap_b32 v{n}, v{n+2}")
        a(f"v_permlane32_swap_b32 v{n+1}, v{n+3}")
        a.vmop(f"buffer_store_dwordx4 v[{n}:{n+3}], v15, s[{SO}:{SO+3}], 0 offen offset:{pr*32}", "st")
```

```python
import sys, os
sys.path.insert(0, "dev")
from asmlib import *
from sched import Em

WS_H   = 0x000000
H_SIZE = 64 * 86 * 1024
WS_G   = 0x580000
G_SIZE = 2048 * 8
WS_UT  = 0x600000
UT_SIZE = 2 << 20
WS_KP  = 0x800000
KP_SIZE = 2 << 20
WS_WF  = 0xA00000
WF_SIZE = 16 * 86 * 1024
WS_AT  = 0xC00000
AT_SIZE = 2 << 20
WS_END = 0xE00000

TIMING = int(os.environ.get("TIMING", "0"))

def srd_from(a, dst, lo, hi, nbytes, off=0):
    if off:
        a(f"s_add_u32 s{dst}, s{lo}, {off}")
        a(f"s_addc_u32 s{dst+1}, s{hi}, 0")
    else:
        a(f"s_mov_b32 s{dst}, s{lo}")
        a(f"s_mov_b32 s{dst+1}, s{hi}")
    a(f"s_mov_b32 s{dst+2}, {nbytes}")
    a(f"s_mov_b32 s{dst+3}, 0x00020000")

def gemm1(a, lbl_exit):
    ACC = lambda mat, j: 64 + (2 * j + mat) * 16
    WF = lambda mat, j: 160 + (2 * j + mat) * 4
    XF = lambda b, s: 184 + b * 16 + s * 4
    SX, SW, SH = 12, 16, 20
    XBASE = 49152
    a("""
    s_load_dwordx2 s[4:5], s[0:1], 0
    s_load_dwordx2 s[6:7], s[0:1], 80
    s_load_dwordx2 s[8:9], s[0:1], 88
    s_load_dwordx2 s[10:11], s[0:1], 128
    s_and_b32 s30, s2, 7
    s_lshr_b32 s31, s2, 3
    s_lshr_b32 s26, s30, 1
    s_lshl_b32 s26, s26, 2
    s_and_b32 s32, s31, 3
    s_add_u32 s26, s26, s32
    s_and_b32 s25, s30, 1
    s_lshl_b32 s25, s25, 3
    s_lshr_b32 s32, s31, 2
    s_add_u32 s25, s25, s32
    s_cmp_eq_u32 s25, 15
    """)
    a(f"s_cbranch_scc1 {lbl_exit}")
    a("""
    v_lshrrev_b32 v12, 6, v0
    v_and_b32 v13, 63, v0
    s_nop 0
    v_readfirstlane_b32 s24, v12
    """)
    a("s_and_b32 s30, s24, 1\ns_mul_i32 s30, s30, 192")
    a("s_mul_i32 s31, s25, 192")
    a("s_mov_b32 s33, 2752\ns_mov_b32 s34, 0xaaab")
    for k in range(3):
        a(f"v_add_u32 v14, s30, v13")
        if k: a(f"v_add_u32 v14, {64*k}, v14")
        a("v_mul_lo_u32 v15, v14, s34\nv_lshrrev_b32 v15, 19, v15")
        a("v_mul_u32_u24 v16, 12, v15\nv_sub_u32 v16, v14, v16\nv_lshlrev_b32 v16, 4, v16")
        a("v_mul_lo_u32 v15, v15, s33\nv_add_u32 v15, v15, v16")
        a(f"v_add_u32 v{6+k}, s31, v15")
        if k: a(f"v_subrev_u32 v{6+k}, {1024*k}, v{6+k}")
    a("s_lshl_b32 s30, s26, 7\ns_lshl_b32 s31, s24, 5\ns_add_u32 s30, s30, s31\ns_lshl_b32 s30, s30, 10")
    a("""
    v_lshrrev_b32 v14, 3, v13
    v_lshlrev_b32 v14, 10, v14
    v_add_u32 v14, s30, v14
    v_lshrrev_b32 v15, 4, v13
    v_and_b32 v16, 7, v13
    v_xor_b32 v17, v16, v15
    v_lshlrev_b32 v17, 4, v17
    v_add_u32 v9, v14, v17
    v_or_b32 v15, 4, v15
    v_xor_b32 v17, v16, v15
    v_lshlrev_b32 v17, 4, v17
    v_add_u32 v10, v14, v17
    v_add_u32 v10, 7168, v10
    """)
    a("""
    v_lshrrev_b32 v14, 5, v13
    v_lshlrev_b32 v14, 3, v14
    v_bfe_u32 v15, v13, 2, 2
    v_add_u32 v14, v14, v15
    v_mul_u32_u24 v14, 192, v14
    v_bfe_u32 v15, v13, 4, 1
    v_lshlrev_b32 v15, 5, v15
    v_and_b32 v16, 3, v13
    v_lshlrev_b32 v16, 3, v16
    v_add3_u32 v1, v14, v15, v16
    """)
    a("""
    v_and_b32 v14, 31, v13
    v_bfe_u32 v15, v13, 1, 3
    v_lshrrev_b32 v16, 5, v13
    v_xor_b32 v15, v15, v16
    v_lshlrev_b32 v14, 7, v14
    """)
    a(f"s_lshl_b32 s30, s24, 12\ns_add_u32 s30, s30, {XBASE}\nv_add_u32 v14, s30, v14")
    for s in range(4):
        a(f"v_xor_b32 v16, {2*s}, v15\nv_lshlrev_b32 v16, 4, v16\nv_add_u32 v{2+s}, v14, v16")
    a("s_lshl_b32 s30, s26, 2\ns_add_u32 s30, s30, s24\ns_mul_i32 s30, s30, 86\ns_mul_i32 s31, s25, 6\ns_add_u32 s30, s30, s31\ns_lshl_b32 s30, s30, 10")
    a("v_lshlrev_b32 v11, 4, v13\nv_add_u32 v11, s30, v11")
    a("s_mul_i32 s35, s24, 3072")
    a(f"s_lshl_b32 s36, s24, 12\ns_add_u32 s36, s36, {XBASE}")
    a("s_waitcnt lgkmcnt(0)")
    srd_from(a, SX, 4, 5, 2048 * 1024)
    a("s_cmp_ge_u32 s24, 2\ns_cselect_b32 s6, s8, s6\ns_cselect_b32 s7, s9, s7")
    srd_from(a, SW, 6, 7, 512 * 2752)
    srd_from(a, SH, 10, 11, H_SIZE, WS_H)

    def dma_w(u, k):
        if k == 0:
            a(f"s_add_u32 m0, s35, {(u % 4) * 12288}")
            a(f"s_mov_b32 s27, {u * 88064}")
        a.vmop(f"buffer_load_dwordx4 v{6+k}, s[{SW}:{SW+3}], s27 offen offset:{1024*k} lds", ("W", u))
    def dma_x(c, k):
        if k == 0:
            a(f"s_add_u32 m0, s36, {(c & 1) * 16384}")
            a(f"s_mov_b32 s28, {c * 128}")
        if k == 2:
            a(f"s_mov_b32 s28, {c * 128 + 14336}")
            a("s_nop 0")
        a.vmop(f"buffer_load_dwordx4 v{9+(k&1)}, s[{SX}:{SX+3}], s28 offen offset:{1024*k} lds", ("X", c))
    def rd_w(S, jj):
        u, sp = S >> 1, S & 1
        mat, j = jj & 1, jj >> 1
        base = (u % 4) * 12288 + mat * 6144 + 16 * sp * 192 + j * 64
        r = WF(mat, j)
        a.lgop(f"ds_read_b64_tr_b16 v[{r}:{r+1}], v1 offset:{base}", ("w", S, jj))
        a.lgop(f"ds_read_b64_tr_b16 v[{r+2}:{r+3}], v1 offset:{base + 4*192}", ("w", S, jj))
    def rd_x(c, s):
        r = XF(c & 1, s)
        a.lgop(f"ds_read_b128 v[{r}:{r+3}], v{2+s} offset:{(c & 1) * 16384}", ("x", c, s))

    for k in range(4): dma_x(0, k)
    for k in range(3): dma_w(0, k)
    for k in range(3): dma_w(1, k)
    for k in range(4): dma_x(1, k)
    for k in range(3): dma_w(2, k)
    a.need(vm=[("W", 0), ("X", 0)])
    a("s_barrier")
    for s in range(4): rd_x(0, s)
    for jj in range(6): rd_w(0, jj)
    a("s_setprio 2")
    for u in range(16):
        c, hb = u >> 1, u & 1
        for sp in range(2):
            S = 2 * u + sp
            sx = S & 3
            for jj in range(6):
                mat, j = jj & 1, jj >> 1
                lg = [("w", S, jj)]
                if jj == 0: lg.append(("x", c, sx))
                a.need(lg=lg)
                d = ACC(mat, j)
                src_c = "0" if S == 0 else f"v[{d}:{d+15}]"
                a(f"v_mfma_f32_32x32x16_bf16 v[{d}:{d+15}], v[{WF(mat,j)}:{WF(mat,j)+3}], v[{XF(c&1,sx)}:{XF(c&1,sx)+3}], {src_c}")
                if sp == 1 and jj == 0 and u < 15:
                    a.need(vm=("W", u + 1))
                    a("s_barrier")
                if S + 1 < 32: rd_w(S + 1, jj)
                if sp == 0 and jj in (1, 3, 5) and u + 3 < 16:
                    dma_w(u + 3, jj >> 1)
                if hb == 0 and sp == 1 and jj in (1, 2, 3, 4) and c + 2 < 8:
                    if jj == 1:
                        a.need(lg=("x", c, 3))
                    dma_x(c + 2, jj - 1)
                if hb == 1 and sp == 0 and jj in (0, 2, 4) and c + 1 < 8:
                    if jj == 0: a.need(vm=("X", c + 1))
                    if jj == 0: rd_x(c + 1, 0); rd_x(c + 1, 1)
                    if jj == 2: rd_x(c + 1, 2)
                    if jj == 4: rd_x(c + 1, 3)
    a("s_setprio 0")
    lbl_done = a.newlabel("G1done")
    a("s_nop 7\ns_nop 3")
    for j in range(3):
        if j == 1:
            a(f"s_cmp_eq_u32 s25, 14\ns_cbranch_scc1 {lbl_done}")
        g, up = ACC(0, j), ACC(1, j)
        T = 16
        for r in range(16):
            a(f"v_max_f32 v{g+r}, 0, v{g+r}")
        for r in range(16):
            a(f"v_cvt_pk_bf16_f32 v{g+r}, 0, v{g+r}")
            a(f"v_cvt_pk_bf16_f32 v{up+r}, 0, v{up+r}")
        for r in range(16):
            a(f"v_mul_f32 v{g+r}, v{g+r}, v{up+r}")
        for r in range(8):
            a(f"v_cvt_pk_bf16_f32 v{T+8*j+r}, v{g+2*r}, v{g+2*r+1}")
        for p in range(2):
            n = T + 8 * j + 4 * p
            a("s_nop 0")
            a(f"v_permlane32_swap_b32 v{n}, v{n+2}")
            a(f"v_permlane32_swap_b32 v{n+1}, v{n+3}")
            a("s_nop 0")
            off = (2 * j + p) * 1024
            so = "0"
            if off > 4095:
                a(f"s_mov_b32 s30, {off}"); so = "s30"; off = 0
            a.vmop(f"buffer_store_dwordx4 v[{n}:{n+3}], v11, s[{SH}:{SH+3}], {so} offen offset:{off}", ("st",))
    a(f"{lbl_done}:")

def build_gemm1_test():
    a = Em()
    a("s_cmp_ge_u32 s2, 256\ns_cbranch_scc1 L_end")
    if TIMING:
        a("s_memtime s[90:91]")
    gemm1(a, "L_end")
    if TIMING:
        a("s_memtime s[92:93]\ns_waitcnt lgkmcnt(0)\ns_sub_u32 s92, s92, s90")
        a("s_waitcnt vmcnt(0)\ns_memtime s[94:95]\ns_waitcnt lgkmcnt(0)\ns_sub_u32 s94, s94, s90")
        srd_from(a, 84, 10, 11, 1 << 20, 0x1000000)
        a("v_mov_b32 v2, s92\nv_mov_b32 v3, s94\nv_lshrrev_b32 v4, 6, v0\nv_lshlrev_b32 v4, 3, v4\ns_lshl_b32 s30, s2, 5\nv_add_u32 v4, s30, v4")
        a("buffer_store_dwordx2 v[2:3], v4, s[84:87], 0 offen")
    a("L_end:\ns_endpgm")
    k = kernel_block(NAME + "_kernel", a.text(), 256)
    return build_file([(NAME + "_kernel", 256, 256, 81920)], [k])

if __name__ == "__main__":
    what = sys.argv[1]; out = sys.argv[2]
    s = {"gemm1": build_gemm1_test}[what]()
    open(out, "w").write(s)
```

```python
import re

TRANS = ("v_exp_f32", "v_log_f32", "v_rcp_f32", "v_rsq_f32", "v_sqrt_f32", "v_sin_f32", "v_cos_f32", "v_rcp_iflag_f32")

def regs(tok):
    tok = tok.strip().lstrip("-|").rstrip("|")
    m = re.fullmatch(r"([vsa])\[(\d+):(\d+)\]", tok)
    if m:
        return {(m.group(1), i) for i in range(int(m.group(2)), int(m.group(3)) + 1)}
    m = re.fullmatch(r"([vsa])(\d+)", tok)
    if m:
        return {(m.group(1), int(m.group(2)))}
    if tok in ("vcc", "vcc_lo", "vcc_hi"): return {("vcc", 0)}
    if tok in ("exec", "exec_lo", "exec_hi"): return {("exec", 0)}
    if tok == "m0": return {("m0", 0)}
    return set()

class I:
    def __init__(self, line):
        self.line = line
        s = line.split(";")[0].strip()
        self.op = None
        if not s or s.endswith(":") or s.startswith("."):
            return
        p = s.split(None, 1)
        self.op = p[0]
        rest = p[1] if len(p) > 1 else ""
        ops = [o.strip() for o in rest.split(",")] if rest else []
        self.mods = ""
        if ops:
            q = ops[-1].split(None, 1)
            ops[-1] = q[0]
            if len(q) > 1: self.mods = q[1]
        self.ops = ops
        op = self.op
        self.valu = op.startswith("v_") and not op.startswith("v_mfma")
        self.mfma = op.startswith("v_mfma")
        self.ds = op.startswith("ds_")
        self.vmem = op.startswith("buffer_") or op.startswith("global_")
        self.salu = op.startswith("s_")
        self.dpp = ("_dpp" in op) or ("row_" in self.mods) or ("quad_perm" in self.mods)
        self.trans = any(op.startswith(t) for t in TRANS)
        R = [regs(o) for o in ops]
        U = lambda l: set().union(*l) if l else set()
        self.d = set(); self.u = set()
        self.store_data = set()
        if self.mfma:
            self.d = R[0]; self.u = U(R[1:]); self.srcc = R[3]; self.ab = R[1] | R[2]
            self.passes = 8 if "32x32" in op else 4
        elif self.valu:
            if op.startswith("v_cmp"):
                if len(ops) == 3: self.d = R[0]; self.u = U(R[1:])
                else: self.d = {("vcc", 0)}; self.u = U(R)
                if op.startswith("v_cmpx"): self.d |= {("exec", 0)}
            elif op.startswith("v_permlane") and "swap" in op:
                self.d = R[0] | R[1]; self.u = R[0] | R[1]
            elif "_co_" in op:
                self.d = R[0] | R[1]; self.u = U(R[2:])
            else:
                self.d = R[0]; self.u = U(R[1:])
                if op.startswith("v_cndmask") and len(ops) == 3: self.u |= {("vcc", 0)}
                if op.startswith("v_fmac") or op.startswith("v_mac") or self.dpp or op.startswith("v_writelane") or op.startswith("v_dot2c"):
                    self.u |= R[0]
        elif self.ds:
            if op.startswith("ds_read") or op.startswith("ds_bpermute") or op.startswith("ds_permute") or "_rtn" in op or op.startswith("ds_swizzle"):
                self.d = R[0]; self.u = U(R[1:])
            else:
                self.u = U(R)
        elif self.vmem:
            lds = re.search(r"\blds\b", self.mods) is not None
            self.ldsdma = lds
            if "_load" in op:
                if lds: self.u = U(R) | {("m0", 0)}
                else: self.d = R[0]; self.u = U(R[1:])
            elif "_store" in op:
                self.u = U(R)
                data = R[0] if op.startswith("buffer_") else R[1]
                if len(data) >= 3: self.store_data = data
            else:
                self.u = U(R)
                if re.search(r"\b(glc|sc0)\b", self.mods): self.d = R[0]
        elif self.salu:
            if op in ("s_nop", "s_waitcnt", "s_barrier", "s_endpgm", "s_setprio", "s_sleep") or op.startswith("s_cbranch") or op == "s_branch":
                pass
            elif op.startswith("s_cmp"):
                self.u = U(R)
            else:
                self.d = R[0] if R else set(); self.u = U(R[1:])

def need(p, c):
    n = 0
    isv = lambda s: {r for r in s if r[0] in "va"}
    iss = lambda s: {r for r in s if r[0] in ("s", "vcc")}
    if p.store_data if hasattr(p, "store_data") else False:
        if c.d & p.store_data and not c.salu:
            n = max(n, 2 if c.valu else 1)
    if p.valu:
        ps = iss(p.d); pv = isv(p.d)
        if ps:
            if c.vmem and (c.u & ps): n = max(n, 5)
            if (c.valu or c.mfma) and (c.u & ps):
                n = max(n, 4 if c.op.startswith(("v_readlane", "v_writelane")) else 2)
        if pv:
            if c.valu and c.dpp and (c.u & pv): n = max(n, 2)
            if c.valu and c.op.startswith(("v_readlane", "v_readfirstlane")) and (c.u & pv): n = max(n, 1)
            if c.valu and c.op.startswith("v_permlane") and (c.u & pv): n = max(n, 2)
            if c.mfma and (c.u & pv): n = max(n, 2)
            if p.trans and c.valu and not c.trans and (c.u & pv): n = max(n, 1)
            if p.trans and (c.mfma or c.valu) and (c.u & pv): n = max(n, 1)
        if ("exec", 0) in p.d:
            if c.valu and c.dpp: n = max(n, 5)
            if c.mfma: n = max(n, 4)
            if c.valu and c.op.startswith(("v_readlane", "v_readfirstlane", "v_writelane", "v_permlane")): n = max(n, 4)
    if p.salu and ("m0", 0) in p.d and c.vmem and ("m0", 0) in c.u:
        n = max(n, 1)
    if p.mfma:
        P = p.passes
        big = 8 if P == 4 else 12
        if c.mfma:
            if c.ab & p.d: n = max(n, big)
            if c.srcc & p.d:
                if not (c.srcc == p.d and c.passes == P): n = max(n, big - 2)
            if (c.d & p.d) and not (c.srcc & p.d): n = max(n, big - 2)
        elif c.valu:
            if (c.u | c.d) & p.d: n = max(n, big)
            if c.d & p.srcc: n = max(n, 3 if P == 4 else 7)
        elif c.ds or c.vmem:
            if (c.u | c.d) & p.d: n = max(n, big)
    return n

def fix(text, verbose=False):
    out = []
    hist = []
    added = 0
    for line in text.split("\n"):
        c = I(line)
        if c.op is None:
            out.append(line)
            continue
        req = 0
        for p, dist in hist:
            r = need(p, c) - dist
            if r > req:
                req = r; why = p
        if req > 0:
            added += req
            if verbose: print(f"nop {req}: {why.line.strip()}  ->  {line.strip()}")
            k = req
            while k > 0:
                m = min(k, 16)
                out.append(f"    s_nop {m-1}")
                k -= m
            hist = [(p, d + req) for p, d in hist]
        out.append(line)
        step = 1
        if c.op == "s_nop": step = int(c.ops[0], 0) + 1
        hist = [(p, d + step) for p, d in hist if d + step < 20]
        if c.op in ("s_endpgm", "s_branch"):
            hist = []
        else:
            hist.append((c, 0))
    return "\n".join(out), added

if __name__ == "__main__":
    import sys
    t, n = fix(open(sys.argv[1]).read(), True)
    print("added", n)
```

```python
from gen import *

LOG2E = 0x3FB8AA3B
LOG2E_LO = 0x32A57060
LN2 = 0x3F317218

def dpp_sum(a, v, t=None):
    for ctl in ("row_shr:1", "row_shr:2", "row_shr:4", "row_shr:8"):
        a("s_nop 1")
        a(f"v_add_f32_dpp v{v}, v{v}, v{v} {ctl} row_mask:0xf bank_mask:0xf bound_ctrl:1")
    a("s_nop 1")
    a(f"v_add_f32_dpp v{v}, v{v}, v{v} row_bcast:15 row_mask:0xa bank_mask:0xf")
    a("s_nop 1")
    a(f"v_add_f32_dpp v{v}, v{v}, v{v} row_bcast:31 row_mask:0xc bank_mask:0xf")

def dpp_sum2(a, v0, v1):
    a("s_nop 0")
    for ctl in ("row_shr:1", "row_shr:2", "row_shr:4", "row_shr:8"):
        for v in (v0, v1):
            a(f"v_add_f32_dpp v{v}, v{v}, v{v} {ctl} row_mask:0xf bank_mask:0xf bound_ctrl:1")
        a("s_nop 0")
    for v in (v0, v1):
        a(f"v_add_f32_dpp v{v}, v{v}, v{v} row_bcast:15 row_mask:0xa bank_mask:0xf")
    a("s_nop 0")
    for v in (v0, v1):
        a(f"v_add_f32_dpp v{v}, v{v}, v{v} row_bcast:31 row_mask:0xc bank_mask:0xf")

def kgen(a):
    SU, SWD, SUT, SWF, SKP, SG = 32, 36, 40, 44, 48, 52
    UTST, WFST = 65536, 73728
    a("""
    s_load_dwordx16 s[4:19], s[0:1], 0
    s_load_dwordx2 s[20:21], s[0:1], 64
    s_load_dwordx4 s[24:27], s[0:1], 96
    s_load_dwordx2 s[22:23], s[0:1], 128
    s_sub_u32 s3, s2, 256
    v_lshrrev_b32 v22, 6, v0
    v_and_b32 v1, 63, v0
    s_lshl_b32 s56, s3, 9
    v_readfirstlane_b32 s28, v22
    v_lshlrev_b32 v23, 1, v0
    v_add_u32 v23, s56, v23            ; (id2*256+tid)*2
    v_lshrrev_b32 v24, 7, v0
    v_lshlrev_b32 v24, 1, v24
    s_lshl_b32 s56, s3, 2
    v_add_u32 v24, s56, v24            ; ch*2
    s_and_b32 s29, s28, 1
    """)
    a("""
    s_lshl_b32 s56, s3, 3
    s_lshl_b32 s57, s28, 1
    s_add_u32 s30, s56, s57            ; token0
    s_lshl_b32 s56, s30, 10
    v_lshlrev_b32 v25, 4, v1           ; lane*16
    v_add_u32 v26, s56, v25
    """)
    a("""
    s_lshr_b32 s58, s3, 4              ; tokblk
    s_and_b32 s59, s3, 15              ; chgrp
    s_lshl_b32 s56, s58, 7
    s_add_u32 s56, s56, s28
    s_lshl_b32 s56, s56, 10
    s_lshl_b32 s57, s59, 6
    s_add_u32 s56, s56, s57
    v_lshrrev_b32 v27, 2, v1
    v_lshlrev_b32 v27, 12, v27
    v_and_b32 v28, 3, v1
    v_lshlrev_b32 v28, 4, v28
    v_add3_u32 v27, v27, v28, s56
    """)
    a("""
    s_lshl_b32 s56, s3, 2
    s_add_u32 s56, s56, s28
    s_lshr_b32 s60, s56, 3             ; ks
    s_and_b32 s61, s56, 7              ; cb64
    s_lshl_b32 s56, s60, 14
    s_lshl_b32 s57, s61, 7
    s_add_u32 s56, s56, s57
    v_lshrrev_b32 v28, 3, v1
    v_lshlrev_b32 v28, 10, v28
    v_and_b32 v29, 7, v1
    v_lshlrev_b32 v29, 4, v29
    v_add3_u32 v28, v28, v29, s56
    s_lshl_b32 s62, s28, 11            ; w*2048
    s_waitcnt lgkmcnt(0)
    """)
    for i, p in enumerate((6, 8, 10, 12, 14, 16)):
        a.vmop(f"global_load_ushort v{2+i}, v23, s[{p}:{p+1}]", "in")
    a.vmop("global_load_ushort v8, v24, s[18:19]", "in")
    a.vmop("global_load_ushort v9, v24, s[20:21]", "in")
    a.vmop("global_load_dwordx4 v[10:13], v26, s[4:5]", "g")
    a.vmop("global_load_dwordx4 v[14:17], v26, s[4:5] offset:1024", "g")
    a.vmop("global_load_dwordx4 v[18:21], v25, s[26:27]", "g")
    srd_from(a, SU, 4, 5, 2048 * 1024)
    srd_from(a, SWD, 24, 25, 1376 * 1024)
    a(f"s_add_u32 m0, s62, {UTST}")
    a("s_mov_b32 s56, 65536")
    a.vmop(f"buffer_load_dwordx4 v27, s[{SU}:{SU+3}], 0 offen lds", "ut")
    a(f"s_add_u32 m0, s62, {UTST + 1024}")
    a("s_nop 0")
    a.vmop(f"buffer_load_dwordx4 v27, s[{SU}:{SU+3}], s56 offen lds", "ut")
    a(f"s_add_u32 m0, s62, {WFST}")
    a("s_mov_b32 s56, 8192")
    a.vmop(f"buffer_load_dwordx4 v28, s[{SWD}:{SWD+3}], 0 offen lds", "wf")
    a(f"s_add_u32 m0, s62, {WFST + 1024}")
    a("s_nop 0")
    a.vmop(f"buffer_load_dwordx4 v28, s[{SWD}:{SWD+3}], s56 offen lds", "wf")
    srd_from(a, SUT, 22, 23, UT_SIZE, WS_UT)
    srd_from(a, SWF, 22, 23, WF_SIZE, WS_WF)
    srd_from(a, SKP, 22, 23, KP_SIZE, WS_KP)
    srd_from(a, SG, 22, 23, G_SIZE, WS_G)

    Q = lambda q: (32 + 2 * q, 33 + 2 * q)
    T0 = lambda c: (64 + 2 * c, 65 + 2 * c)
    T1 = lambda c: (96 + 2 * c, 97 + 2 * c)
    T2 = lambda c: (128 + 2 * c, 129 + 2 * c)
    KE = (160, 161)
    E1, E64, E512, E128, E192, E256, E2, E3 = [(162 + 2 * i, 163 + 2 * i) for i in range(8)]
    E4 = Q(1)
    tcnt = [0]
    def cmul(d, x, y):
        t = 178 + 2 * (tcnt[0] % 4); tcnt[0] += 1
        a(f"v_mul_f32 v{t}, v{x[1]}, v{y[1]}")
        a(f"v_mul_f32 v{t+1}, v{x[1]}, v{y[0]}")
        a(f"v_fma_f32 v{d[0]}, v{x[0]}, v{y[0]}, -v{t}")
        a(f"v_fma_f32 v{d[1]}, v{x[0]}, v{y[1]}, v{t+1}")
    PK = lambda g, part: 192 + (g * 2 + part) * 4
    a("""
    v_and_b32 v30, 127, v0
    v_lshlrev_b32 v30, 4, v30
    v_lshrrev_b32 v31, 7, v0
    v_lshlrev_b32 v31, 15, v31
    v_add_u32 v30, v30, v31
    v_xor_b32 v31, 64, v30
    """)
    def put_group(g, cols, negim):
        for part in range(2):
            for i in range(4):
                x, y = cols[2 * i][part], cols[2 * i + 1][part]
                n = "-" if (negim and part == 1) else ""
                a(f"v_cvt_pk_bf16_f32 v{PK(g,part)+i}, {n}v{x}, {n}v{y}")
            p = PK(g, part)
            a.lgop(f"ds_write_b128 v{30 + (g & 1)}, v[{p}:{p+3}] offset:{g*4096 + part*2048}", "tw")

    a.need(vm="in")
    DT, LR, REV = 22, 23, 24
    a(f"""
    v_lshlrev_b32 v8, 16, v8
    s_mov_b32 s56, {LOG2E}
    s_mov_b32 s57, {LOG2E_LO}
    s_mov_b32 s63, {LN2}
    v_mul_f32 v186, s56, v8
    v_exp_f32 v187, v186
    v_fma_f32 v188, v8, s56, -v186
    v_fma_f32 v188, v8, s57, v188
    v_mul_f32 v188, s63, v188
    v_fma_f32 v187, v187, v188, v187
    """)
    for i in range(6):
        a(f"v_lshlrev_b32 v{2+i}, 16, v{2+i}")
    a(f"v_cvt_pk_bf16_f32 v{DT}, 0, v187")
    a("v_lshlrev_b32 v9, 16, v9")
    a(f"""
    v_mul_f32 v2, v{DT}, v2
    v_mul_f32 v3, v{DT}, v3
    v_mul_f32 v4, v{DT}, v4
    v_mul_f32 v5, v{DT}, v5
    v_mul_f32 v{LR}, s56, v2
    v_mul_f32 v{REV}, 0.15915494, v3
    """)
    def anchor(E, L, t):
        Lf = {1: None, 4: "4.0", 64: "0x42800000", 512: "0x44000000"}[L]
        if Lf is None:
            a(f"v_exp_f32 v{t}, v{LR}")
            a(f"v_fract_f32 v{t+1}, v{REV}")
        else:
            a(f"v_mul_f32 v{t}, {Lf}, v{LR}")
            a(f"v_mul_f32 v{t+1}, {Lf}, v{REV}")
            a(f"v_exp_f32 v{t}, v{t}")
            a(f"v_fract_f32 v{t+1}, v{t+1}")
    def anchor2(E, t):
        a(f"v_cos_f32 v{E[0]}, v{t+1}")
        a(f"v_sin_f32 v{E[1]}, v{t+1}")
    def anchor3(E, t):
        a(f"v_mul_f32 v{E[0]}, v{t}, v{E[0]}")
        a(f"v_mul_f32 v{E[1]}, v{t}, v{E[1]}")
    lst = [(E4, 4, 186), (E64, 64, 188), (E1, 1, 190), (E512, 512, 26)]
    for E, L, t in lst: anchor(E, L, t)
    cmul(T0(0), (6, 7), (4, 5))
    for E, L, t in lst: anchor2(E, t)
    a("s_nop 0")
    for E, L, t in lst: anchor3(E, t)
    a(f"v_mov_b32 v{Q(0)[0]}, 1.0\nv_mov_b32 v{Q(0)[1]}, 0")
    cmul(Q(2), E4, E4)
    cmul(E128, E64, E64)
    cmul(Q(3), Q(2), E4)
    cmul(E2, E1, E1)
    cmul(Q(4), Q(2), Q(2))
    cmul(E192, E128, E64)
    cmul(E256, E128, E128)
    cmul(E3, E2, E1)
    for q in range(5, 8): cmul(Q(q), Q(4), Q(q - 4))
    cmul(Q(8), Q(4), Q(4))
    put_group(0, [Q(q) for q in range(8)], True)
    for q in range(9, 16): cmul(Q(q), Q(8), Q(q - 8))
    put_group(1, [Q(q) for q in range(8, 16)], True)
    cmul(T0(4), T0(0), E1); cmul(T0(8), T0(0), E2); cmul(T0(12), T0(0), E3)
    cmul(T1(8), T0(0), E512)
    for b in range(4):
        for p, E in ((1, E64), (2, E128), (3, E192)):
            cmul(T0(4 * b + p), T0(4 * b), E)
        cmul(T1(9 + b), T1(8 + b), E64) if b < 3 else None
        if b == 1: put_group(2, [T0(c) for c in range(8)], False)
    put_group(3, [T0(c) for c in range(8, 16)], False)
    chain = [T1(8 + p) for p in range(8)] + [T2(p) for p in range(16)] + [KE]
    nxt = 4
    for c in range(8):
        src = T0(8 + c) if c < 4 else T0(c - 4)
        cmul(T1(c), src, E256)
        if nxt < 8:
            cmul(chain[nxt], chain[nxt - 1], E64); nxt += 1
    put_group(4, [T1(c) for c in range(8)], False)
    put_group(5, [T1(c) for c in range(8, 16)], False)
    cmul(chain[8], chain[7], E64)
    for p in range(9, 25):
        cmul(chain[p], chain[p - 2], E128)
        if p == 15: put_group(6, [T2(c) for c in range(8)], False)
        if p == 23: put_group(7, [T2(c) for c in range(8, 16)], False)

    a(f"""
    v_lshrrev_b32 v2, 4, v1
    v_lshlrev_b32 v3, 3, v2
    v_bfe_u32 v4, v1, 2, 2
    v_add_u32 v3, v3, v4
    v_sub_u32 v3, 27, v3
    v_lshlrev_b32 v3, 6, v3
    v_and_b32 v5, 3, v1
    v_lshlrev_b32 v6, 3, v5
    s_add_u32 s56, s62, {UTST}
    v_add3_u32 v7, v3, v6, s56
    """)
    a(f"""
    v_lshrrev_b32 v3, 5, v1
    v_lshlrev_b32 v3, 3, v3
    v_add_u32 v3, v3, v4
    v_lshlrev_b32 v3, 7, v3
    v_and_b32 v26, 1, v2
    v_lshlrev_b32 v26, 5, v26
    v_add3_u32 v3, v3, v26, v6
    s_add_u32 s56, s62, {WFST}
    v_add_u32 v8, s56, v3
    """)
    a("""
    s_lshl_b32 s56, s58, 2
    s_add_u32 s56, s56, s28
    s_lshl_b32 s56, s56, 9
    s_lshl_b32 s57, s59, 5
    s_add_u32 s56, s56, s57
    s_lshl_b32 s56, s56, 6
    v_and_b32 v27, 15, v1
    v_lshlrev_b32 v27, 6, v27
    v_lshlrev_b32 v28, 4, v2
    v_add3_u32 v27, v27, v28, s56
    """)
    a("""
    s_mul_i32 s56, s61, 172
    s_add_u32 s56, s56, s60
    s_lshl_b32 s56, s56, 10
    s_cmp_ge_u32 s60, 86
    s_cselect_b32 s64, 0x10000000, s56
    s_add_u32 s65, s64, 88064
    """)
    a.need(vm="wf")
    UR, WR = 32, 48
    for cg in range(2):
        a.lgop(f"ds_read_b64_tr_b16 v[{UR+4*cg}:{UR+4*cg+1}], v7 offset:{256 + cg*32}", "utr")
        a.lgop(f"ds_read_b64_tr_b16 v[{UR+4*cg+2}:{UR+4*cg+3}], v7 offset:{cg*32}", "utr")
    for h in range(2):
        a.lgop(f"ds_read_b64_tr_b16 v[{WR+4*h}:{WR+4*h+1}], v8 offset:{h*64}", "wtr")
        a.lgop(f"ds_read_b64_tr_b16 v[{WR+4*h+2}:{WR+4*h+3}], v8 offset:{h*64 + 512}", "wtr")
    dpp_sum(a, KE[0])
    a("s_nop 0")
    a(f"v_readlane_b32 s66, v{KE[0]}, 63")
    a(f"s_add_u32 s56, s62, {WFST}")
    a("v_mov_b32 v3, s56")
    a("v_mov_b32 v4, s66")
    a.lgop("ds_write_b32 v3, v4", "kp")
    a.need(lg="utr")
    a.vmop(f"buffer_store_dwordx4 v[{UR}:{UR+3}], v27, s[{SUT}:{SUT+3}], 0 offen", "st")
    a.vmop(f"buffer_store_dwordx4 v[{UR+4}:{UR+7}], v27, s[{SUT}:{SUT+3}], 0 offen offset:1024", "st")
    a.need(lg="wtr")
    a.vmop(f"buffer_store_dwordx4 v[{WR}:{WR+3}], v25, s[{SWF}:{SWF+3}], s64 offen", "st")
    a.vmop(f"buffer_store_dwordx4 v[{WR+4}:{WR+7}], v25, s[{SWF}:{SWF+3}], s65 offen", "st")
    GW = 64
    for i in range(4):
        a(f"v_lshlrev_b32 v{GW+2*i}, 16, v{18+i}")
        a(f"v_and_b32 v{GW+2*i+1}, 0xffff0000, v{18+i}")
    for tk in range(2):
        X = 72 + 8 * tk
        for i in range(4):
            a(f"v_lshlrev_b32 v{X+2*i}, 16, v{10+4*tk+i}")
            a(f"v_and_b32 v{X+2*i+1}, 0xffff0000, v{10+4*tk+i}")
        for i in range(8):
            a(f"v_mul_f32 v{X+i}, v{X+i}, v{GW+i}")
        for i in range(8):
            a(f"v_cvt_pk_bf16_f32 v{X+i}, 0, v{X+i}")
        for st in (4, 2, 1):
            for i in range(st):
                a(f"v_add_f32 v{X+i}, v{X+i}, v{X+i+st}")
    dpp_sum2(a, 72, 80)
    a(f"s_mov_b32 s56, {LOG2E | 0x80000000}")
    for tk in range(2):
        X = 72 + 8 * tk
        a(f"v_cvt_pk_bf16_f32 v{X}, 0, v{X}")
    for tk in range(2):
        X = 72 + 8 * tk
        a(f"v_mul_f32 v{X}, s56, v{X}")
    for tk in range(2):
        X = 72 + 8 * tk
        a(f"v_exp_f32 v{X}, v{X}")
    a("s_nop 0")
    for tk in range(2):
        X = 72 + 8 * tk
        a(f"v_add_f32 v{X}, 1.0, v{X}")
    for tk in range(2):
        X = 72 + 8 * tk
        a(f"v_rcp_f32 v{X}, v{X}")
    a("s_nop 0")
    a("v_cvt_pk_bf16_f32 v88, 0, v72")
    a("v_cvt_pk_bf16_f32 v90, 0, v80")
    a("v_sub_f32 v89, 1.0, v88")
    a("v_sub_f32 v91, 1.0, v90")
    a("v_cvt_pk_bf16_f32 v89, 0, v89")
    a("v_cvt_pk_bf16_f32 v91, 0, v91")
    a("s_lshl_b32 s56, s30, 3")
    a("v_mov_b32 v92, s56")
    a("s_lshl_b64 exec, 1, 63")
    a.vmop(f"buffer_store_dwordx4 v[88:91], v92, s[{SG}:{SG+3}], 0 offen", "st")
    a("s_mov_b64 exec, -1")

    a("""
    v_lshrrev_b32 v2, 4, v1            ; kg
    v_lshlrev_b32 v3, 3, v2
    v_bfe_u32 v4, v1, 2, 2             ; r
    v_add_u32 v3, v3, v4
    v_lshlrev_b32 v3, 4, v3
    v_bfe_u32 v5, v1, 1, 1             ; c>>1
    v_lshlrev_b32 v6, 6, v5
    v_xor_b32 v3, v3, v6
    v_lshlrev_b32 v5, 12, v5
    v_and_b32 v6, 1, v1
    v_lshlrev_b32 v6, 3, v6
    v_add3_u32 v3, v3, v5, v6
    s_lshr_b32 s56, s28, 1
    s_lshl_b32 s57, s56, 15            ; cl*32768
    v_add_u32 v10, s57, v3             ; q1
    v_xor_b32 v11, 64, v10             ; q2
    s_cmp_eq_u32 s29, 0
    s_mov_b32 s69, 24576
    s_cselect_b32 s66, 8192, s69
    s_cselect_b32 s67, 16384, s69
    v_add_u32 v12, s66, v10
    v_add_u32 v13, s66, v11
    v_add_u32 v14, s67, v10
    v_add_u32 v15, s67, v11
    """)
    a(f"""
    s_lshl_b32 s68, s56, 12
    s_add_u32 s68, s68, {UTST}
    v_and_b32 v16, 15, v1              ; col
    v_lshlrev_b32 v17, 3, v2           ; 8g
    v_lshlrev_b32 v18, 5, v16          ; 32col
    v_add3_u32 v18, v18, v17, s68      ; base+32col+8g
    v_bfe_u32 v19, v1, 2, 2
    v_lshlrev_b32 v19, 7, v19          ; b*128
    v_and_b32 v20, 3, v1
    v_lshlrev_b32 v20, 5, v20
    v_add3_u32 v19, v19, v20, v17
    v_add_u32 v19, s68, v19
    v_add_u32 v20, 1024, v18
    s_cmp_eq_u32 s29, 0
    s_cselect_b64 vcc, -1, 0
    v_cndmask_b32 v16, v20, v19, vcc   ; vSA
    v_add_u32 v17, 512, v18
    v_cndmask_b32 v17, v20, v17, vcc   ; vSB
    """)
    a("""
    v_cmp_eq_u32 vcc, 0, v1
    s_cmp_eq_u32 s29, 0
    s_cselect_b64 s[70:71], vcc, 0
    v_mov_b32 v21, 0
    v_mov_b32 v22, 0
    v_mov_b32 v23, 0
    v_cndmask_b32 v20, 0, v9, s[70:71]
    """)
    a(f"""
    s_lshl_b32 s56, s56, 12
    s_add_u32 s56, s56, {WFST}
    v_mov_b32 v24, s56
    """)
    a.drain(vm=False, lg=True)
    a("s_barrier")
    QF, AF, BF = 32, 64, 96
    a.lgop("ds_read_b32 v25, v24", "k2")
    a.lgop("ds_read_b32 v26, v24 offset:2048", "k2")
    for s in range(8):
        for (F, r1, r2, tag) in ((QF, 10, 11, "q"), (AF, 12, 13, "a"), (BF, 14, 15, "b")):
            a.lgop(f"ds_read_b64_tr_b16 v[{F+4*s}:{F+4*s+1}], v{r1} offset:{s*512}", (tag, s))
            a.lgop(f"ds_read_b64_tr_b16 v[{F+4*s+2}:{F+4*s+3}], v{r2} offset:{s*512}", (tag, s))
    DA, DB = 128, 132
    a.need(lg="k2")
    a("v_add_f32 v25, v25, v26")
    a(f"s_add_u32 s56, s68, 1536")
    a("v_mov_b32 v27, s56")
    a("v_cvt_pk_bf16_f32 v25, v25, v25")
    for s in range(8):
        a.need(lg=[("q", s), ("a", s)])
        ca = "v[20:23]" if s == 0 else f"v[{DA}:{DA+3}]"
        a(f"v_mfma_f32_16x16x32_bf16 v[{DA}:{DA+3}], v[{QF+4*s}:{QF+4*s+3}], v[{AF+4*s}:{AF+4*s+3}], {ca}")
        a.need(lg=("b", s))
        cb = "0" if s == 0 else f"v[{DB}:{DB+3}]"
        a(f"v_mfma_f32_16x16x32_bf16 v[{DB}:{DB+3}], v[{QF+4*s}:{QF+4*s+3}], v[{BF+4*s}:{BF+4*s+3}], {cb}")
    a.lgop("ds_write_b16 v27, v25", "sw")
    I_, S_, LLp, LL = 0x03020100, 0x05040302, 0x05040100, 0x01000100
    a(f"""
    v_lshlrev_b32 v2, 4, v1            ; 16*lambda
    v_add_u32 v2, s68, v2
    s_lshl_b32 s56, s29, 8             ; 2p*128
    v_add_u32 v3, s56, v2              ; T0 row A
    v_add_u32 v4, 128, v3              ; T0 row B
    v_add_u32 v5, 512, v2              ; E4
    v_add_u32 v6, 384, v2              ; E2
    v_cmp_gt_u32 vcc, 16, v1
    s_cmp_eq_u32 s29, 1
    s_cselect_b64 s[70:71], vcc, 0
    v_cndmask_b32 v6, v5, v6, s[70:71]
    v_cmp_gt_u32 vcc, 8, v1
    v_cndmask_b32 v6, v6, v3, vcc
    v_cndmask_b32 v7, v5, v4, vcc
    s_cselect_b32 s56, 16, 32          ; thrA
    s_mov_b32 s72, {I_}
    s_mov_b32 s73, {S_}
    s_mov_b32 s74, {LLp}
    s_cselect_b32 s75, s74, {LL}
    s_cselect_b32 s76, s73, s72
    v_mov_b32 v8, s72
    v_mov_b32 v9, s76
    v_cndmask_b32 v9, v9, v8, vcc
    v_mov_b32 v10, s74
    v_cmp_gt_u32 vcc, 32, v1
    v_cndmask_b32 v9, v10, v9, vcc     ; selB
    v_cmp_gt_u32 vcc, s56, v1
    v_cndmask_b32 v11, v10, v8, vcc
    v_mov_b32 v12, s75
    v_cndmask_b32 v12, v12, v8, vcc
    """)
    a(f"v_cvt_pk_bf16_f32 v136, v{DA}, v{DA+1}")
    a(f"v_cvt_pk_bf16_f32 v137, v{DA+2}, v{DA+3}")
    a(f"v_cvt_pk_bf16_f32 v138, v{DB}, v{DB+1}")
    a(f"v_cvt_pk_bf16_f32 v139, v{DB+2}, v{DB+3}")
    a.lgop("ds_write_b64 v16, v[136:137]", "sw")
    a.lgop("ds_write_b64 v17, v[138:139]", "sw")
    a("""
    s_lshl_b32 s56, s3, 1
    s_lshr_b32 s57, s28, 1
    s_add_u32 s56, s56, s57
    s_lshl_b32 s56, s56, 12
    s_lshl_b32 s57, s29, 11
    s_add_u32 s56, s56, s57
    v_lshlrev_b32 v13, 4, v1
    v_add_u32 v13, s56, v13
    """)
    a.drain(vm=False, lg=True)
    a("s_barrier")
    XA, XB = 32, 40
    a.lgop(f"ds_read_b128 v[{XA}:{XA+3}], v6", "xa")
    a.lgop(f"ds_read_b32 v{XA+4}, v6 offset:16", "xa")
    a.lgop(f"ds_read_b128 v[{XB}:{XB+3}], v7", "xb")
    a.lgop(f"ds_read_b32 v{XB+4}, v7 offset:16", "xb")
    OA, OB = 48, 52
    a.need(lg="xa")
    for j in range(4):
        sel = 12 if j % 2 == 0 else 11
        a(f"v_perm_b32 v{OA+j}, v{XA+j+1}, v{XA+j}, v{sel}")
    a.vmop(f"buffer_store_dwordx4 v[{OA}:{OA+3}], v13, s[{SKP}:{SKP+3}], 0 offen", "st")
    a.need(lg="xb")
    for j in range(4):
        a(f"v_perm_b32 v{OB+j}, v{XB+j+1}, v{XB+j}, v9")
    a.vmop(f"buffer_store_dwordx4 v[{OB}:{OB+3}], v13, s[{SKP}:{SKP+3}], 0 offen offset:1024", "st")

def build_A(timing=False):
    a = Em()
    a("s_cmp_ge_u32 s2, 512\ns_cbranch_scc1 LA_end")
    a("s_cmp_ge_u32 s2, 256\ns_cbranch_scc1 LA_kgen")
    gemm1(a, "LA_end")
    a("s_endpgm")
    a("LA_kgen:")
    b = Em()
    b._lbl = 1000
    kgen(b)
    a.lines += b.lines
    a("LA_end:\ns_endpgm")
    return a

if __name__ == "__main__":
    import sys
    from hazard import fix
    a = build_A()
    t, n = fix(a.text(), True)
    k = kernel_block(NAME + "_kernel", t, 256)
    open(sys.argv[1], "w").write(build_file([(NAME + "_kernel", 512, 256, 81920)], [k]))
```

```python
from asmlib import Asm

class Em(Asm):
    def __init__(self):
        super().__init__()
        self.vm = []; self.vmdone = 0
        self.lg = []; self.lgdone = 0
    def vmop(self, s, tag=None):
        self(s); self.vm.append(tag)
    def lgop(self, s, tag=None):
        self(s); self.lg.append(tag)
    def _last(self, lst, tag):
        for i in range(len(lst) - 1, -1, -1):
            t = lst[i]
            if t == tag or (isinstance(t, tuple) and tag in t and not isinstance(tag, tuple)) :
                return i
        raise KeyError(tag)
    def need(self, vm=None, lg=None):
        parts = []
        if vm is not None:
            tags = vm if isinstance(vm, list) else [vm]
            idx = max(self._last(self.vm, t) for t in tags)
            if idx >= self.vmdone:
                n = len(self.vm) - 1 - idx
                n = min(n, 63)
                parts.append(f"vmcnt({n})")
                self.vmdone = len(self.vm) - n
        if lg is not None:
            tags = lg if isinstance(lg, list) else [lg]
            idx = max(self._last(self.lg, t) for t in tags)
            if idx >= self.lgdone:
                n = len(self.lg) - 1 - idx
                n = min(n, 15)
                parts.append(f"lgkmcnt({n})")
                self.lgdone = len(self.lg) - n
        if parts:
            self("s_waitcnt " + " ".join(parts))
    def drain(self, vm=True, lg=True):
        parts = []
        if vm: parts.append("vmcnt(0)"); self.vmdone = len(self.vm)
        if lg: parts.append("lgkmcnt(0)"); self.lgdone = len(self.lg)
        self("s_waitcnt " + " ".join(parts))
```

```python
from conv import *
from gemm2 import *
import kgen as KG
from hazard import fix
import sys

def flag_zero(a):
    srd_from(a, 84, 22, 23, 256 * 128, WS_FLAG)
    a("s_lshl_b32 s56, s3, 7\nv_mov_b32 v2, s56\nv_mov_b32 v3, 0")
    a("s_mov_b64 exec, 1")
    a("buffer_store_dword v3, v2, s[84:87], 0 offen")
    a("s_mov_b64 exec, -1")

def build_A():
    a = Em()
    a("s_cmp_ge_u32 s2, 512\ns_cbranch_scc1 LA_end")
    a("s_cmp_ge_u32 s2, 256\ns_cbranch_scc1 LA_kgen")
    KG.gemm1(a, "LA_end")
    a("s_endpgm")
    a("LA_kgen:")
    b = Em()
    b._lbl = 1000
    KG.kgen(b)
    flag_zero(b)
    a.lines += b.lines
    a("LA_end:\ns_endpgm")
    return a

def build_B():
    a = Em()
    a._lbl = 2000
    a("s_load_dwordx4 s[20:23], s[0:1], 120")
    a("s_cmp_ge_u32 s2, 512\ns_cbranch_scc1 LB_end")
    a("s_cmp_ge_u32 s2, 256\ns_cbranch_scc1 LB_g2")
    conv(a)
    a("s_endpgm")
    a("LB_g2:")
    b = Em()
    b._lbl = 3000
    gemm2(b)
    a.lines += b.lines
    a("LB_end:\ns_endpgm")
    return a

if __name__ == "__main__":
    A = build_A(); B = build_B()
    ta, n = fix(A.text(), False); tb, n2 = fix(B.text(), True)
    ka = kernel_block("ka_kernel", ta, 256); kb = kernel_block("kb_kernel", tb, 256)
    open(sys.argv[1], "w").write(build_file([("ka_kernel", 512, 256, 81920), ("kb_kernel", 512, 256, 57344)], [ka, kb]))
```

```python
from conv import *
from gemm2 import *
import kgen as KG
from hazard import fix
import sys

from timing import Tim
import os
TIM = int(os.environ.get("TIM", "0"))

def flag_zero(a):
    srd_from(a, 32, 22, 23, 256 * 128, WS_FLAG)
    a("s_lshl_b32 s56, s3, 7\nv_mov_b32 v2, s56\nv_mov_b32 v3, 0")
    a("s_mov_b64 exec, 1")
    a("buffer_store_dword v3, v2, s[32:35], 0 offen")
    a("s_mov_b64 exec, -1")

def build_A():
    a = Em()
    t = Tim(0) if TIM else None
    if t: t(a, 0)
    a("s_cmp_ge_u32 s2, 512\ns_cbranch_scc1 LA_end")
    a("s_cmp_ge_u32 s2, 256\ns_cbranch_scc1 LA_kgen")
    KG.gemm1(a, "LA_end", t)
    if t:
        t(a, 4); a("s_waitcnt vmcnt(0)"); t.final(a, 7, 10, 11)
    a("s_endpgm")
    a("LA_kgen:")
    if os.environ.get("NOKGEN"): a("s_endpgm")
    b = Em()
    b._lbl = 1000
    KG.kgen(b, t)
    flag_zero(b)
    if t:
        t(b, 6); b("s_waitcnt vmcnt(0)"); t.final(b, 7, 22, 23)
    a.lines += b.lines
    a("LA_end:\ns_endpgm")
    return a

def build_B():
    a = Em()
    a._lbl = 2000
    t = Tim(1) if TIM else None
    if t: t(a, 0)
    a("s_load_dwordx4 s[20:23], s[0:1], 120")
    a("s_cmp_ge_u32 s2, 512\ns_cbranch_scc1 LB_end")
    a("s_cmp_ge_u32 s2, 256\ns_cbranch_scc1 LB_g2")
    conv(a, tim=t)
    if t:
        a("s_mov_b64 exec, -1"); t(a, 5); a("s_waitcnt vmcnt(0)"); t.final(a, 7, 22, 23)
    a("s_endpgm")
    a("LB_g2:")
    b = Em()
    b._lbl = 3000
    gemm2(b, tim=t)
    if t:
        t(b, 6); b("s_waitcnt vmcnt(0)"); t.final(b, 7, 22, 23)
    a.lines += b.lines
    a("LB_end:\ns_endpgm")
    return a

if __name__ == "__main__":
    A = build_A(); B = build_B()
    ta, n = fix(A.text(), False); tb, n2 = fix(B.text(), False)
    ka = kernel_block("ka_kernel", ta, 256); kb = kernel_block("kb_kernel", tb, 256)
    open(sys.argv[1], "w").write(build_file([("ka_kernel", 512, 256, 81920), ("kb_kernel", 512, 256, 57344)], [ka, kb]))
```

```python
import sys, os
sys.path.insert(0, "dev")
from asmlib import *
from sched import Em

WS_H   = 0x000000
H_SIZE = 64 * 86 * 1024
WS_G   = 0x580000
G_SIZE = 2048 * 8
WS_UT  = 0x600000
UT_SIZE = 2 << 20
WS_KP  = 0x800000
KP_SIZE = 2 << 20
WS_WF  = 0xA00000
WF_SIZE = 16 * 86 * 1024
WS_AT  = 0xC00000
AT_SIZE = 2 << 20
WS_END = 0xE00000

TIMING = int(os.environ.get("TIMING", "0"))

def srd_from(a, dst, lo, hi, nbytes, off=0):
    if off:
        a(f"s_add_u32 s{dst}, s{lo}, {off}")
        a(f"s_addc_u32 s{dst+1}, s{hi}, 0")
    else:
        a(f"s_mov_b32 s{dst}, s{lo}")
        a(f"s_mov_b32 s{dst+1}, s{hi}")
    a(f"s_mov_b32 s{dst+2}, {nbytes}")
    a(f"s_mov_b32 s{dst+3}, 0x00020000")

def gemm1(a, lbl_exit, tim=None, X=()):
    ACC = lambda mat, j: 64 + (2 * j + mat) * 16
    WF = lambda mat, j: 160 + (2 * j + mat) * 4
    XF = lambda b, s: 184 + b * 16 + s * 4
    SX, SW, SH = 12, 16, 20
    XBASE = 49152
    a("""
    s_load_dwordx2 s[4:5], s[0:1], 0
    s_load_dwordx2 s[6:7], s[0:1], 80
    s_load_dwordx2 s[8:9], s[0:1], 88
    s_load_dwordx2 s[10:11], s[0:1], 128
    s_and_b32 s30, s2, 7
    s_lshr_b32 s31, s2, 3
    s_lshr_b32 s26, s30, 1
    s_lshl_b32 s26, s26, 2
    s_and_b32 s32, s31, 3
    s_add_u32 s26, s26, s32
    s_and_b32 s25, s30, 1
    s_lshl_b32 s25, s25, 3
    s_lshr_b32 s32, s31, 2
    s_add_u32 s25, s25, s32
    s_cmp_eq_u32 s25, 15
    """)
    a(f"s_cbranch_scc1 {lbl_exit}")
    a("""
    v_lshrrev_b32 v12, 6, v0
    v_and_b32 v13, 63, v0
    s_nop 0
    v_readfirstlane_b32 s24, v12
    """)
    a("s_and_b32 s30, s24, 1\ns_mul_i32 s30, s30, 192")
    a("s_mul_i32 s31, s25, 192")
    a("s_mov_b32 s33, 2752\ns_mov_b32 s34, 0xaaab")
    for k in range(3):
        a(f"v_add_u32 v14, s30, v13")
        if k: a(f"v_add_u32 v14, {64*k}, v14")
        a("v_mul_lo_u32 v15, v14, s34\nv_lshrrev_b32 v15, 19, v15")
        a("v_mul_u32_u24 v16, 12, v15\nv_sub_u32 v16, v14, v16\nv_lshlrev_b32 v16, 4, v16")
        a("v_mul_lo_u32 v15, v15, s33\nv_add_u32 v15, v15, v16")
        a(f"v_add_u32 v{6+k}, s31, v15")
        if k: a(f"v_subrev_u32 v{6+k}, {1024*k}, v{6+k}")
    a("s_lshl_b32 s30, s26, 7\ns_lshl_b32 s31, s24, 5\ns_add_u32 s30, s30, s31\ns_lshl_b32 s30, s30, 10")
    a("""
    v_lshrrev_b32 v14, 3, v13
    v_lshlrev_b32 v14, 10, v14
    v_add_u32 v14, s30, v14
    v_lshrrev_b32 v15, 4, v13
    v_and_b32 v16, 7, v13
    v_xor_b32 v17, v16, v15
    v_lshlrev_b32 v17, 4, v17
    v_add_u32 v9, v14, v17
    v_or_b32 v15, 4, v15
    v_xor_b32 v17, v16, v15
    v_lshlrev_b32 v17, 4, v17
    v_add_u32 v10, v14, v17
    v_add_u32 v10, 7168, v10
    """)
    a("""
    v_lshrrev_b32 v14, 5, v13
    v_lshlrev_b32 v14, 3, v14
    v_bfe_u32 v15, v13, 2, 2
    v_add_u32 v14, v14, v15
    v_mul_u32_u24 v14, 192, v14
    v_bfe_u32 v15, v13, 4, 1
    v_lshlrev_b32 v15, 5, v15
    v_and_b32 v16, 3, v13
    v_lshlrev_b32 v16, 3, v16
    v_add3_u32 v1, v14, v15, v16
    """)
    a("""
    v_and_b32 v14, 31, v13
    v_bfe_u32 v15, v13, 1, 3
    v_lshrrev_b32 v16, 5, v13
    v_xor_b32 v15, v15, v16
    v_lshlrev_b32 v14, 7, v14
    """)
    a(f"s_lshl_b32 s30, s24, 12\ns_add_u32 s30, s30, {XBASE}\nv_add_u32 v14, s30, v14")
    for s in range(4):
        a(f"v_xor_b32 v16, {2*s}, v15\nv_lshlrev_b32 v16, 4, v16\nv_add_u32 v{2+s}, v14, v16")
    a("s_lshl_b32 s30, s26, 2\ns_add_u32 s30, s30, s24\ns_mul_i32 s30, s30, 86\ns_mul_i32 s31, s25, 6\ns_add_u32 s30, s30, s31\ns_lshl_b32 s30, s30, 10")
    a("v_lshlrev_b32 v11, 4, v13\nv_add_u32 v11, s30, v11")
    ROT = [x for x in X if x.startswith("rot")]
    if ROT:
        mi, mj = {"rotA": (2, 1), "rotB": (4, 0), "rotC": (2, 0), "rotD": (4, 2), "rotE": (0, 0), "rotF": (1, 0), "rotG": (2, 2), "rotH": (1,1)}[ROT[0]]
        a(f"s_and_b32 s40, s26, 3\ns_mul_i32 s40, s40, {mi}\ns_and_b32 s41, s25, 7\ns_mul_i32 s41, s41, {mj}\ns_add_u32 s40, s40, s41\ns_and_b32 s40, s40, 7")
        a("s_lshl_b32 s41, s40, 7\ns_mul_i32 s40, s40, 176128")
    a("s_mul_i32 s35, s24, 3072")
    a(f"s_lshl_b32 s36, s24, 12\ns_add_u32 s36, s36, {XBASE}")
    a("s_waitcnt lgkmcnt(0)")
    srd_from(a, SX, 4, 5, 2048 * 1024)
    a("s_cmp_ge_u32 s24, 2\ns_cselect_b32 s6, s8, s6\ns_cselect_b32 s7, s9, s7")
    srd_from(a, SW, 6, 7, 512 * 2752)
    srd_from(a, SH, 10, 11, H_SIZE, WS_H)

    def dma_w(u, k):
        if "nodma" in X and u >= 3:
            a.vm.append(("W", u)); a.vmdone = len(a.vm); return
        if k == 0:
            a(f"s_add_u32 m0, s35, {(u % 4) * 12288}")
            if ROT:
                a("s_mov_b32 s27, s40")
                a(f"s_add_u32 s40, s40, 88064\ns_cmp_eq_u32 s40, {16*88064}\ns_cselect_b32 s40, 0, s40")
            else:
                a(f"s_mov_b32 s27, {u * 88064}")
        a.vmop(f"buffer_load_dwordx4 v{6+k}, s[{SW}:{SW+3}], s27 offen offset:{1024*k} lds", ("W", u))
    def dma_x(c, k):
        if "nodma" in X and c >= 2:
            a.vm.append(("X", c)); a.vmdone = len(a.vm); return
        if k == 0:
            a(f"s_add_u32 m0, s36, {(c & 1) * 16384}")
            if ROT:
                a("s_mov_b32 s28, s41")
                a("s_add_u32 s41, s41, 128\ns_and_b32 s41, s41, 1023")
            else:
                a(f"s_mov_b32 s28, {c * 128}")
        if k == 2:
            if ROT:
                a("s_add_u32 s28, s28, 14336")
            else:
                a(f"s_mov_b32 s28, {c * 128 + 14336}")
            a("s_nop 0")
        a.vmop(f"buffer_load_dwordx4 v{9+(k&1)}, s[{SX}:{SX+3}], s28 offen offset:{1024*k} lds", ("X", c))
    def rd_w(S, jj):
        if "nordw" in X and S >= 1:
            a.lg.append(("w", S, jj)); a.lgdone = len(a.lg); return
        if "halfrdw" in X and S >= 1 and (jj & 1):
            a.lg.append(("w", S, jj)); return
        u, sp = S >> 1, S & 1
        mat, j = jj & 1, jj >> 1
        base = (u % 4) * 12288 + mat * 6144 + 16 * sp * 192 + j * 64
        r = WF(mat, j)
        a.lgop(f"ds_read_b64_tr_b16 v[{r}:{r+1}], v1 offset:{base}", ("w", S, jj))
        a.lgop(f"ds_read_b64_tr_b16 v[{r+2}:{r+3}], v1 offset:{base + 4*192}", ("w", S, jj))
    def rd_x(c, s):
        r = XF(c & 1, s)
        a.lgop(f"ds_read_b128 v[{r}:{r+3}], v{2+s} offset:{(c & 1) * 16384}", ("x", c, s))

    for k in range(4): dma_x(0, k)
    for k in range(3): dma_w(0, k)
    for k in range(3): dma_w(1, k)
    for k in range(4): dma_x(1, k)
    for k in range(3): dma_w(2, k)
    if tim: tim(a, 1)
    a.need(vm=[("W", 0), ("X", 0)])
    a("s_barrier")
    if tim: tim(a, 2)
    for s in range(4): rd_x(0, s)
    for jj in range(6): rd_w(0, jj)
    a("s_setprio 2")
    for u in range(16):
        c, hb = u >> 1, u & 1
        for sp in range(2):
            S = 2 * u + sp
            sx = S & 3
            for jj in range(6):
                mat, j = jj & 1, jj >> 1
                lg = [("w", S, jj)]
                if jj == 0: lg.append(("x", c, sx))
                a.need(lg=lg)
                d = ACC(mat, j)
                src_c = "0" if S == 0 else f"v[{d}:{d+15}]"
                a(f"v_mfma_f32_32x32x16_bf16 v[{d}:{d+15}], v[{WF(mat,j)}:{WF(mat,j)+3}], v[{XF(c&1,sx)}:{XF(c&1,sx)+3}], {src_c}")
                if sp == 1 and jj == 0 and u < 15:
                    a.need(vm=("W", u + 1))
                    if "nobar" not in X: a("s_barrier")
                if S + 1 < 32: rd_w(S + 1, jj)
                if sp == 0 and jj in (1, 3, 5) and u + 3 < 16:
                    dma_w(u + 3, jj >> 1)
                if hb == 0 and sp == 1 and jj in (1, 2, 3, 4) and c + 2 < 8:
                    if jj == 1:
                        a.need(lg=("x", c, 3))
                    dma_x(c + 2, jj - 1)
                if hb == 1 and sp == 0 and jj in (0, 2, 4) and c + 1 < 8:
                    if jj == 0: a.need(vm=("X", c + 1))
                    if jj == 0: rd_x(c + 1, 0); rd_x(c + 1, 1)
                    if jj == 2: rd_x(c + 1, 2)
                    if jj == 4: rd_x(c + 1, 3)
    a("s_setprio 0")
    if tim: tim(a, 3)
    lbl_done = a.newlabel("G1done")
    a("s_nop 7\ns_nop 3")
    for j in range(3):
        if j == 1:
            a(f"s_cmp_eq_u32 s25, 14\ns_cbranch_scc1 {lbl_done}")
        g, up = ACC(0, j), ACC(1, j)
        T = 16
        for r in range(16):
            a(f"v_max_f32 v{g+r}, 0, v{g+r}")
        for r in range(16):
            a(f"v_cvt_pk_bf16_f32 v{g+r}, 0, v{g+r}")
            a(f"v_cvt_pk_bf16_f32 v{up+r}, 0, v{up+r}")
        for r in range(16):
            a(f"v_mul_f32 v{g+r}, v{g+r}, v{up+r}")
        for r in range(8):
            a(f"v_cvt_pk_bf16_f32 v{T+8*j+r}, v{g+2*r}, v{g+2*r+1}")
        for p in range(2):
            n = T + 8 * j + 4 * p
            a("s_nop 0")
            a(f"v_permlane32_swap_b32 v{n}, v{n+2}")
            a(f"v_permlane32_swap_b32 v{n+1}, v{n+3}")
            a("s_nop 0")
            off = (2 * j + p) * 1024
            so = "0"
            if off > 4095:
                a(f"s_mov_b32 s30, {off}"); so = "s30"; off = 0
            a.vmop(f"buffer_store_dwordx4 v[{n}:{n+3}], v11, s[{SH}:{SH+3}], {so} offen offset:{off}", ("st",))
    a(f"{lbl_done}:")

def build_gemm1_test():
    a = Em()
    a("s_cmp_ge_u32 s2, 256\ns_cbranch_scc1 L_end")
    if TIMING:
        a("s_memtime s[90:91]")
    gemm1(a, "L_end")
    if TIMING:
        a("s_memtime s[92:93]\ns_waitcnt lgkmcnt(0)\ns_sub_u32 s92, s92, s90")
        a("s_waitcnt vmcnt(0)\ns_memtime s[94:95]\ns_waitcnt lgkmcnt(0)\ns_sub_u32 s94, s94, s90")
        srd_from(a, 84, 10, 11, 1 << 20, 0x1000000)
        a("v_mov_b32 v2, s92\nv_mov_b32 v3, s94\nv_lshrrev_b32 v4, 6, v0\nv_lshlrev_b32 v4, 3, v4\ns_lshl_b32 s30, s2, 5\nv_add_u32 v4, s30, v4")
        a("buffer_store_dwordx2 v[2:3], v4, s[84:87], 0 offen")
    a("L_end:\ns_endpgm")
    k = kernel_block(NAME + "_kernel", a.text(), 256)
    return build_file([(NAME + "_kernel", 256, 256, 81920)], [k])

if __name__ == "__main__":
    what = sys.argv[1]; out = sys.argv[2]
    s = {"gemm1": build_gemm1_test}[what]()
    open(out, "w").write(s)
```

```python
from gen import *

LOG2E = 0x3FB8AA3B
LOG2E_LO = 0x32A57060
LN2 = 0x3F317218

def dpp_sum(a, v, t=None):
    for ctl in ("row_shr:1", "row_shr:2", "row_shr:4", "row_shr:8"):
        a("s_nop 1")
        a(f"v_add_f32_dpp v{v}, v{v}, v{v} {ctl} row_mask:0xf bank_mask:0xf bound_ctrl:1")
    a("s_nop 1")
    a(f"v_add_f32_dpp v{v}, v{v}, v{v} row_bcast:15 row_mask:0xa bank_mask:0xf")
    a("s_nop 1")
    a(f"v_add_f32_dpp v{v}, v{v}, v{v} row_bcast:31 row_mask:0xc bank_mask:0xf")

def dpp_sum2(a, v0, v1):
    a("s_nop 0")
    for ctl in ("row_shr:1", "row_shr:2", "row_shr:4", "row_shr:8"):
        for v in (v0, v1):
            a(f"v_add_f32_dpp v{v}, v{v}, v{v} {ctl} row_mask:0xf bank_mask:0xf bound_ctrl:1")
        a("s_nop 0")
    for v in (v0, v1):
        a(f"v_add_f32_dpp v{v}, v{v}, v{v} row_bcast:15 row_mask:0xa bank_mask:0xf")
    a("s_nop 0")
    for v in (v0, v1):
        a(f"v_add_f32_dpp v{v}, v{v}, v{v} row_bcast:31 row_mask:0xc bank_mask:0xf")

def kgen(a, tim=None):
    SU, SWD, SUT, SWF, SKP, SG = 32, 36, 40, 44, 48, 52
    UTST, WFST = 65536, 73728
    a("""
    s_load_dwordx16 s[4:19], s[0:1], 0
    s_load_dwordx2 s[20:21], s[0:1], 64
    s_load_dwordx4 s[24:27], s[0:1], 96
    s_load_dwordx2 s[22:23], s[0:1], 128
    s_sub_u32 s3, s2, 256
    v_lshrrev_b32 v22, 6, v0
    v_and_b32 v1, 63, v0
    s_lshl_b32 s56, s3, 9
    v_readfirstlane_b32 s28, v22
    v_lshlrev_b32 v23, 1, v0
    v_add_u32 v23, s56, v23            ; (id2*256+tid)*2
    v_lshrrev_b32 v24, 7, v0
    v_lshlrev_b32 v24, 1, v24
    s_lshl_b32 s56, s3, 2
    v_add_u32 v24, s56, v24            ; ch*2
    s_and_b32 s29, s28, 1
    """)
    a("""
    s_lshl_b32 s56, s3, 3
    s_lshl_b32 s57, s28, 1
    s_add_u32 s30, s56, s57            ; token0
    s_lshl_b32 s56, s30, 10
    v_lshlrev_b32 v25, 4, v1           ; lane*16
    v_add_u32 v26, s56, v25
    """)
    a("""
    s_lshr_b32 s58, s3, 4              ; tokblk
    s_and_b32 s59, s3, 15              ; chgrp
    s_lshl_b32 s56, s58, 7
    s_add_u32 s56, s56, s28
    s_lshl_b32 s56, s56, 10
    s_lshl_b32 s57, s59, 6
    s_add_u32 s56, s56, s57
    v_lshrrev_b32 v27, 2, v1
    v_lshlrev_b32 v27, 12, v27
    v_and_b32 v28, 3, v1
    v_lshlrev_b32 v28, 4, v28
    v_add3_u32 v27, v27, v28, s56
    """)
    a("""
    s_lshl_b32 s56, s3, 2
    s_add_u32 s56, s56, s28
    s_lshr_b32 s60, s56, 3             ; ks
    s_and_b32 s61, s56, 7              ; cb64
    s_lshl_b32 s56, s60, 14
    s_lshl_b32 s57, s61, 7
    s_add_u32 s56, s56, s57
    v_lshrrev_b32 v28, 3, v1
    v_lshlrev_b32 v28, 10, v28
    v_and_b32 v29, 7, v1
    v_lshlrev_b32 v29, 4, v29
    v_add3_u32 v28, v28, v29, s56
    s_lshl_b32 s62, s28, 11            ; w*2048
    s_waitcnt lgkmcnt(0)
    """)
    for i, p in enumerate((6, 8, 10, 12, 14, 16)):
        a.vmop(f"global_load_ushort v{2+i}, v23, s[{p}:{p+1}]", "in")
    a.vmop("global_load_ushort v8, v24, s[18:19]", "in")
    a.vmop("global_load_ushort v9, v24, s[20:21]", "in")
    a.vmop("global_load_dwordx4 v[10:13], v26, s[4:5]", "g")
    a.vmop("global_load_dwordx4 v[14:17], v26, s[4:5] offset:1024", "g")
    a.vmop("global_load_dwordx4 v[18:21], v25, s[26:27]", "g")
    srd_from(a, SU, 4, 5, 2048 * 1024)
    srd_from(a, SWD, 24, 25, 1376 * 1024)
    a(f"s_add_u32 m0, s62, {UTST}")
    a("s_mov_b32 s56, 65536")
    a.vmop(f"buffer_load_dwordx4 v27, s[{SU}:{SU+3}], 0 offen lds", "ut")
    a(f"s_add_u32 m0, s62, {UTST + 1024}")
    a("s_nop 0")
    a.vmop(f"buffer_load_dwordx4 v27, s[{SU}:{SU+3}], s56 offen lds", "ut")
    a(f"s_add_u32 m0, s62, {WFST}")
    a("s_mov_b32 s56, 8192")
    a.vmop(f"buffer_load_dwordx4 v28, s[{SWD}:{SWD+3}], 0 offen lds", "wf")
    a(f"s_add_u32 m0, s62, {WFST + 1024}")
    a("s_nop 0")
    a.vmop(f"buffer_load_dwordx4 v28, s[{SWD}:{SWD+3}], s56 offen lds", "wf")
    srd_from(a, SUT, 22, 23, UT_SIZE, WS_UT)
    srd_from(a, SWF, 22, 23, WF_SIZE, WS_WF)
    srd_from(a, SKP, 22, 23, KP_SIZE, WS_KP)
    srd_from(a, SG, 22, 23, G_SIZE, WS_G)

    Q = lambda q: (32 + 2 * q, 33 + 2 * q)
    T0 = lambda c: (64 + 2 * c, 65 + 2 * c)
    T1 = lambda c: (96 + 2 * c, 97 + 2 * c)
    T2 = lambda c: (128 + 2 * c, 129 + 2 * c)
    KE = (160, 161)
    E1, E64, E512, E128, E192, E256, E2, E3 = [(162 + 2 * i, 163 + 2 * i) for i in range(8)]
    E4 = Q(1)
    tcnt = [0]
    def cmul(d, x, y):
        t = 178 + 2 * (tcnt[0] % 4); tcnt[0] += 1
        a(f"v_mul_f32 v{t}, v{x[1]}, v{y[1]}")
        a(f"v_mul_f32 v{t+1}, v{x[1]}, v{y[0]}")
        a(f"v_fma_f32 v{d[0]}, v{x[0]}, v{y[0]}, -v{t}")
        a(f"v_fma_f32 v{d[1]}, v{x[0]}, v{y[1]}, v{t+1}")
    PK = lambda g, part: 192 + (g * 2 + part) * 4
    a("""
    v_and_b32 v30, 127, v0
    v_lshlrev_b32 v30, 4, v30
    v_lshrrev_b32 v31, 7, v0
    v_lshlrev_b32 v31, 15, v31
    v_add_u32 v30, v30, v31
    v_xor_b32 v31, 64, v30
    """)
    def put_group(g, cols, negim):
        for part in range(2):
            for i in range(4):
                x, y = cols[2 * i][part], cols[2 * i + 1][part]
                n = "-" if (negim and part == 1) else ""
                a(f"v_cvt_pk_bf16_f32 v{PK(g,part)+i}, {n}v{x}, {n}v{y}")
            p = PK(g, part)
            a.lgop(f"ds_write_b128 v{30 + (g & 1)}, v[{p}:{p+3}] offset:{g*4096 + part*2048}", "tw")

    if tim: tim(a, 1)
    a.need(vm="in")
    if tim: tim(a, 2)
    DT, LR, REV = 22, 23, 24
    a(f"""
    v_lshlrev_b32 v8, 16, v8
    s_mov_b32 s56, {LOG2E}
    s_mov_b32 s57, {LOG2E_LO}
    s_mov_b32 s63, {LN2}
    v_mul_f32 v186, s56, v8
    v_exp_f32 v187, v186
    v_fma_f32 v188, v8, s56, -v186
    v_fma_f32 v188, v8, s57, v188
    v_mul_f32 v188, s63, v188
    v_fma_f32 v187, v187, v188, v187
    """)
    for i in range(6):
        a(f"v_lshlrev_b32 v{2+i}, 16, v{2+i}")
    a(f"v_cvt_pk_bf16_f32 v{DT}, 0, v187")
    a("v_lshlrev_b32 v9, 16, v9")
    a(f"""
    v_mul_f32 v2, v{DT}, v2
    v_mul_f32 v3, v{DT}, v3
    v_mul_f32 v4, v{DT}, v4
    v_mul_f32 v5, v{DT}, v5
    v_mul_f32 v{LR}, s56, v2
    v_mul_f32 v{REV}, 0.15915494, v3
    """)
    def anchor(E, L, t):
        Lf = {1: None, 4: "4.0", 64: "0x42800000", 512: "0x44000000"}[L]
        if Lf is None:
            a(f"v_exp_f32 v{t}, v{LR}")
            a(f"v_fract_f32 v{t+1}, v{REV}")
        else:
            a(f"v_mul_f32 v{t}, {Lf}, v{LR}")
            a(f"v_mul_f32 v{t+1}, {Lf}, v{REV}")
            a(f"v_exp_f32 v{t}, v{t}")
            a(f"v_fract_f32 v{t+1}, v{t+1}")
    def anchor2(E, t):
        a(f"v_cos_f32 v{E[0]}, v{t+1}")
        a(f"v_sin_f32 v{E[1]}, v{t+1}")
    def anchor3(E, t):
        a(f"v_mul_f32 v{E[0]}, v{t}, v{E[0]}")
        a(f"v_mul_f32 v{E[1]}, v{t}, v{E[1]}")
    lst = [(E4, 4, 186), (E64, 64, 188), (E1, 1, 190), (E512, 512, 26)]
    for E, L, t in lst: anchor(E, L, t)
    cmul(T0(0), (6, 7), (4, 5))
    for E, L, t in lst: anchor2(E, t)
    a("s_nop 0")
    for E, L, t in lst: anchor3(E, t)
    a(f"v_mov_b32 v{Q(0)[0]}, 1.0\nv_mov_b32 v{Q(0)[1]}, 0")
    cmul(Q(2), E4, E4)
    cmul(E128, E64, E64)
    cmul(Q(3), Q(2), E4)
    cmul(E2, E1, E1)
    cmul(Q(4), Q(2), Q(2))
    cmul(E192, E128, E64)
    cmul(E256, E128, E128)
    cmul(E3, E2, E1)
    for q in range(5, 8): cmul(Q(q), Q(4), Q(q - 4))
    cmul(Q(8), Q(4), Q(4))
    put_group(0, [Q(q) for q in range(8)], True)
    for q in range(9, 16): cmul(Q(q), Q(8), Q(q - 8))
    put_group(1, [Q(q) for q in range(8, 16)], True)
    cmul(T0(4), T0(0), E1); cmul(T0(8), T0(0), E2); cmul(T0(12), T0(0), E3)
    cmul(T1(8), T0(0), E512)
    for b in range(4):
        for p, E in ((1, E64), (2, E128), (3, E192)):
            cmul(T0(4 * b + p), T0(4 * b), E)
        cmul(T1(9 + b), T1(8 + b), E64) if b < 3 else None
        if b == 1: put_group(2, [T0(c) for c in range(8)], False)
    put_group(3, [T0(c) for c in range(8, 16)], False)
    chain = [T1(8 + p) for p in range(8)] + [T2(p) for p in range(16)] + [KE]
    nxt = 4
    for c in range(8):
        src = T0(8 + c) if c < 4 else T0(c - 4)
        cmul(T1(c), src, E256)
        if nxt < 8:
            cmul(chain[nxt], chain[nxt - 1], E64); nxt += 1
    put_group(4, [T1(c) for c in range(8)], False)
    put_group(5, [T1(c) for c in range(8, 16)], False)
    cmul(chain[8], chain[7], E64)
    for p in range(9, 25):
        cmul(chain[p], chain[p - 2], E128)
        if p == 15: put_group(6, [T2(c) for c in range(8)], False)
        if p == 23: put_group(7, [T2(c) for c in range(8, 16)], False)

    if tim: tim(a, 3)
    a(f"""
    v_lshrrev_b32 v2, 4, v1
    v_lshlrev_b32 v3, 3, v2
    v_bfe_u32 v4, v1, 2, 2
    v_add_u32 v3, v3, v4
    v_sub_u32 v3, 27, v3
    v_lshlrev_b32 v3, 6, v3
    v_and_b32 v5, 3, v1
    v_lshlrev_b32 v6, 3, v5
    s_add_u32 s56, s62, {UTST}
    v_add3_u32 v7, v3, v6, s56
    """)
    a(f"""
    v_lshrrev_b32 v3, 5, v1
    v_lshlrev_b32 v3, 3, v3
    v_add_u32 v3, v3, v4
    v_lshlrev_b32 v3, 7, v3
    v_and_b32 v26, 1, v2
    v_lshlrev_b32 v26, 5, v26
    v_add3_u32 v3, v3, v26, v6
    s_add_u32 s56, s62, {WFST}
    v_add_u32 v8, s56, v3
    """)
    a("""
    s_lshl_b32 s56, s58, 2
    s_add_u32 s56, s56, s28
    s_lshl_b32 s56, s56, 9
    s_lshl_b32 s57, s59, 5
    s_add_u32 s56, s56, s57
    s_lshl_b32 s56, s56, 6
    v_and_b32 v27, 15, v1
    v_lshlrev_b32 v27, 6, v27
    v_lshlrev_b32 v28, 4, v2
    v_add3_u32 v27, v27, v28, s56
    """)
    a("""
    s_mul_i32 s56, s61, 172
    s_add_u32 s56, s56, s60
    s_lshl_b32 s56, s56, 10
    s_cmp_ge_u32 s60, 86
    s_cselect_b32 s64, 0x10000000, s56
    s_add_u32 s65, s64, 88064
    """)
    a.need(vm="wf")
    UR, WR = 32, 48
    for cg in range(2):
        a.lgop(f"ds_read_b64_tr_b16 v[{UR+4*cg}:{UR+4*cg+1}], v7 offset:{256 + cg*32}", "utr")
        a.lgop(f"ds_read_b64_tr_b16 v[{UR+4*cg+2}:{UR+4*cg+3}], v7 offset:{cg*32}", "utr")
    for h in range(2):
        a.lgop(f"ds_read_b64_tr_b16 v[{WR+4*h}:{WR+4*h+1}], v8 offset:{h*64}", "wtr")
        a.lgop(f"ds_read_b64_tr_b16 v[{WR+4*h+2}:{WR+4*h+3}], v8 offset:{h*64 + 512}", "wtr")
    dpp_sum(a, KE[0])
    a("s_nop 0")
    a(f"v_readlane_b32 s66, v{KE[0]}, 63")
    a(f"s_add_u32 s56, s62, {WFST}")
    a("v_mov_b32 v3, s56")
    a("v_mov_b32 v4, s66")
    a.lgop("ds_write_b32 v3, v4", "kp")
    a.need(lg="utr")
    a.vmop(f"buffer_store_dwordx4 v[{UR}:{UR+3}], v27, s[{SUT}:{SUT+3}], 0 offen", "st")
    a.vmop(f"buffer_store_dwordx4 v[{UR+4}:{UR+7}], v27, s[{SUT}:{SUT+3}], 0 offen offset:1024", "st")
    a.need(lg="wtr")
    a.vmop(f"buffer_store_dwordx4 v[{WR}:{WR+3}], v25, s[{SWF}:{SWF+3}], s64 offen", "st")
    a.vmop(f"buffer_store_dwordx4 v[{WR+4}:{WR+7}], v25, s[{SWF}:{SWF+3}], s65 offen", "st")
    GW = 64
    for i in range(4):
        a(f"v_lshlrev_b32 v{GW+2*i}, 16, v{18+i}")
        a(f"v_and_b32 v{GW+2*i+1}, 0xffff0000, v{18+i}")
    for tk in range(2):
        X = 72 + 8 * tk
        for i in range(4):
            a(f"v_lshlrev_b32 v{X+2*i}, 16, v{10+4*tk+i}")
            a(f"v_and_b32 v{X+2*i+1}, 0xffff0000, v{10+4*tk+i}")
        for i in range(8):
            a(f"v_mul_f32 v{X+i}, v{X+i}, v{GW+i}")
        for i in range(8):
            a(f"v_cvt_pk_bf16_f32 v{X+i}, 0, v{X+i}")
        for st in (4, 2, 1):
            for i in range(st):
                a(f"v_add_f32 v{X+i}, v{X+i}, v{X+i+st}")
    dpp_sum2(a, 72, 80)
    a(f"s_mov_b32 s56, {LOG2E | 0x80000000}")
    for tk in range(2):
        X = 72 + 8 * tk
        a(f"v_cvt_pk_bf16_f32 v{X}, 0, v{X}")
    for tk in range(2):
        X = 72 + 8 * tk
        a(f"v_mul_f32 v{X}, s56, v{X}")
    for tk in range(2):
        X = 72 + 8 * tk
        a(f"v_exp_f32 v{X}, v{X}")
    a("s_nop 0")
    for tk in range(2):
        X = 72 + 8 * tk
        a(f"v_add_f32 v{X}, 1.0, v{X}")
    for tk in range(2):
        X = 72 + 8 * tk
        a(f"v_rcp_f32 v{X}, v{X}")
    a("s_nop 0")
    a("v_cvt_pk_bf16_f32 v88, 0, v72")
    a("v_cvt_pk_bf16_f32 v90, 0, v80")
    a("v_sub_f32 v89, 1.0, v88")
    a("v_sub_f32 v91, 1.0, v90")
    a("v_cvt_pk_bf16_f32 v89, 0, v89")
    a("v_cvt_pk_bf16_f32 v91, 0, v91")
    a("s_lshl_b32 s56, s30, 3")
    a("v_mov_b32 v92, s56")
    a("s_lshl_b64 exec, 1, 63")
    a.vmop(f"buffer_store_dwordx4 v[88:91], v92, s[{SG}:{SG+3}], 0 offen", "st")
    a("s_mov_b64 exec, -1")

    a("""
    v_lshrrev_b32 v2, 4, v1            ; kg
    v_lshlrev_b32 v3, 3, v2
    v_bfe_u32 v4, v1, 2, 2             ; r
    v_add_u32 v3, v3, v4
    v_lshlrev_b32 v3, 4, v3
    v_bfe_u32 v5, v1, 1, 1             ; c>>1
    v_lshlrev_b32 v6, 6, v5
    v_xor_b32 v3, v3, v6
    v_lshlrev_b32 v5, 12, v5
    v_and_b32 v6, 1, v1
    v_lshlrev_b32 v6, 3, v6
    v_add3_u32 v3, v3, v5, v6
    s_lshr_b32 s56, s28, 1
    s_lshl_b32 s57, s56, 15            ; cl*32768
    v_add_u32 v10, s57, v3             ; q1
    v_xor_b32 v11, 64, v10             ; q2
    s_cmp_eq_u32 s29, 0
    s_mov_b32 s69, 24576
    s_cselect_b32 s66, 8192, s69
    s_cselect_b32 s67, 16384, s69
    v_add_u32 v12, s66, v10
    v_add_u32 v13, s66, v11
    v_add_u32 v14, s67, v10
    v_add_u32 v15, s67, v11
    """)
    a(f"""
    s_lshl_b32 s68, s56, 12
    s_add_u32 s68, s68, {UTST}
    v_and_b32 v16, 15, v1              ; col
    v_lshlrev_b32 v17, 3, v2           ; 8g
    v_lshlrev_b32 v18, 5, v16          ; 32col
    v_add3_u32 v18, v18, v17, s68      ; base+32col+8g
    v_bfe_u32 v19, v1, 2, 2
    v_lshlrev_b32 v19, 7, v19          ; b*128
    v_and_b32 v20, 3, v1
    v_lshlrev_b32 v20, 5, v20
    v_add3_u32 v19, v19, v20, v17
    v_add_u32 v19, s68, v19
    v_add_u32 v20, 1024, v18
    s_cmp_eq_u32 s29, 0
    s_cselect_b64 vcc, -1, 0
    v_cndmask_b32 v16, v20, v19, vcc   ; vSA
    v_add_u32 v17, 512, v18
    v_cndmask_b32 v17, v20, v17, vcc   ; vSB
    """)
    a("""
    v_cmp_eq_u32 vcc, 0, v1
    s_cmp_eq_u32 s29, 0
    s_cselect_b64 s[70:71], vcc, 0
    v_mov_b32 v21, 0
    v_mov_b32 v22, 0
    v_mov_b32 v23, 0
    v_cndmask_b32 v20, 0, v9, s[70:71]
    """)
    a(f"""
    s_lshl_b32 s56, s56, 12
    s_add_u32 s56, s56, {WFST}
    v_mov_b32 v24, s56
    """)
    a.drain(vm=False, lg=True)
    if tim: tim(a, 4)
    a("s_barrier")
    if tim: tim(a, 5)
    QF, AF, BF = 32, 64, 96
    a.lgop("ds_read_b32 v25, v24", "k2")
    a.lgop("ds_read_b32 v26, v24 offset:2048", "k2")
    for s in range(8):
        for (F, r1, r2, tag) in ((QF, 10, 11, "q"), (AF, 12, 13, "a"), (BF, 14, 15, "b")):
            a.lgop(f"ds_read_b64_tr_b16 v[{F+4*s}:{F+4*s+1}], v{r1} offset:{s*512}", (tag, s))
            a.lgop(f"ds_read_b64_tr_b16 v[{F+4*s+2}:{F+4*s+3}], v{r2} offset:{s*512}", (tag, s))
    DA, DB = 128, 132
    a.need(lg="k2")
    a("v_add_f32 v25, v25, v26")
    a(f"s_add_u32 s56, s68, 1536")
    a("v_mov_b32 v27, s56")
    a("v_cvt_pk_bf16_f32 v25, v25, v25")
    for s in range(8):
        a.need(lg=[("q", s), ("a", s)])
        ca = "v[20:23]" if s == 0 else f"v[{DA}:{DA+3}]"
        a(f"v_mfma_f32_16x16x32_bf16 v[{DA}:{DA+3}], v[{QF+4*s}:{QF+4*s+3}], v[{AF+4*s}:{AF+4*s+3}], {ca}")
        a.need(lg=("b", s))
        cb = "0" if s == 0 else f"v[{DB}:{DB+3}]"
        a(f"v_mfma_f32_16x16x32_bf16 v[{DB}:{DB+3}], v[{QF+4*s}:{QF+4*s+3}], v[{BF+4*s}:{BF+4*s+3}], {cb}")
    a.lgop("ds_write_b16 v27, v25", "sw")
    I_, S_, LLp, LL = 0x03020100, 0x05040302, 0x05040100, 0x01000100
    a(f"""
    v_lshlrev_b32 v2, 4, v1            ; 16*lambda
    v_add_u32 v2, s68, v2
    s_lshl_b32 s56, s29, 8             ; 2p*128
    v_add_u32 v3, s56, v2              ; T0 row A
    v_add_u32 v4, 128, v3              ; T0 row B
    v_add_u32 v5, 512, v2              ; E4
    v_add_u32 v6, 384, v2              ; E2
    v_cmp_gt_u32 vcc, 16, v1
    s_cmp_eq_u32 s29, 1
    s_cselect_b64 s[70:71], vcc, 0
    v_cndmask_b32 v6, v5, v6, s[70:71]
    v_cmp_gt_u32 vcc, 8, v1
    v_cndmask_b32 v6, v6, v3, vcc
    v_cndmask_b32 v7, v5, v4, vcc
    s_cselect_b32 s56, 16, 32          ; thrA
    s_mov_b32 s72, {I_}
    s_mov_b32 s73, {S_}
    s_mov_b32 s74, {LLp}
    s_cselect_b32 s75, s74, {LL}
    s_cselect_b32 s76, s73, s72
    v_mov_b32 v8, s72
    v_mov_b32 v9, s76
    v_cndmask_b32 v9, v9, v8, vcc
    v_mov_b32 v10, s74
    v_cmp_gt_u32 vcc, 32, v1
    v_cndmask_b32 v9, v10, v9, vcc     ; selB
    v_cmp_gt_u32 vcc, s56, v1
    v_cndmask_b32 v11, v10, v8, vcc
    v_mov_b32 v12, s75
    v_cndmask_b32 v12, v12, v8, vcc
    """)
    a(f"v_cvt_pk_bf16_f32 v136, v{DA}, v{DA+1}")
    a(f"v_cvt_pk_bf16_f32 v137, v{DA+2}, v{DA+3}")
    a(f"v_cvt_pk_bf16_f32 v138, v{DB}, v{DB+1}")
    a(f"v_cvt_pk_bf16_f32 v139, v{DB+2}, v{DB+3}")
    a.lgop("ds_write_b64 v16, v[136:137]", "sw")
    a.lgop("ds_write_b64 v17, v[138:139]", "sw")
    a("""
    s_lshl_b32 s56, s3, 1
    s_lshr_b32 s57, s28, 1
    s_add_u32 s56, s56, s57
    s_lshl_b32 s56, s56, 12
    s_lshl_b32 s57, s29, 11
    s_add_u32 s56, s56, s57
    v_lshlrev_b32 v13, 4, v1
    v_add_u32 v13, s56, v13
    """)
    a.drain(vm=False, lg=True)
    a("s_barrier")
    XA, XB = 32, 40
    a.lgop(f"ds_read_b128 v[{XA}:{XA+3}], v6", "xa")
    a.lgop(f"ds_read_b32 v{XA+4}, v6 offset:16", "xa")
    a.lgop(f"ds_read_b128 v[{XB}:{XB+3}], v7", "xb")
    a.lgop(f"ds_read_b32 v{XB+4}, v7 offset:16", "xb")
    OA, OB = 48, 52
    a.need(lg="xa")
    for j in range(4):
        sel = 12 if j % 2 == 0 else 11
        a(f"v_perm_b32 v{OA+j}, v{XA+j+1}, v{XA+j}, v{sel}")
    a.vmop(f"buffer_store_dwordx4 v[{OA}:{OA+3}], v13, s[{SKP}:{SKP+3}], 0 offen", "st")
    a.need(lg="xb")
    for j in range(4):
        a(f"v_perm_b32 v{OB+j}, v{XB+j+1}, v{XB+j}, v9")
    a.vmop(f"buffer_store_dwordx4 v[{OB}:{OB+3}], v13, s[{SKP}:{SKP+3}], 0 offen offset:1024", "st")

def build_A(timing=False):
    a = Em()
    a("s_cmp_ge_u32 s2, 512\ns_cbranch_scc1 LA_end")
    a("s_cmp_ge_u32 s2, 256\ns_cbranch_scc1 LA_kgen")
    gemm1(a, "LA_end")
    a("s_endpgm")
    a("LA_kgen:")
    b = Em()
    b._lbl = 1000
    kgen(b)
    a.lines += b.lines
    a("LA_end:\ns_endpgm")
    return a

if __name__ == "__main__":
    import sys
    from hazard import fix
    a = build_A()
    t, n = fix(a.text(), True)
    k = kernel_block(NAME + "_kernel", t, 256)
    open(sys.argv[1], "w").write(build_file([(NAME + "_kernel", 512, 256, 81920)], [k]))
```

```python
from gen import *
TIM_WS = 0x1000000
class Tim:
    TB = 78
    def __init__(self, launch, rt=True):
        self.launch = launch; self.rt = rt
    def __call__(self, a, k):
        op = "s_memrealtime" if self.rt else "s_memtime"
        a(f"{op} s[{self.TB+2*k}:{self.TB+2*k+1}]")
    def final(self, a, k, ws_lo, ws_hi, idreg="s2"):
        self(a, k)
        a("s_waitcnt lgkmcnt(0)")
        a(f"s_add_u32 s96, s{ws_lo}, {TIM_WS + self.launch * 0x20000}")
        a(f"s_addc_u32 s97, s{ws_hi}, 0")
        a("s_mov_b32 s98, 0x20000\ns_mov_b32 s99, 0x00020000")
        a("s_mov_b64 exec, -1")
        a(f"v_lshrrev_b32 v240, 6, v0\nv_lshlrev_b32 v240, 5, v240\ns_lshl_b32 s75, {idreg}, 7\nv_add_u32 v240, s75, v240")
        for i in range(8):
            a(f"v_mov_b32 v{242+i}, s{self.TB+2*i}")
        a("s_mov_b64 exec, 1")
        a("buffer_store_dwordx4 v[242:245], v240, s[96:99], 0 offen")
        a("buffer_store_dwordx4 v[246:249], v240, s[96:99], 0 offen offset:16")
        a("s_mov_b64 exec, -1")
```

```python
from full import *
import full
def build_A2(kind, n=8):
    a = Em()
    a("s_cmp_ge_u32 s2, 512\ns_cbranch_scc1 LA_end")
    a("s_cmp_ge_u32 s2, 256\ns_cbranch_scc1 LA_kgen")
    slot = {"same": 72, "bx": 72, "ws": 128, "u": 0}[kind]
    a(f"s_load_dwordx2 s[40:41], s[0:1], {slot}")
    a("s_waitcnt lgkmcnt(0)")
    off = 0x4000000 if kind == "ws" else 0
    srd_from(a, 44, 40, 41, 2048 * 1024, off)
    a("v_lshrrev_b32 v2, 6, v0\ns_lshl_b32 s42, s2, 2\nv_add_u32 v2, s42, v2\nv_lshlrev_b32 v2, 11, v2")
    for k in range(n):
        o = 0 if kind == "same" else k * 256
        a(f"buffer_load_dword v3, v2, s[44:47], 0 offen offset:{o} sc1")
        a("s_waitcnt vmcnt(0)")
        a("v_and_b32 v3, 0, v3\nv_add_u32 v2, v2, v3")
    KG.gemm1(a, "LA_end", None)
    a("s_endpgm")
    a("LA_kgen:")
    b = Em(); b._lbl = 1000
    KG.kgen(b, None)
    flag_zero(b)
    a.lines += b.lines
    a("LA_end:\ns_endpgm")
    return a
for kind in ("same", "bx", "ws"):
    A = build_A2(kind); B = build_B()
    ta, n = fix(A.text(), False); tb, n2 = fix(B.text(), False)
    ka = kernel_block("ka_kernel", ta, 256); kb = kernel_block("kb_kernel", tb, 256)
    open(f"x/chain_{kind}.s", "w").write(build_file([("ka_kernel", 512, 256, 81920), ("kb_kernel", 512, 256, 57344)], [ka, kb]))
```

```python
import sys
sys.path.insert(0, "dev")
sys.path.insert(0, "f")
from gen import *
from kgen import LOG2E, LOG2E_LO, LN2, dpp_sum, dpp_sum2
from pp import spin_wait, nonce_get, X_get, WS_F1, WS_F3

KT_ROW = 1056
KT0 = 1056
KT_CH = 20 * KT_ROW
UB = 42240

def qrole(a, tim=None, X=()):
    SU, SWD, SWS = 32, 36, 48
    DBG, WSP, NON, CNT = 40, 42, 44, 46
    UTST, WFST = 65536, 73728
    GU, GW0 = 240, 248
    NV, PV = 252, 254
    UR, WR = 224, 232
    a("""
    s_load_dwordx16 s[4:19], s[0:1], 0
    s_load_dwordx2 s[20:21], s[0:1], 64
    s_load_dwordx4 s[24:27], s[0:1], 96
    s_load_dwordx4 s[40:43], s[0:1], 120
    s_and_b32 s3, s2, 255
    v_lshrrev_b32 v22, 6, v0
    v_and_b32 v1, 63, v0
    s_lshl_b32 s56, s3, 9
    v_readfirstlane_b32 s28, v22
    v_lshlrev_b32 v23, 1, v0
    v_add_u32 v23, s56, v23            ; (id2*256+tid)*2
    v_lshrrev_b32 v24, 7, v0
    v_lshlrev_b32 v24, 1, v24
    s_lshl_b32 s56, s3, 2
    v_add_u32 v24, s56, v24            ; ch*2
    s_and_b32 s29, s28, 1
    """)
    a("""
    s_lshl_b32 s56, s3, 3
    s_lshl_b32 s57, s28, 1
    s_add_u32 s30, s56, s57            ; token0
    s_lshl_b32 s56, s30, 10
    v_lshlrev_b32 v25, 4, v1           ; lane*16
    v_add_u32 v26, s56, v25
    """)
    a("""
    s_lshr_b32 s58, s3, 4              ; tokblk
    s_and_b32 s59, s3, 15              ; chgrp
    s_lshl_b32 s56, s58, 7
    s_add_u32 s56, s56, s28
    s_lshl_b32 s56, s56, 10
    s_lshl_b32 s57, s59, 6
    s_add_u32 s56, s56, s57
    v_lshrrev_b32 v27, 2, v1
    v_lshlrev_b32 v27, 12, v27
    v_and_b32 v28, 3, v1
    v_lshlrev_b32 v28, 4, v28
    v_add3_u32 v27, v27, v28, s56
    """)
    a("""
    s_lshl_b32 s56, s3, 2
    s_add_u32 s56, s56, s28
    s_lshr_b32 s60, s56, 3             ; ks
    s_and_b32 s61, s56, 7              ; cb64
    s_lshl_b32 s56, s60, 14
    s_lshl_b32 s57, s61, 7
    s_add_u32 s56, s56, s57
    v_lshrrev_b32 v28, 3, v1
    v_lshlrev_b32 v28, 10, v28
    v_and_b32 v29, 7, v1
    v_lshlrev_b32 v29, 4, v29
    v_add3_u32 v28, v28, v29, s56
    s_lshl_b32 s62, s28, 11            ; w*2048
    s_waitcnt lgkmcnt(0)
    """)
    for i, p in enumerate((6, 8, 10, 12, 14, 16)):
        a.vmop(f"global_load_ushort v{2+i}, v23, s[{p}:{p+1}]", "in")
    a.vmop("global_load_ushort v8, v24, s[18:19]", "in")
    a.vmop("global_load_ushort v9, v24, s[20:21]", "in")
    srd_from(a, SU, 4, 5, 2048 * 1024)
    srd_from(a, SWD, 24, 25, 1376 * 1024)
    a(f"s_add_u32 m0, s62, {UTST}")
    a("s_mov_b32 s56, 65536")
    a.vmop(f"buffer_load_dwordx4 v27, s[{SU}:{SU+3}], 0 offen lds", "ut")
    a(f"s_add_u32 m0, s62, {UTST + 1024}")
    a("s_nop 0")
    a.vmop(f"buffer_load_dwordx4 v27, s[{SU}:{SU+3}], s56 offen lds", "ut")
    a(f"s_add_u32 m0, s62, {WFST}")
    a("s_mov_b32 s56, 8192")
    a.vmop(f"buffer_load_dwordx4 v28, s[{SWD}:{SWD+3}], 0 offen lds", "wf")
    a(f"s_add_u32 m0, s62, {WFST + 1024}")
    a("s_nop 0")
    a.vmop(f"buffer_load_dwordx4 v28, s[{SWD}:{SWD+3}], s56 offen lds", "wf")
    a.vmop(f"global_load_dwordx4 v[{GU}:{GU+3}], v26, s[4:5]", "g")
    a.vmop(f"global_load_dwordx4 v[{GU+4}:{GU+7}], v26, s[4:5] offset:1024", "g")
    a.vmop(f"global_load_dwordx4 v[{GW0}:{GW0+3}], v25, s[26:27]", "g")
    srd_from(a, SWS, WSP, WSP + 1, WS_END)
    a(f"""
    v_lshrrev_b32 v10, 4, v1           ; g
    v_lshlrev_b32 v11, 3, v10
    v_bfe_u32 v12, v1, 2, 2            ; r
    v_add_u32 v11, v11, v12
    v_sub_u32 v11, 27, v11
    v_lshlrev_b32 v11, 6, v11
    v_and_b32 v13, 3, v1
    v_lshlrev_b32 v13, 3, v13          ; c*8
    s_add_u32 s56, s62, {UTST}
    v_add3_u32 v14, v11, v13, s56
    v_lshrrev_b32 v11, 5, v1
    v_lshlrev_b32 v11, 3, v11
    v_add_u32 v11, v11, v12
    v_lshlrev_b32 v11, 7, v11
    v_and_b32 v15, 1, v10
    v_lshlrev_b32 v15, 5, v15
    v_add3_u32 v11, v11, v15, v13
    s_add_u32 s56, s62, {WFST}
    v_add_u32 v15, s56, v11
    s_lshl_b32 s56, s58, 2
    s_add_u32 s56, s56, s28
    s_lshl_b32 s56, s56, 9
    s_lshl_b32 s57, s59, 5
    s_add_u32 s56, s56, s57
    s_lshl_b32 s56, s56, 6
    s_add_u32 s56, s56, {WS_UT}
    v_and_b32 v16, 15, v1
    v_lshlrev_b32 v16, 6, v16
    v_lshlrev_b32 v17, 4, v10
    v_add3_u32 v16, v16, v17, s56
    s_mul_i32 s56, s61, 172
    s_add_u32 s56, s56, s60
    s_lshl_b32 s56, s56, 10
    s_add_u32 s56, s56, {WS_WF}
    s_cmp_ge_u32 s60, 86
    s_cselect_b32 s64, 0x10000000, s56
    s_add_u32 s65, s64, 88064
    """)
    a(f"""
    s_lshl_b32 s56, s3, 7
    s_lshl_b32 s57, s28, 3
    s_add_u32 s56, s56, s57
    s_add_u32 s56, s56, {WS_F1}
    v_mov_b32 v17, s56
    s_lshr_b32 s56, s3, 4
    s_lshl_b32 s56, s56, 7
    s_add_u32 s56, s56, {WS_F1}
    v_lshrrev_b32 v18, 2, v1
    v_lshlrev_b32 v18, 11, v18
    v_and_b32 v19, 3, v1
    v_lshlrev_b32 v19, 3, v19
    v_add3_u32 v18, v18, v19, s56
    v_mov_b32 v19, 0
    s_mov_b64 s[66:67], -1
    """)
    a(f"""
    s_lshr_b32 s31, s28, 1                    ; cl
    s_lshl_b32 s47, s3, 1
    s_add_u32 s47, s47, s31                   ; ch
    v_lshrrev_b32 v20, 2, v1
    v_sub_u32 v20, 15, v20
    v_lshlrev_b32 v20, 17, v20
    v_and_b32 v21, 3, v1
    v_lshlrev_b32 v21, 4, v21
    s_lshl_b32 s56, s29, 16
    s_lshl_b32 s57, s47, 6
    s_add_u32 s56, s56, s57
    s_add_u32 s56, s56, {WS_UT}
    v_add3_u32 v20, v20, v21, s56
    """)

    Q = lambda q: (32 + 2 * q, 33 + 2 * q)
    T0 = lambda c: (64 + 2 * c, 65 + 2 * c)
    T1 = lambda c: (96 + 2 * c, 97 + 2 * c)
    T2 = lambda c: (128 + 2 * c, 129 + 2 * c)
    KE = (160, 161)
    E1, E64, E512, E128, E192, E256, E2, E3 = [(162 + 2 * i, 163 + 2 * i) for i in range(8)]
    E4 = Q(1)
    tcnt = [0]
    def cmul(d, x, y):
        t = 178 + 2 * (tcnt[0] % 4); tcnt[0] += 1
        a(f"v_mul_f32 v{t}, v{x[1]}, v{y[1]}")
        a(f"v_mul_f32 v{t+1}, v{x[1]}, v{y[0]}")
        a(f"v_fma_f32 v{d[0]}, v{x[0]}, v{y[0]}, -v{t}")
        a(f"v_fma_f32 v{d[1]}, v{x[0]}, v{y[1]}, v{t+1}")
    PK = lambda g, part: 192 + (g * 2 + part) * 4 if g < 4 else 192 + ((g - 4) * 2 + part) * 4
    a("""
    v_and_b32 v30, 127, v0
    v_lshlrev_b32 v30, 4, v30
    v_lshrrev_b32 v31, 7, v0
    v_lshlrev_b32 v31, 15, v31
    v_add_u32 v30, v30, v31
    v_xor_b32 v31, 64, v30
    """)
    def put_group(g, cols, negim):
        if g >= 4:
            a.need(lg=("tw", g - 4))
        for part in range(2):
            for i in range(4):
                x, y = cols[2 * i][part], cols[2 * i + 1][part]
                n = "-" if (negim and part == 1) else ""
                a(f"v_cvt_pk_bf16_f32 v{PK(g,part)+i}, {n}v{x}, {n}v{y}")
            p = PK(g, part)
            a.lgop(f"ds_write_b128 v{30 + (g & 1)}, v[{p}:{p+3}] offset:{g*4096 + part*2048}", ("tw", g))

    def prep_rd():
        a.need(vm="wf")
        for cg in range(2):
            a.lgop(f"ds_read_b64_tr_b16 v[{UR+4*cg}:{UR+4*cg+1}], v14 offset:{256 + cg*32}", "utr")
            a.lgop(f"ds_read_b64_tr_b16 v[{UR+4*cg+2}:{UR+4*cg+3}], v14 offset:{cg*32}", "utr")
        for h in range(2):
            a.lgop(f"ds_read_b64_tr_b16 v[{WR+4*h}:{WR+4*h+1}], v15 offset:{h*64}", "wtr")
            a.lgop(f"ds_read_b64_tr_b16 v[{WR+4*h+2}:{WR+4*h+3}], v15 offset:{h*64 + 512}", "wtr")
    def prep_st():
        a.need(lg="utr")
        a.vmop(f"buffer_store_dwordx4 v[{UR}:{UR+3}], v16, s[{SWS}:{SWS+3}], 0 offen sc1", "st")
        a.vmop(f"buffer_store_dwordx4 v[{UR+4}:{UR+7}], v16, s[{SWS}:{SWS+3}], 0 offen offset:1024 sc1", "st")
        a.need(lg="wtr")
        a.vmop(f"buffer_store_dwordx4 v[{WR}:{WR+3}], v25, s[{SWS}:{SWS+3}], s64 offen sc1", "st")
        a.vmop(f"buffer_store_dwordx4 v[{WR+4}:{WR+7}], v25, s[{SWS}:{SWS+3}], s65 offen sc1", "st")
        a.vmop(f"global_load_dwordx2 v[{NV}:{NV+1}], v19, s[{DBG}:{DBG+1}] sc1", "non")
    def prep_flag():
        nonce_get(a, "Qn", NV, NON, DBG, 19, "non", cnt=CNT)
        a.drain(vm=True, lg=False)
        a(f"v_mov_b32 v{NV}, s{NON}\nv_mov_b32 v{NV+1}, s{NON+1}\ns_mov_b64 exec, 1")
        a.vmop(f"buffer_store_dwordx2 v[{NV}:{NV+1}], v17, s[{SWS}:{SWS+3}], 0 offen sc1", "f1")
        a("s_mov_b64 exec, -1")

    if tim: tim(a, 1)
    a.need(vm="in")
    if tim: tim(a, 2)
    DT, LR, REV = 22, 23, 24
    a(f"""
    v_lshlrev_b32 v8, 16, v8
    s_mov_b32 s56, {LOG2E}
    s_mov_b32 s57, {LOG2E_LO}
    s_mov_b32 s63, {LN2}
    v_mul_f32 v186, s56, v8
    v_exp_f32 v187, v186
    v_fma_f32 v188, v8, s56, -v186
    v_fma_f32 v188, v8, s57, v188
    v_mul_f32 v188, s63, v188
    v_fma_f32 v187, v187, v188, v187
    """)
    for i in range(6):
        a(f"v_lshlrev_b32 v{2+i}, 16, v{2+i}")
    a(f"v_cvt_pk_bf16_f32 v{DT}, 0, v187")
    a("v_lshlrev_b32 v9, 16, v9")
    a(f"""
    v_mul_f32 v2, v{DT}, v2
    v_mul_f32 v3, v{DT}, v3
    v_mul_f32 v4, v{DT}, v4
    v_mul_f32 v5, v{DT}, v5
    v_mul_f32 v{LR}, s56, v2
    v_mul_f32 v{REV}, 0.15915494, v3
    """)
    def anchor(E, L, t):
        Lf = {1: None, 4: "4.0", 64: "0x42800000", 512: "0x44000000"}[L]
        if Lf is None:
            a(f"v_exp_f32 v{t}, v{LR}")
            a(f"v_fract_f32 v{t+1}, v{REV}")
        else:
            a(f"v_mul_f32 v{t}, {Lf}, v{LR}")
            a(f"v_mul_f32 v{t+1}, {Lf}, v{REV}")
            a(f"v_exp_f32 v{t}, v{t}")
            a(f"v_fract_f32 v{t+1}, v{t+1}")
    def anchor2(E, t):
        a(f"v_cos_f32 v{E[0]}, v{t+1}")
        a(f"v_sin_f32 v{E[1]}, v{t+1}")
    def anchor3(E, t):
        a(f"v_mul_f32 v{E[0]}, v{t}, v{E[0]}")
        a(f"v_mul_f32 v{E[1]}, v{t}, v{E[1]}")
    lst = [(E4, 4, 186), (E64, 64, 188), (E1, 1, 190), (E512, 512, 26)]
    for E, L, t in lst: anchor(E, L, t)
    cmul(T0(0), (6, 7), (4, 5))
    for E, L, t in lst: anchor2(E, t)
    a("s_nop 0")
    for E, L, t in lst: anchor3(E, t)
    a(f"v_mov_b32 v{Q(0)[0]}, 1.0\nv_mov_b32 v{Q(0)[1]}, 0")
    cmul(Q(2), E4, E4)
    cmul(E128, E64, E64)
    cmul(Q(3), Q(2), E4)
    cmul(E2, E1, E1)
    cmul(Q(4), Q(2), Q(2))
    cmul(E192, E128, E64)
    cmul(E256, E128, E128)
    cmul(E3, E2, E1)
    PR, PS, PFL = X_get(X, "pr", 0), X_get(X, "ps", 1), X_get(X, "pf", 5)
    def hook(g):
        if g == PR: prep_rd()
        if g == PS: prep_st()
        if g == PFL: prep_flag()
    for q in range(5, 8): cmul(Q(q), Q(4), Q(q - 4))
    cmul(Q(8), Q(4), Q(4))
    put_group(0, [Q(q) for q in range(8)], True); hook(0)
    for q in range(9, 16): cmul(Q(q), Q(8), Q(q - 8))
    put_group(1, [Q(q) for q in range(8, 16)], True); hook(1)
    cmul(T0(4), T0(0), E1); cmul(T0(8), T0(0), E2); cmul(T0(12), T0(0), E3)
    cmul(T1(8), T0(0), E512)
    for b in range(4):
        for p, E in ((1, E64), (2, E128), (3, E192)):
            cmul(T0(4 * b + p), T0(4 * b), E)
        cmul(T1(9 + b), T1(8 + b), E64) if b < 3 else None
        if b == 1: put_group(2, [T0(c) for c in range(8)], False); hook(2)
    put_group(3, [T0(c) for c in range(8, 16)], False); hook(3)
    chain = [T1(8 + p) for p in range(8)] + [T2(p) for p in range(16)] + [KE]
    nxt = 4
    for c in range(8):
        src = T0(8 + c) if c < 4 else T0(c - 4)
        cmul(T1(c), src, E256)
        if nxt < 8:
            cmul(chain[nxt], chain[nxt - 1], E64); nxt += 1
    put_group(4, [T1(c) for c in range(8)], False); hook(4)
    put_group(5, [T1(c) for c in range(8, 16)], False); hook(5)
    cmul(chain[8], chain[7], E64)
    for p in range(9, 25):
        cmul(chain[p], chain[p - 2], E128)
        if p == 15: put_group(6, [T2(c) for c in range(8)], False); hook(6)
        if p == 23: put_group(7, [T2(c) for c in range(8, 16)], False); hook(7)

    if tim: tim(a, 3)
    a.vmop(f"buffer_load_dwordx2 v[{PV}:{PV+1}], v18, s[{SWS}:{SWS+3}], 0 offen sc1", "poll")
    dpp_sum(a, KE[0])
    a("s_nop 0")
    a(f"v_readlane_b32 s68, v{KE[0]}, 63")
    a(f"s_add_u32 s56, s62, {WFST}")
    a("v_mov_b32 v3, s56")
    a("v_mov_b32 v4, s68")
    a.lgop("ds_write_b32 v3, v4", "kp")

    a("""
    v_lshrrev_b32 v2, 4, v1            ; kg
    v_lshlrev_b32 v3, 3, v2
    v_bfe_u32 v4, v1, 2, 2             ; r
    v_add_u32 v3, v3, v4
    v_lshlrev_b32 v3, 4, v3
    v_bfe_u32 v5, v1, 1, 1             ; c>>1
    v_lshlrev_b32 v6, 6, v5
    v_xor_b32 v3, v3, v6
    v_lshlrev_b32 v5, 12, v5
    v_and_b32 v6, 1, v1
    v_lshlrev_b32 v6, 3, v6
    v_add3_u32 v3, v3, v5, v6
    s_lshr_b32 s56, s28, 1
    s_lshl_b32 s57, s56, 15            ; cl*32768
    v_add_u32 v10, s57, v3             ; q1
    v_xor_b32 v11, 64, v10             ; q2
    s_cmp_eq_u32 s29, 0
    s_mov_b32 s69, 24576
    s_cselect_b32 s71, 8192, s69
    s_cselect_b32 s70, 16384, s69
    v_add_u32 v12, s71, v10
    v_add_u32 v13, s71, v11
    v_add_u32 v14, s70, v10
    v_add_u32 v15, s70, v11
    """)
    a("v_mov_b32 v29, v18")
    APOLL = 29
    a(f"""
    s_lshl_b32 s68, s56, 12
    s_add_u32 s68, s68, {UTST}
    v_and_b32 v16, 15, v1              ; col
    v_lshlrev_b32 v17, 3, v2           ; 8g
    v_lshlrev_b32 v18, 5, v16          ; 32col
    v_add3_u32 v18, v18, v17, s68      ; base+32col+8g
    v_bfe_u32 v19, v1, 2, 2
    v_lshlrev_b32 v19, 7, v19          ; b*128
    v_and_b32 v21, 3, v1
    v_lshlrev_b32 v21, 5, v21
    v_add3_u32 v19, v19, v21, v17
    v_add_u32 v19, s68, v19
    v_add_u32 v21, 1024, v18
    s_cmp_eq_u32 s29, 0
    s_cselect_b64 vcc, -1, 0
    v_cndmask_b32 v16, v21, v19, vcc   ; vSA
    v_add_u32 v17, 512, v18
    v_cndmask_b32 v17, v21, v17, vcc   ; vSB
    """)
    spin_wait(a, "Qf1", APOLL, PV, SWS, 66, NON, "poll", cnt=CNT)
    a.vmdone = len(a.vm)
    a.vmop(f"buffer_load_dwordx4 v[{UR}:{UR+3}], v20, s[{SWS}:{SWS+3}], 0 offen sc1", "u")
    a("s_mov_b32 s56, 32768")
    a.vmop(f"buffer_load_dwordx4 v[{UR+4}:{UR+7}], v20, s[{SWS}:{SWS+3}], s56 offen sc1", "u")
    if tim: tim(a, 4)
    a("""
    v_cmp_eq_u32 vcc, 0, v1
    s_cmp_eq_u32 s29, 0
    s_cselect_b64 s[70:71], vcc, 0
    v_mov_b32 v21, 0
    v_mov_b32 v22, 0
    v_mov_b32 v23, 0
    v_cndmask_b32 v20, 0, v9, s[70:71]
    """)
    a(f"""
    s_lshr_b32 s56, s28, 1
    s_lshl_b32 s56, s56, 12
    s_add_u32 s56, s56, {WFST}
    v_mov_b32 v24, s56
    """)
    a.drain(vm=False, lg=True)
    a("s_barrier")
    QF, AF_, BF_ = 32, 64, 96
    a.lgop("ds_read_b32 v25, v24", "k2")
    a.lgop("ds_read_b32 v26, v24 offset:2048", "k2")
    for s in range(8):
        for (F, r1, r2, tag) in ((QF, 10, 11, "q"), (AF_, 12, 13, "a"), (BF_, 14, 15, "b")):
            a.lgop(f"ds_read_b64_tr_b16 v[{F+4*s}:{F+4*s+1}], v{r1} offset:{s*512}", (tag, s))
            a.lgop(f"ds_read_b64_tr_b16 v[{F+4*s+2}:{F+4*s+3}], v{r2} offset:{s*512}", (tag, s))
    DA, DB = 128, 132
    a.need(lg="k2")
    a("v_add_f32 v25, v25, v26")
    a(f"s_add_u32 s56, s68, 1536")
    a("v_mov_b32 v27, s56")
    a("v_cvt_pk_bf16_f32 v25, v25, v25")
    for s in range(8):
        a.need(lg=[("q", s), ("a", s)])
        ca = "v[20:23]" if s == 0 else f"v[{DA}:{DA+3}]"
        a(f"v_mfma_f32_16x16x32_bf16 v[{DA}:{DA+3}], v[{QF+4*s}:{QF+4*s+3}], v[{AF_+4*s}:{AF_+4*s+3}], {ca}")
        a.need(lg=("b", s))
        cb = "0" if s == 0 else f"v[{DB}:{DB+3}]"
        a(f"v_mfma_f32_16x16x32_bf16 v[{DB}:{DB+3}], v[{QF+4*s}:{QF+4*s+3}], v[{BF_+4*s}:{BF_+4*s+3}], {cb}")
    a.lgop("ds_write_b16 v27, v25", "sw")
    I_, S_, LLp, LL = 0x03020100, 0x05040302, 0x05040100, 0x01000100
    a(f"""
    v_lshlrev_b32 v2, 4, v1            ; 16*lambda
    v_add_u32 v2, s68, v2
    s_lshl_b32 s56, s29, 8             ; 2p*128
    v_add_u32 v3, s56, v2              ; T0 row A
    v_add_u32 v4, 128, v3              ; T0 row B
    v_add_u32 v5, 512, v2              ; E4
    v_add_u32 v6, 384, v2              ; E2
    v_cmp_gt_u32 vcc, 16, v1
    s_cmp_eq_u32 s29, 1
    s_cselect_b64 s[70:71], vcc, 0
    v_cndmask_b32 v6, v5, v6, s[70:71]
    v_cmp_gt_u32 vcc, 8, v1
    v_cndmask_b32 v6, v6, v3, vcc
    v_cndmask_b32 v7, v5, v4, vcc
    s_cselect_b32 s56, 16, 32          ; thrA
    s_mov_b32 s72, {I_}
    s_mov_b32 s73, {S_}
    s_mov_b32 s74, {LLp}
    s_cselect_b32 s69, s74, {LL}
    s_cselect_b32 s76, s73, s72
    v_mov_b32 v8, s72
    v_mov_b32 v9, s76
    v_cndmask_b32 v9, v9, v8, vcc
    v_mov_b32 v10, s74
    v_cmp_gt_u32 vcc, 32, v1
    v_cndmask_b32 v9, v10, v9, vcc     ; selB
    v_cmp_gt_u32 vcc, s56, v1
    v_cndmask_b32 v11, v10, v8, vcc
    v_mov_b32 v12, s69
    v_cndmask_b32 v12, v12, v8, vcc
    """)
    a(f"v_cvt_pk_bf16_f32 v136, v{DA}, v{DA+1}")
    a(f"v_cvt_pk_bf16_f32 v137, v{DA+2}, v{DA+3}")
    a(f"v_cvt_pk_bf16_f32 v138, v{DB}, v{DB+1}")
    a(f"v_cvt_pk_bf16_f32 v139, v{DB+2}, v{DB+3}")
    a.lgop("ds_write_b64 v16, v[136:137]", "sw")
    a.lgop("ds_write_b64 v17, v[138:139]", "sw")

    def gcalc():
        GW = 64
        a.need(vm="g")
        for i in range(4):
            a(f"v_lshlrev_b32 v{GW+2*i}, 16, v{GW0+i}")
            a(f"v_and_b32 v{GW+2*i+1}, 0xffff0000, v{GW0+i}")
        for tk in range(2):
            Xr = 72 + 8 * tk
            for i in range(4):
                a(f"v_lshlrev_b32 v{Xr+2*i}, 16, v{GU+4*tk+i}")
                a(f"v_and_b32 v{Xr+2*i+1}, 0xffff0000, v{GU+4*tk+i}")
            for i in range(8):
                a(f"v_mul_f32 v{Xr+i}, v{Xr+i}, v{GW+i}")
            for i in range(8):
                a(f"v_cvt_pk_bf16_f32 v{Xr+i}, 0, v{Xr+i}")
            for st in (4, 2, 1):
                for i in range(st):
                    a(f"v_add_f32 v{Xr+i}, v{Xr+i}, v{Xr+i+st}")
        dpp_sum2(a, 72, 80)
        a(f"s_mov_b32 s56, {LOG2E | 0x80000000}")
        for tk in range(2):
            a(f"v_cvt_pk_bf16_f32 v{72+8*tk}, 0, v{72+8*tk}")
        for tk in range(2):
            a(f"v_mul_f32 v{72+8*tk}, s56, v{72+8*tk}")
        for tk in range(2):
            a(f"v_exp_f32 v{72+8*tk}, v{72+8*tk}")
        a("s_nop 0")
        for tk in range(2):
            a(f"v_add_f32 v{72+8*tk}, 1.0, v{72+8*tk}")
        for tk in range(2):
            a(f"v_rcp_f32 v{72+8*tk}, v{72+8*tk}")
        a("s_nop 0")
        a("v_cvt_pk_bf16_f32 v88, 0, v72")
        a("v_cvt_pk_bf16_f32 v90, 0, v80")
        a("v_sub_f32 v89, 1.0, v88")
        a("v_sub_f32 v91, 1.0, v90")
        a("v_cvt_pk_bf16_f32 v89, 0, v89")
        a("v_cvt_pk_bf16_f32 v91, 0, v91")
        a("s_lshl_b32 s56, s30, 3")
        a(f"s_add_u32 s56, s56, {WS_G}")
        a("v_mov_b32 v92, s56")
        a("s_lshl_b64 exec, 1, 63")
        a.vmop(f"buffer_store_dwordx4 v[88:91], v92, s[{SWS}:{SWS+3}], 0 offen sc1", "gst")
        a("s_mov_b64 exec, -1")
    gcalc()

    cAT, cZ, cT, cB, cW0, cW1, cR0, cR1, cA0, cA1, cU = 232, 233, 234, 235, 236, 237, 238, 239, 240, 241, 242
    ZR = 244
    t0, t1, t2, t3, tj, tg, tl = 248, 249, 250, 251, 243, 252, 253
    assert KT0 == KT_ROW
    a(f"""
    v_lshlrev_b32 v{tl}, 4, v1                ; lane*16
    s_lshl_b32 s56, s47, 12
    s_lshl_b32 s57, s29, 11
    s_add_u32 s56, s56, s57
    s_add_u32 s56, s56, {WS_AT}
    v_add_u32 v{cAT}, s56, v{tl}
    s_lshl_b32 s56, s31, 2
    s_lshl_b32 s57, s29, 1
    s_add_u32 s56, s56, s57
    s_mul_i32 s56, s56, 1280
    s_add_u32 s77, s56, {UB}
    v_add_u32 v{cU}, s77, v{tl}
    v_bfe_u32 v{t0}, v1, 4, 1
    v_mul_u32_u24 v{t0}, 1280, v{t0}
    v_and_b32 v{tj}, 15, v1                   ; i / j
    v_lshlrev_b32 v{t1}, 4, v{tj}
    v_add3_u32 v{cZ}, v{t0}, v{t1}, s77
    v_mov_b32 v{ZR}, 0
    v_mov_b32 v{ZR+1}, 0
    v_mov_b32 v{ZR+2}, 0
    v_mov_b32 v{ZR+3}, 0
    s_mul_i32 s58, s31, {KT_CH}
    s_mul_i32 s57, s29, {2*KT_ROW}
    s_add_u32 s56, s58, s57
    v_add_u32 v{cT}, s56, v{tl}
    v_lshrrev_b32 v{tg}, 4, v1                ; kg / g
    s_lshl_b32 s57, s29, 1
    s_sub_u32 s57, 4, s57
    v_add_u32 v{t0}, s57, v{tj}
    v_mul_u32_u24 v{t0}, {KT_ROW}, v{t0}
    v_lshlrev_b32 v{t1}, 4, v{tg}
    v_add3_u32 v{cA0}, v{t0}, v{t1}, s58
    v_subrev_u32 v{cA1}, {KT_ROW}, v{cA0}
    v_sub_u32 v{t0}, v{tg}, v{tj}
    v_add_u32 v{t0}, 15, v{t0}
    v_lshlrev_b32 v{t0}, 4, v{t0}
    v_add_u32 v{cB}, s77, v{t0}
    v_and_b32 v{t0}, 3, v{tj}
    v_lshlrev_b32 v{t0}, 1, v{t0}
    v_bfe_u32 v{t1}, v{tj}, 2, 1
    v_or_b32 v{t0}, v{t0}, v{t1}
    v_xor_b32 v{t0}, v{t0}, v{tg}
    v_lshlrev_b32 v{t0}, 4, v{t0}
    v_lshlrev_b32 v{t1}, 7, v{tj}
    s_lshl_b32 s56, s28, 13
    v_add3_u32 v{cW0}, v{t0}, v{t1}, s56
    v_xor_b32 v{cW1}, 64, v{cW0}
    v_lshrrev_b32 v{t0}, 2, v1                ; j
    v_and_b32 v{t1}, 3, v{t0}
    v_lshlrev_b32 v{t1}, 1, v{t1}
    v_bfe_u32 v{t2}, v{t0}, 2, 1
    v_or_b32 v{t1}, v{t1}, v{t2}
    v_and_b32 v{t2}, 3, v1
    v_lshlrev_b32 v{t2}, 1, v{t2}
    v_xor_b32 v{t1}, v{t1}, v{t2}
    v_lshlrev_b32 v{t1}, 4, v{t1}
    v_lshlrev_b32 v{t0}, 7, v{t0}
    s_lshl_b32 s56, s31, 14
    s_lshl_b32 s57, s29, 12
    s_add_u32 s56, s56, s57
    v_add3_u32 v{cR0}, v{t0}, v{t1}, s56
    v_xor_b32 v{cR1}, 16, v{cR0}
    """)
    a.drain(vm=False, lg=True)
    a("s_barrier")
    if tim: tim(a, 5)
    XA, XB = 32, 40
    a.lgop(f"ds_read_b128 v[{XA}:{XA+3}], v6", "xa")
    a.lgop(f"ds_read_b32 v{XA+4}, v6 offset:16", "xa")
    a.lgop(f"ds_read_b128 v[{XB}:{XB+3}], v7", "xb")
    a.lgop(f"ds_read_b32 v{XB+4}, v7 offset:16", "xb")
    a.lgop(f"ds_write_b128 v{cZ}, v[{ZR}:{ZR+3}] offset:1024", "z")
    R0, R1 = 46, 52
    OA, OB = R0 + 2, R1 + 2
    T = 64
    for i, R, XX in ((0, R0, XA), (1, R1, XB)):
        a.need(lg="xa" if i == 0 else "xb")
        for j in range(4):
            sel = (12 if j % 2 == 0 else 11) if i == 0 else 9
            a(f"v_perm_b32 v{R+2+j}, v{XX+j+1}, v{XX+j}, v{sel}")
        a("s_nop 1")
        a(f"v_mov_b32_dpp v{R}, v{R+4} wave_shr:1 row_mask:0xf bank_mask:0xf bound_ctrl:1")
        a(f"v_mov_b32_dpp v{R+1}, v{R+5} wave_shr:1 row_mask:0xf bank_mask:0xf bound_ctrl:1")
        tb = T + 12 * i
        def off(m): return (4 * m + 16 + i) * KT_ROW
        a.lgop(f"ds_write_b128 v{cT}, v[{R+2}:{R+5}] offset:{off(0)}", "t")
        for j in range(4):
            a(f"v_alignbit_b32 v{tb+j}, v{R+2+j}, v{R+1+j}, 16")
        a.lgop(f"ds_write_b128 v{cT}, v[{tb}:{tb+3}] offset:{off(-1)}", "t")
        for j in range(4):
            a(f"v_mov_b32 v{tb+4+j}, v{R+1+j}")
        a.lgop(f"ds_write_b128 v{cT}, v[{tb+4}:{tb+7}] offset:{off(-2)}", "t")
        for j in range(4):
            a(f"v_alignbit_b32 v{tb+8+j}, v{R+1+j}, v{R+j}, 16")
        a.lgop(f"ds_write_b128 v{cT}, v[{tb+8}:{tb+11}] offset:{off(-3)}", "t")
        a.lgop(f"ds_write_b128 v{cT}, v[{R}:{R+3}] offset:{off(-4)}", "t")
    a.need(vm="u")
    a.lgop(f"ds_write_b128 v{cU}, v[{UR}:{UR+3}]", "uw")
    a.lgop(f"ds_write_b128 v{cU}, v[{UR+4}:{UR+7}] offset:1280", "uw")
    a.drain(vm=False, lg=True)
    a("s_barrier")
    if tim: tim(a, 6)
    prio = X_get(X, "cprio", 1)
    if prio: a(f"s_setprio {prio}")
    D = 4; NB = D + 1
    ACC = lambda eta, z: 32 + (eta * 2 + z) * 4
    AF = lambda e, w: 64 + 64 * e + 4 * w
    BF = lambda b: 192 + 6 * b
    NS = 32
    def rd(s):
        e, st = s >> 4, s & 15
        b = BF(s % NB)
        a.lgop(f"ds_read_b128 v[{AF(e,st)}:{AF(e,st)+3}], v{cA0+e} offset:{64*st}", ("A", s))
        o = st * 64 + e * 1280
        a.lgop(f"ds_read_b128 v[{b}:{b+3}], v{cB} offset:{o}", ("B", s))
        a.lgop(f"ds_read_b64 v[{b+4}:{b+5}], v{cB} offset:{o+16}", ("B", s))
    for s in range(D): rd(s)
    first = set()
    for s in range(NS):
        e, st = s >> 4, s & 15
        v = 12 - st
        b = BF(s % NB)
        a.need(lg=[("A", s), ("B", s)])
        n = 0
        for eta in (3, 2, 1, 0):
            w = 4 * eta - v
            if not (0 <= w <= 15): continue
            for z in (1, 0):
                d = ACC(eta, z)
                c = f"v[{d}:{d+3}]" if (eta, z) in first else "0"
                first.add((eta, z))
                bo = b if z == 1 else b + 2
                a(f"v_mfma_f32_16x16x32_bf16 v[{d}:{d+3}], v[{AF(e,w)}:{AF(e,w)+3}], v[{bo}:{bo+3}], {c}")
                n += 1
                if n == 1 and s + D < NS:
                    rd(s + D)
    if prio: a("s_setprio 0")
    a("s_barrier")
    for eta in (3, 2, 1, 0):
        for z in (1, 0):
            d = ACC(eta, z)
            a.lgop(f"ds_write_b128 v{cW0+z}, v[{d}:{d+3}] offset:{eta*2048}", "rw")
    a.drain(vm=False, lg=True)
    a("s_barrier")
    XR = 64
    for n in range(2):
        for s in range(2):
            for h in range(2):
                r = XR + n * 16 + s * 8 + h * 4
                a.lgop(f"ds_read_b128 v[{r}:{r+3}], v{cR0+h} offset:{s*8192 + n*2048}", ("r", n))
    for n in range(2):
        a.need(lg=("r", n))
        r = XR + n * 16
        for k in range(8):
            a(f"v_add_f32 v{r+k}, v{r+k}, v{r+8+k}")
        for k in range(4):
            a(f"v_cvt_pk_bf16_f32 v{r+8+k}, v{r+2*k}, v{r+2*k+1}")
        a.vmop(f"buffer_store_dwordx4 v[{r+8}:{r+11}], v{cAT}, s[{SWS}:{SWS+3}], 0 offen offset:{n*1024} sc1", "st")
    a.drain(vm=True, lg=False)
    a("s_barrier")
    lbl = a.newlabel("CVdone")
    a(f"s_cmp_lg_u32 s28, 0\ns_cbranch_scc1 {lbl}")
    a(f"s_lshl_b32 s56, s3, 7\ns_add_u32 s56, s56, {WS_F3}")
    a(f"v_mov_b32 v2, s56\nv_mov_b32 v4, s{NON}\nv_mov_b32 v5, s{NON+1}")
    a("s_mov_b64 exec, 1")
    a(f"buffer_store_dwordx2 v[4:5], v2, s[{SWS}:{SWS+3}], 0 offen sc1")
    a("s_mov_b64 exec, -1")
    a(f"{lbl}:")
```

```python
import sys
sys.path.insert(0, "dev")
from gen import *

WS_F3 = 0x588000
WS_FH = 0x590000
WS_F1 = 0x5B0000
SPIN = 0x2000
NON = 42

def spin_wait(a, name, vaddr, vdat, srd, mask_s, non, first_issued_tag=None, cnt=70):
    ok = a.newlabel(name + "ok"); sp = a.newlabel(name + "sp")
    if first_issued_tag is not None:
        a.need(vm=first_issued_tag)
        a(f"s_mov_b64 exec, s[{mask_s}:{mask_s+1}]")
        a(f"v_cmp_ne_u64 vcc, s[{non}:{non+1}], v[{vdat}:{vdat+1}]")
        a("s_mov_b64 exec, -1")
        a(f"s_cbranch_vccz {ok}")
    a(f"s_mov_b32 s{cnt}, {SPIN}")
    a(f"{sp}:")
    a(f"s_mov_b64 exec, s[{mask_s}:{mask_s+1}]")
    a(f"buffer_load_dwordx2 v[{vdat}:{vdat+1}], v{vaddr}, s[{srd}:{srd+3}], 0 offen sc1")
    a(f"s_sub_u32 s{cnt}, s{cnt}, 1")
    a("s_waitcnt vmcnt(0)")
    a(f"v_cmp_ne_u64 vcc, s[{non}:{non+1}], v[{vdat}:{vdat+1}]")
    a("s_mov_b64 exec, -1")
    a(f"s_cbranch_vccz {ok}")
    a(f"s_cmp_lg_u32 s{cnt}, 0")
    a(f"s_cbranch_scc1 {sp}")
    a(f"{ok}:")

def nonce_get(a, name, vdat, non, dbg, vz, first_issued_tag=None, cnt=70):
    ok = a.newlabel(name + "ok"); sp = a.newlabel(name + "sp")
    if first_issued_tag is not None:
        a.need(vm=first_issued_tag)
        a(f"v_readfirstlane_b32 s{non}, v{vdat}")
        a(f"v_readfirstlane_b32 s{non+1}, v{vdat+1}")
        a(f"s_cmp_lg_u32 s{non}, 0")
        a(f"s_cbranch_scc1 {ok}")
    a(f"s_mov_b32 s{cnt}, {SPIN}")
    a(f"{sp}:")
    a(f"global_load_dwordx2 v[{vdat}:{vdat+1}], v{vz}, s[{dbg}:{dbg+1}] sc1")
    a(f"s_sub_u32 s{cnt}, s{cnt}, 1")
    a("s_waitcnt vmcnt(0)")
    a(f"v_readfirstlane_b32 s{non}, v{vdat}")
    a(f"v_readfirstlane_b32 s{non+1}, v{vdat+1}")
    a(f"s_cmp_lg_u32 s{non}, 0")
    a(f"s_cbranch_scc1 {ok}")
    a(f"s_cmp_lg_u32 s{cnt}, 0")
    a(f"s_cbranch_scc1 {sp}")
    a(f"{ok}:")

def prole(a, tim=None, X=()):
    ACC = lambda mat, j: 64 + (2 * j + mat) * 16
    WF = lambda mat, j: 160 + (2 * j + mat) * 4
    XF = lambda b, s: 184 + b * 16 + s * 4
    SX, SW, SH, SWS, SO = 12, 16, 20, 48, 52
    DBG, OUT = 46, 44
    XBASE = 49152
    AW0, AH0, AW1, AH1 = 40, 41, 42, 43
    AF3, AAT, AG, AST, ATR, AOUT, AL16, AFH, AF1, AFHP, VZ = 44, 45, 46, 47, 48, 49, 50, 51, 52, 58, 59
    PV, GV, AT0 = 54, 56, 60
    lbl_idle = a.newlabel("Pidle")
    a("""
    s_load_dwordx2 s[4:5], s[0:1], 0
    s_load_dwordx2 s[6:7], s[0:1], 80
    s_load_dwordx2 s[8:9], s[0:1], 88
    s_load_dwordx4 s[44:47], s[0:1], 112
    s_load_dwordx2 s[10:11], s[0:1], 128
    s_and_b32 s30, s2, 7
    s_lshr_b32 s31, s2, 3
    s_lshr_b32 s26, s30, 1
    s_lshl_b32 s26, s26, 2
    s_and_b32 s32, s31, 3
    s_add_u32 s26, s26, s32
    s_and_b32 s25, s30, 1
    s_lshl_b32 s25, s25, 3
    s_lshr_b32 s32, s31, 2
    s_add_u32 s25, s25, s32
    v_lshrrev_b32 v12, 6, v0
    v_and_b32 v13, 63, v0
    s_mov_b32 s29, 0
    v_readfirstlane_b32 s24, v12
    """)
    lb = a.newlabel("M2")
    a(f"s_lshr_b32 s32, s31, 2\ns_cmp_lg_u32 s32, 7\ns_cbranch_scc1 {lb}")
    a(f"s_bfe_u32 s29, s31, 0x10001")
    a(f"s_and_b32 s32, s30, 1\ns_lshl_b32 s32, s32, 1\ns_add_u32 s26, s26, s32\ns_mov_b32 s25, 7")
    a(f"{lb}:")
    a("s_and_b32 s30, s24, 1\ns_mul_i32 s30, s30, 192")
    a("s_mul_i32 s31, s25, 192")
    a("s_mov_b32 s33, 2752\ns_mov_b32 s34, 0xaaab")
    a("s_cmp_eq_u32 s25, 14\ns_cselect_b32 s37, 64, 0x10000\nv_mov_b32 v17, 0x8000000")
    for k in range(3):
        a(f"v_add_u32 v14, s30, v13")
        if k: a(f"v_add_u32 v14, {64*k}, v14")
        a("v_mul_lo_u32 v15, v14, s34\nv_lshrrev_b32 v15, 19, v15")
        a("v_mul_u32_u24 v16, 12, v15\nv_sub_u32 v16, v14, v16\nv_lshlrev_b32 v16, 4, v16")
        a("v_mul_lo_u32 v15, v15, s33\nv_add_u32 v15, v15, v16")
        a(f"v_add_u32 v{6+k}, s31, v15")
        if k: a(f"v_subrev_u32 v{6+k}, {1024*k}, v{6+k}")
        a(f"v_cmp_le_u32 vcc, s37, v16\nv_cndmask_b32 v{6+k}, v{6+k}, v17, vcc")
    a("s_lshl_b32 s30, s26, 7\ns_lshl_b32 s31, s24, 5\ns_add_u32 s30, s30, s31\ns_lshl_b32 s30, s30, 10")
    a("""
    v_lshrrev_b32 v14, 3, v13
    v_lshlrev_b32 v14, 10, v14
    v_add_u32 v14, s30, v14
    v_lshrrev_b32 v15, 4, v13
    v_and_b32 v16, 7, v13
    v_xor_b32 v17, v16, v15
    v_lshlrev_b32 v17, 4, v17
    v_add_u32 v9, v14, v17
    v_or_b32 v15, 4, v15
    v_xor_b32 v17, v16, v15
    v_lshlrev_b32 v17, 4, v17
    v_add_u32 v10, v14, v17
    v_add_u32 v10, 7168, v10
    """)
    a("s_mul_i32 s35, s24, 3072")
    a(f"s_lshl_b32 s36, s24, 12\ns_add_u32 s36, s36, {XBASE}")
    a("s_memrealtime s[42:43]")
    a("s_waitcnt lgkmcnt(0)")
    srd_from(a, SX, 4, 5, 2048 * 1024)
    a("s_cmp_ge_u32 s24, 2\ns_cselect_b32 s6, s8, s6\ns_cselect_b32 s7, s9, s7")
    srd_from(a, SW, 6, 7, 512 * 2752)

    def dma_w(u, k):
        if k == 0:
            a(f"s_add_u32 m0, s35, {(u % 4) * 12288}")
            a(f"s_mov_b32 s27, {u * 88064}")
        a.vmop(f"buffer_load_dwordx4 v{6+k}, s[{SW}:{SW+3}], s27 offen offset:{1024*k} lds", ("W", u))
    def dma_x(c, k):
        if k == 0:
            a(f"s_add_u32 m0, s36, {(c & 1) * 16384}")
            a(f"s_mov_b32 s28, {c * 128}")
        if k == 2:
            a(f"s_mov_b32 s28, {c * 128 + 14336}")
            a("s_nop 0")
        a.vmop(f"buffer_load_dwordx4 v{9+(k&1)}, s[{SX}:{SX+3}], s28 offen offset:{1024*k} lds", ("X", c))
    def rd_w(S, jj):
        u, sp = S >> 1, S & 1
        mat, j = jj & 1, jj >> 1
        base = (u % 4) * 12288 + mat * 6144 + 16 * sp * 192 + j * 64
        r = WF(mat, j)
        a.lgop(f"ds_read_b64_tr_b16 v[{r}:{r+1}], v1 offset:{base}", ("w", S, jj))
        a.lgop(f"ds_read_b64_tr_b16 v[{r+2}:{r+3}], v1 offset:{base + 4*192}", ("w", S, jj))
    def rd_x(c, s):
        r = XF(c & 1, s)
        a.lgop(f"ds_read_b128 v[{r}:{r+3}], v{2+s} offset:{(c & 1) * 16384}", ("x", c, s))

    lbl_nold = a.newlabel("Pnold")
    a(f"s_cmp_lg_u32 s29, 0\ns_cbranch_scc1 {lbl_nold}")
    for k in range(4): dma_x(0, k)
    for k in range(3): dma_w(0, k)
    for k in range(3): dma_w(1, k)
    for k in range(4): dma_x(1, k)
    for k in range(3): dma_w(2, k)
    a(f"{lbl_nold}:")
    lbl_nn = a.newlabel("Pnn")
    if "en" in X: a(f"s_branch {lbl_nn}")
    a(f"s_cmp_lg_u32 s2, 240\ns_cbranch_scc1 {lbl_nn}")
    a(f"s_cmp_lg_u32 s24, 0\ns_cbranch_scc1 {lbl_nn}")
    a(f"s_or_b32 s42, s42, 1\nv_mov_b32 v14, s42\nv_mov_b32 v15, s43\nv_mov_b32 v16, 0\ns_mov_b64 exec, 1")
    a(f"global_store_dwordx2 v16, v[14:15], s[{DBG}:{DBG+1}] sc1")
    a("s_mov_b64 exec, -1")
    a(f"{lbl_nn}:")
    srd_from(a, SH, 10, 11, H_SIZE, WS_H)
    srd_from(a, SWS, 10, 11, WS_END)
    srd_from(a, SO, OUT, OUT + 1, 2048 * 1024)
    a("""
    v_lshrrev_b32 v14, 5, v13
    v_lshlrev_b32 v14, 3, v14
    v_bfe_u32 v15, v13, 2, 2
    v_add_u32 v14, v14, v15
    v_mul_u32_u24 v14, 192, v14
    v_bfe_u32 v15, v13, 4, 1
    v_lshlrev_b32 v15, 5, v15
    v_and_b32 v16, 3, v13
    v_lshlrev_b32 v16, 3, v16
    v_add3_u32 v1, v14, v15, v16
    """)
    a("""
    v_and_b32 v14, 31, v13
    v_bfe_u32 v15, v13, 1, 3
    v_lshrrev_b32 v16, 5, v13
    v_xor_b32 v15, v15, v16
    v_lshlrev_b32 v14, 7, v14
    """)
    a(f"s_lshl_b32 s30, s24, 12\ns_add_u32 s30, s30, {XBASE}\nv_add_u32 v14, s30, v14")
    for s in range(4):
        a(f"v_xor_b32 v16, {2*s}, v15\nv_lshlrev_b32 v16, 4, v16\nv_add_u32 v{2+s}, v14, v16")
    a("s_lshl_b32 s30, s26, 2\ns_add_u32 s30, s30, s24\ns_mul_i32 s31, s30, 86\ns_mul_i32 s32, s25, 6\ns_add_u32 s31, s31, s32\ns_lshl_b32 s31, s31, 10")
    a(f"v_lshlrev_b32 v{AL16}, 4, v13\nv_add_u32 v11, s31, v{AL16}")
    a(f"s_lshl_b32 s30, s30, 4\ns_add_u32 s30, s30, s25\ns_lshl_b32 s30, s30, 7\ns_add_u32 s30, s30, {WS_FH}\nv_mov_b32 v{AFHP}, s30\nv_mov_b32 v{VZ}, 0")

    a("""
    s_and_b32 s30, s2, 7
    s_lshr_b32 s31, s2, 3
    s_lshl_b32 s56, s30, 3
    s_and_b32 s57, s31, 3
    s_lshl_b32 s57, s57, 1
    s_add_u32 s38, s56, s57                   ; tb0
    s_lshr_b32 s39, s31, 2                    ; group
    s_lshl_b32 s40, s39, 1                    ; cb0
    s_mul_i32 s56, s24, 22
    s_cmp_eq_u32 s24, 3
    s_cselect_b32 s57, 1, 0
    s_sub_u32 s41, s56, s57                   ; ks0
    s_and_b32 s57, s24, 1
    s_lshr_b32 s58, s24, 1
    s_add_u32 s60, s40, s57
    s_add_u32 s61, s38, s58
    s_xor_b32 s62, s60, 1
    s_xor_b32 s63, s61, 1
    """)
    for (dst, blk, base) in ((AW0, 60, WS_WF), (AH0, 61, WS_H), (AW1, 62, WS_WF), (AH1, 63, WS_H)):
        a(f"s_mul_i32 s57, s{blk}, 86\ns_add_u32 s57, s57, s41\ns_lshl_b32 s57, s57, 10")
        if base: a(f"s_add_u32 s57, s57, {base}")
        a(f"v_add_u32 v{dst}, s57, v{AL16}")
    a(f"s_mov_b32 s59, {5*4096}\ns_cmp_ge_u32 s24, 2\ns_cselect_b32 s59, 0x10000000, s59")
    a(f"""
    v_add_u32 v14, s41, v13
    v_lshlrev_b32 v14, 3, v14
    v_add_u32 v14, s39, v14
    v_lshrrev_b32 v15, 2, v14
    v_lshlrev_b32 v15, 7, v15
    v_and_b32 v14, 3, v14
    v_lshlrev_b32 v14, 3, v14
    s_mov_b32 s56, {WS_F1}
    v_add3_u32 v{AF1}, v14, v15, s56
    s_cmp_ge_u32 s24, 2
    s_mov_b32 s72, 0x3fffff
    s_cselect_b32 s72, 0x1fffff, s72
    s_mov_b32 s73, 0
    """)
    a(f"""
    s_lshr_b32 s56, s24, 1
    s_mul_i32 s56, s56, 7
    s_and_b32 s57, s24, 1
    s_mul_i32 s58, s57, 3
    s_add_u32 s56, s56, s58                   ; ct0
    s_cmp_eq_u32 s57, 1
    s_mov_b32 s74, 0xff
    s_cselect_b32 s74, 0x3ff, s74
    s_mov_b32 s75, 0
    s_lshl_b32 s57, s38, 4
    s_add_u32 s56, s56, s57
    s_lshl_b32 s56, s56, 7
    s_add_u32 s56, s56, {WS_FH}
    v_and_b32 v14, 1, v13
    v_lshlrev_b32 v14, 11, v14
    v_lshrrev_b32 v15, 1, v13
    v_lshlrev_b32 v15, 7, v15
    v_add3_u32 v{AFH}, v14, v15, s56
    """)
    a(f"""
    s_lshl_b32 s56, s39, 5
    s_lshl_b32 s57, s38, 2
    s_sub_u32 s57, s57, 32
    v_cmp_gt_u32 vcc, 32, v13
    v_mov_b32 v14, s57
    v_mov_b32 v15, s56
    v_cndmask_b32 v14, v14, v15, vcc
    v_add_u32 v14, v14, v13
    v_lshlrev_b32 v14, 7, v14
    v_add_u32 v{AF3}, {WS_F3}, v14
    s_mov_b32 s76, -1
    s_mov_b32 s77, 0xff
    """)
    a(f"""
    s_lshl_b32 s56, s60, 17
    s_lshl_b32 s57, s61, 6
    s_add_u32 s56, s56, s57
    s_add_u32 s56, s56, {WS_AT}
    v_lshrrev_b32 v14, 2, v13
    v_lshlrev_b32 v14, 12, v14
    v_and_b32 v15, 3, v13
    v_lshlrev_b32 v16, 4, v15
    v_add3_u32 v{AAT}, v14, v16, s56
    v_and_b32 v17, 31, v13                    ; token in tile
    s_lshl_b32 s56, s61, 8
    s_add_u32 s56, s56, {WS_G}
    v_lshlrev_b32 v14, 3, v17
    v_add_u32 v{AG}, s56, v14
    """)
    G2_ST = 49152
    a(f"""
    s_lshl_b32 s56, s24, 11
    s_add_u32 s56, s56, {G2_ST}
    v_add_u32 v{AST}, s56, v{AL16}
    v_lshrrev_b32 v14, 5, v13
    v_lshlrev_b32 v14, 2, v14
    v_bfe_u32 v16, v13, 2, 2
    v_add_u32 v14, v14, v16
    v_lshlrev_b32 v14, 6, v14
    v_bfe_u32 v16, v13, 4, 1
    v_lshlrev_b32 v16, 5, v16
    v_lshlrev_b32 v15, 3, v15
    v_add3_u32 v14, v14, v16, v15
    v_add_u32 v{ATR}, s56, v14
    s_lshl_b32 s56, s61, 15
    s_lshl_b32 s57, s60, 6
    s_add_u32 s56, s56, s57
    v_lshlrev_b32 v14, 10, v17
    v_lshrrev_b32 v15, 5, v13
    v_lshlrev_b32 v15, 4, v15
    v_add3_u32 v{AOUT}, v14, v15, s56
    """)
    for i in (1, 2, 3):
        a(f"s_xor_b32 s56, s24, {i}\ns_mul_i32 s56, s56, 12288\ns_add_u32 s{65+i}, s56, {(i-1)*4096}")
    a("s_mul_i32 s69, s24, 12288")
    a(f"s_cmp_lg_u32 s29, 0\ns_cbranch_scc1 {lbl_idle}")

    if tim: tim(a, 1)
    a.need(vm=[("W", 0), ("X", 0)])
    a("s_barrier")
    if tim: tim(a, 2)
    for s in range(4): rd_x(0, s)
    for jj in range(6): rd_w(0, jj)
    a("s_setprio 2")
    NU, FU = X_get(X, "nu", 9), X_get(X, "fu", 12)
    for u in range(16):
        c, hb = u >> 1, u & 1
        for sp in range(2):
            S = 2 * u + sp
            sx = S & 3
            for jj in range(6):
                mat, j = jj & 1, jj >> 1
                lg = [("w", S, jj)]
                if jj == 0: lg.append(("x", c, sx))
                a.need(lg=lg)
                d = ACC(mat, j)
                src_c = "0" if S == 0 else f"v[{d}:{d+15}]"
                a(f"v_mfma_f32_32x32x16_bf16 v[{d}:{d+15}], v[{WF(mat,j)}:{WF(mat,j)+3}], v[{XF(c&1,sx)}:{XF(c&1,sx)+3}], {src_c}")
                if sp == 1 and jj == 0 and u < 15:
                    a.need(vm=("W", u + 1))
                    a("s_barrier")
                if S + 1 < 32: rd_w(S + 1, jj)
                if sp == 0 and jj in (1, 3, 5) and u + 3 < 16:
                    dma_w(u + 3, jj >> 1)
                if hb == 0 and sp == 1 and jj in (1, 2, 3, 4) and c + 2 < 8:
                    if jj == 1:
                        a.need(lg=("x", c, 3))
                    dma_x(c + 2, jj - 1)
                if hb == 1 and sp == 0 and jj in (0, 2, 4) and c + 1 < 8:
                    if jj == 0: a.need(vm=("X", c + 1))
                    if jj == 0: rd_x(c + 1, 0); rd_x(c + 1, 1)
                    if jj == 2: rd_x(c + 1, 2)
                    if jj == 4: rd_x(c + 1, 3)
                if u == NU and sp == 1 and jj == 5:
                    a.vmop(f"global_load_dwordx2 v[{PV}:{PV+1}], v{VZ}, s[{DBG}:{DBG+1}] sc1", "non")
                if u == NU + 2 and sp == 1 and jj == 5:
                    nonce_get(a, "Pn", PV, NON, DBG, VZ, "non")
                if u == FU and sp == 1 and jj == 5:
                    a("s_mov_b64 exec, s[72:73]")
                    a.vmop(f"buffer_load_dwordx2 v[{PV}:{PV+1}], v{AF1}, s[{SWS}:{SWS+3}], 0 offen sc1", "f1")
                    a("s_mov_b64 exec, -1")
    if tim: tim(a, 3)
    spin_wait(a, "Pf1", AF1, PV, SWS, 72, NON, "f1")
    lbl_done = a.newlabel("G1done")
    a("s_nop 7\ns_nop 3")
    for j in range(3):
        if j == 1:
            a(f"s_cmp_eq_u32 s25, 14\ns_cbranch_scc1 {lbl_done}")
        g, up = ACC(0, j), ACC(1, j)
        T = 16
        for r in range(16):
            a(f"v_max_f32 v{g+r}, 0, v{g+r}")
        for r in range(16):
            a(f"v_cvt_pk_bf16_f32 v{g+r}, 0, v{g+r}")
            a(f"v_cvt_pk_bf16_f32 v{up+r}, 0, v{up+r}")
        for r in range(16):
            a(f"v_mul_f32 v{g+r}, v{g+r}, v{up+r}")
        for r in range(8):
            a(f"v_cvt_pk_bf16_f32 v{T+8*j+r}, v{g+2*r}, v{g+2*r+1}")
        for p in range(2):
            n = T + 8 * j + 4 * p
            a("s_nop 0")
            a(f"v_permlane32_swap_b32 v{n}, v{n+2}")
            a(f"v_permlane32_swap_b32 v{n+1}, v{n+3}")
            a("s_nop 0")
            off = (2 * j + p) * 1024
            so = "0"
            if off > 4095:
                a(f"s_mov_b32 s30, {off}"); so = "s30"; off = 0
            a.vmop(f"buffer_store_dwordx4 v[{n}:{n+3}], v11, s[{SH}:{SH+3}], {so} offen offset:{off} sc1", ("st",))
    a(f"{lbl_done}:")

    PF = 8
    ACC2 = lambda i: 64 + 16 * i
    FR = lambda b, k: 128 + (b * 4 + k) * 4
    cur = [None]
    def ld(s, k):
        so = (s >> 2) * 4096
        if s == 21:
            sreg = "s59"
        elif so == 0:
            sreg = "0"
        else:
            if cur[0] != so:
                a(f"s_mov_b32 s64, {so}"); cur[0] = so
            sreg = "s64"
        r = FR(s % PF, k)
        a.vmop(f"buffer_load_dwordx4 v[{r}:{r+3}], v{40+k}, s[{SWS}:{SWS+3}], {sreg} offen offset:{(s&3)*1024} sc1", ("f", s, k))
    lbl_j = a.newlabel("Pjoin")
    for s in range(PF):
        ld(s, 0); ld(s, 2)
    a(f"s_waitcnt vmcnt({2*PF})")
    a(f"v_mov_b32 v{PV}, s{NON}\nv_mov_b32 v{PV+1}, s{NON+1}\ns_mov_b64 exec, 1")
    a.vmop(f"buffer_store_dwordx2 v[{PV}:{PV+1}], v{AFHP}, s[{SWS}:{SWS+3}], 0 offen sc1", "fh")
    a("s_mov_b64 exec, -1")
    a(f"s_branch {lbl_j}")
    a(f"{lbl_idle}:")
    sv = (list(a.vm), a.vmdone, list(a.lg), a.lgdone)
    nonce_get(a, "Pi", PV, NON, DBG, VZ)
    spin_wait(a, "Pi1", AF1, PV, SWS, 72, NON)
    cur[0] = None
    for s in range(PF):
        ld(s, 0); ld(s, 2)
    a.vm, a.vmdone, a.lg, a.lgdone = sv
    cur[0] = None
    a(f"{lbl_j}:")
    if tim: tim(a, 4)
    a("s_setprio 2")
    spin_wait(a, "Pfh", AFH, PV, SWS, 74, NON)
    a.vmdone = len(a.vm)
    if tim: tim(a, 5)
    for s in range(PF):
        ld(s, 1); ld(s, 3)
    poll_at, chk_at = X_get(X, "pa", 14), X_get(X, "ca", 19)
    ATB = 16
    for s in range(22):
        b = s % PF
        W0, H0, W1, H1 = (FR(b, k) for k in range(4))
        nxt = s + PF < 22
        def mf(i, W, H):
            d = ACC2(i)
            c = "0" if s == 0 else f"v[{d}:{d+15}]"
            a(f"v_mfma_f32_32x32x16_bf16 v[{d}:{d+15}], v[{W}:{W+3}], v[{H}:{H+3}], {c}")
        if s < PF:
            a.need(vm=[("f", s, 1)]); mf(0, W0, H0); mf(1, W1, H0)
            a.need(vm=[("f", s, 3)]); mf(2, W0, H1)
            mf(3, W1, H1)
            if nxt:
                for k in (1, 3, 0, 2): ld(s + PF, k)
        else:
            a.need(vm=[("f", s, 0), ("f", s, 1), ("f", s, 2), ("f", s, 3)])
            mf(0, W0, H0)
            mf(1, W1, H0)
            mf(2, W0, H1)
            mf(3, W1, H1)
            if nxt:
                for k in (1, 3, 0, 2): ld(s + PF, k)
        if s == poll_at:
            a("s_mov_b64 exec, s[76:77]")
            a.vmop(f"buffer_load_dwordx2 v[{PV}:{PV+1}], v{AF3}, s[{SWS}:{SWS+3}], 0 offen sc1", "poll")
            a("s_mov_b64 exec, -1")
        if s == chk_at:
            if "nof3" not in X: spin_wait(a, "Pf3", AF3, PV, SWS, 76, NON, "poll")
            a.vmop(f"buffer_load_dwordx4 v[{ATB}:{ATB+3}], v{AAT}, s[{SWS}:{SWS+3}], 0 offen sc1", "at")
            a("s_mov_b32 s64, 65536"); cur[0] = 65536
            a.vmop(f"buffer_load_dwordx4 v[{ATB+4}:{ATB+7}], v{AAT}, s[{SWS}:{SWS+3}], s64 offen sc1", "at")
            a.vmop(f"buffer_load_dwordx2 v[{GV}:{GV+1}], v{AG}, s[{SWS}:{SWS+3}], 0 offen sc1", "g")
    if tim: tim(a, 6)
    for i in (1, 2, 3):
        a(f"v_add_u32 v{3+i}, s{65+i}, v{AL16}")
    a(f"v_add_u32 v7, s69, v{AL16}")
    for i in (1, 2, 3):
        for q in range(4):
            r = ACC2(i) + 4 * q
            a.lgop(f"ds_write_b128 v{3+i}, v[{r}:{r+3}] offset:{q*1024}", "rw")
    a.need(vm="at")
    a.lgop(f"ds_write_b128 v{AST}, v[{ATB}:{ATB+3}]", "sa")
    a.lgop(f"ds_write_b128 v{AST}, v[{ATB+4}:{ATB+7}] offset:1024", "sa")
    a.drain(vm=False, lg=True)
    a("s_barrier")
    XR = 128
    for i in range(3):
        for q in range(4):
            r = XR + 16 * i + 4 * q
            a.lgop(f"ds_read_b128 v[{r}:{r+3}], v7 offset:{i*4096 + q*1024}", ("p", i))
    AV = 176
    for q in range(4):
        a.lgop(f"ds_read_b64_tr_b16 v[{AV+2*q}:{AV+2*q+1}], v{ATR} offset:{q*512}", "a")
    A0 = ACC2(0)
    for i in range(3):
        a.need(lg=("p", i))
        for r in range(16):
            a(f"v_add_f32 v{A0+r}, v{A0+r}, v{XR+16*i+r}")
    a.need(lg="a", vm="g")
    U = 184
    for q in range(4):
        for k in range(2):
            a(f"v_lshlrev_b32 v{U+4*q+2*k}, 16, v{AV+2*q+k}")
            a(f"v_and_b32 v{U+4*q+2*k+1}, 0xffff0000, v{AV+2*q+k}")
    for r in range(16):
        a(f"v_cvt_pk_bf16_f32 v{A0+r}, 0, v{A0+r}")
    for r in range(16):
        a(f"v_mul_f32 v{U+r}, v{GV}, v{U+r}")
    for r in range(16):
        a(f"v_mul_f32 v{A0+r}, v{GV+1}, v{A0+r}")
    for r in range(16):
        a(f"v_cvt_pk_bf16_f32 v{U+r}, 0, v{U+r}")
    for r in range(16):
        a(f"v_cvt_pk_bf16_f32 v{A0+r}, 0, v{A0+r}")
    for r in range(16):
        a(f"v_add_f32 v{U+r}, v{U+r}, v{A0+r}")
    P = 200
    for k in range(8):
        a(f"v_cvt_pk_bf16_f32 v{P+k}, v{U+2*k}, v{U+2*k+1}")
    for pr in range(2):
        n = P + 4 * pr
        a(f"v_permlane32_swap_b32 v{n}, v{n+2}")
        a(f"v_permlane32_swap_b32 v{n+1}, v{n+3}")
        a.vmop(f"buffer_store_dwordx4 v[{n}:{n+3}], v{AOUT}, s[{SO}:{SO+3}], 0 offen offset:{pr*32}", "st")

def X_get(X, key, default):
    for x in X:
        if x.startswith(key + "="): return int(x.split("=")[1])
    return default
```

```python
import sys, os
sys.path.insert(0, "dev")
from asmlib import *
from sched import Em

WS_H   = 0x000000
H_SIZE = 64 * 86 * 1024
WS_G   = 0x580000
G_SIZE = 2048 * 8
WS_UT  = 0x600000
UT_SIZE = 2 << 20
WS_KP  = 0x800000
KP_SIZE = 2 << 20
WS_WF  = 0xA00000
WF_SIZE = 16 * 86 * 1024
WS_AT  = 0xC00000
AT_SIZE = 2 << 20
WS_END = 0xE00000

TIMING = int(os.environ.get("TIMING", "0"))

def srd_from(a, dst, lo, hi, nbytes, off=0):
    if off:
        a(f"s_add_u32 s{dst}, s{lo}, {off}")
        a(f"s_addc_u32 s{dst+1}, s{hi}, 0")
    else:
        a(f"s_mov_b32 s{dst}, s{lo}")
        a(f"s_mov_b32 s{dst+1}, s{hi}")
    a(f"s_mov_b32 s{dst+2}, {nbytes}")
    a(f"s_mov_b32 s{dst+3}, 0x00020000")

def gemm1(a, lbl_exit, tim=None, X=()):
    ACC = lambda mat, j: 64 + (2 * j + mat) * 16
    WF = lambda mat, j: 160 + (2 * j + mat) * 4
    XF = lambda b, s: 184 + b * 16 + s * 4
    SX, SW, SH = 12, 16, 20
    XBASE = 49152
    a("""
    s_load_dwordx2 s[4:5], s[0:1], 0
    s_load_dwordx2 s[6:7], s[0:1], 80
    s_load_dwordx2 s[8:9], s[0:1], 88
    s_load_dwordx2 s[10:11], s[0:1], 128
    s_and_b32 s30, s2, 7
    s_lshr_b32 s31, s2, 3
    s_lshr_b32 s26, s30, 1
    s_lshl_b32 s26, s26, 2
    s_and_b32 s32, s31, 3
    s_add_u32 s26, s26, s32
    s_and_b32 s25, s30, 1
    s_lshl_b32 s25, s25, 3
    s_lshr_b32 s32, s31, 2
    s_add_u32 s25, s25, s32
    """)
    if "M1" in X:
        a("s_lshl_b32 s26, s30, 1\ns_and_b32 s32, s31, 1\ns_add_u32 s26, s26, s32\ns_lshr_b32 s25, s31, 1")
    if "M2" in X:
        lb = a.newlabel("M2")
        a(f"s_lshr_b32 s32, s31, 2\ns_cmp_lg_u32 s32, 7\ns_cbranch_scc1 {lb}")
        a(f"s_and_b32 s32, s31, 2\ns_cmp_lg_u32 s32, 0\ns_cbranch_scc1 {lbl_exit}")
        a(f"s_and_b32 s32, s30, 1\ns_lshl_b32 s32, s32, 1\ns_add_u32 s26, s26, s32\ns_mov_b32 s25, 7")
        a(f"{lb}:")
    a("s_cmp_eq_u32 s25, 15")
    a(f"s_cbranch_scc1 {lbl_exit}")
    a("""
    v_lshrrev_b32 v12, 6, v0
    v_and_b32 v13, 63, v0
    s_nop 0
    v_readfirstlane_b32 s24, v12
    """)
    a("s_and_b32 s30, s24, 1\ns_mul_i32 s30, s30, 192")
    a("s_mul_i32 s31, s25, 192")
    a("s_mov_b32 s33, 2752\ns_mov_b32 s34, 0xaaab")
    for k in range(3):
        a(f"v_add_u32 v14, s30, v13")
        if k: a(f"v_add_u32 v14, {64*k}, v14")
        a("v_mul_lo_u32 v15, v14, s34\nv_lshrrev_b32 v15, 19, v15")
        a("v_mul_u32_u24 v16, 12, v15\nv_sub_u32 v16, v14, v16\nv_lshlrev_b32 v16, 4, v16")
        a("v_mul_lo_u32 v15, v15, s33\nv_add_u32 v15, v15, v16")
        a(f"v_add_u32 v{6+k}, s31, v15")
        if k: a(f"v_subrev_u32 v{6+k}, {1024*k}, v{6+k}")
        if "mask" in X:
            a(f"s_cmp_eq_u32 s25, 14\ns_cselect_b32 s37, 64, 0x10000\nv_cmp_le_u32 vcc, s37, v16\nv_mov_b32 v17, 0x8000000\nv_cndmask_b32 v{6+k}, v{6+k}, v17, vcc")
    a("s_lshl_b32 s30, s26, 7\ns_lshl_b32 s31, s24, 5\ns_add_u32 s30, s30, s31\ns_lshl_b32 s30, s30, 10")
    a("""
    v_lshrrev_b32 v14, 3, v13
    v_lshlrev_b32 v14, 10, v14
    v_add_u32 v14, s30, v14
    v_lshrrev_b32 v15, 4, v13
    v_and_b32 v16, 7, v13
    v_xor_b32 v17, v16, v15
    v_lshlrev_b32 v17, 4, v17
    v_add_u32 v9, v14, v17
    v_or_b32 v15, 4, v15
    v_xor_b32 v17, v16, v15
    v_lshlrev_b32 v17, 4, v17
    v_add_u32 v10, v14, v17
    v_add_u32 v10, 7168, v10
    """)
    a("""
    v_lshrrev_b32 v14, 5, v13
    v_lshlrev_b32 v14, 3, v14
    v_bfe_u32 v15, v13, 2, 2
    v_add_u32 v14, v14, v15
    v_mul_u32_u24 v14, 192, v14
    v_bfe_u32 v15, v13, 4, 1
    v_lshlrev_b32 v15, 5, v15
    v_and_b32 v16, 3, v13
    v_lshlrev_b32 v16, 3, v16
    v_add3_u32 v1, v14, v15, v16
    """)
    a("""
    v_and_b32 v14, 31, v13
    v_bfe_u32 v15, v13, 1, 3
    v_lshrrev_b32 v16, 5, v13
    v_xor_b32 v15, v15, v16
    v_lshlrev_b32 v14, 7, v14
    """)
    a(f"s_lshl_b32 s30, s24, 12\ns_add_u32 s30, s30, {XBASE}\nv_add_u32 v14, s30, v14")
    for s in range(4):
        a(f"v_xor_b32 v16, {2*s}, v15\nv_lshlrev_b32 v16, 4, v16\nv_add_u32 v{2+s}, v14, v16")
    a("s_lshl_b32 s30, s26, 2\ns_add_u32 s30, s30, s24\ns_mul_i32 s30, s30, 86\ns_mul_i32 s31, s25, 6\ns_add_u32 s30, s30, s31\ns_lshl_b32 s30, s30, 10")
    a("v_lshlrev_b32 v11, 4, v13\nv_add_u32 v11, s30, v11")
    ROT = [x for x in X if x.startswith("rot")]
    if ROT:
        if ROT[0].startswith("rotP"):
            ma, mb, mc = int(ROT[0][4]), int(ROT[0][5]), int(ROT[0][6])
            a(f"s_and_b32 s40, s26, 3\ns_mul_i32 s40, s40, {ma}\ns_lshr_b32 s41, s26, 2\ns_mul_i32 s41, s41, {mb}\ns_add_u32 s40, s40, s41\ns_mul_i32 s41, s25, {mc}\ns_add_u32 s40, s40, s41\ns_and_b32 s40, s40, 7")
        else:
            mi, mj = {"rotA": (2, 1), "rotB": (4, 0), "rotC": (2, 0), "rotD": (4, 2), "rotE": (0, 0), "rotF": (1, 0), "rotG": (2, 2), "rotH": (1,1)}[ROT[0]]
            a(f"s_and_b32 s40, s26, 3\ns_mul_i32 s40, s40, {mi}\ns_and_b32 s41, s25, 7\ns_mul_i32 s41, s41, {mj}\ns_add_u32 s40, s40, s41\ns_and_b32 s40, s40, 7")
        a("s_lshl_b32 s41, s40, 7\ns_mul_i32 s40, s40, 176128")
    a("s_mul_i32 s35, s24, 3072")
    a(f"s_lshl_b32 s36, s24, 12\ns_add_u32 s36, s36, {XBASE}")
    a("s_waitcnt lgkmcnt(0)")
    srd_from(a, SX, 4, 5, 2048 * 1024)
    a("s_cmp_ge_u32 s24, 2\ns_cselect_b32 s6, s8, s6\ns_cselect_b32 s7, s9, s7")
    srd_from(a, SW, 6, 7, 512 * 2752)
    srd_from(a, SH, 10, 11, H_SIZE, WS_H)

    def dma_w(u, k):
        if "nodma" in X and u >= 3:
            a.vm.append(("W", u)); a.vmdone = len(a.vm); return
        if k == 0:
            a(f"s_add_u32 m0, s35, {(u % 4) * 12288}")
            if ROT:
                a("s_mov_b32 s27, s40")
                a(f"s_add_u32 s40, s40, 88064\ns_cmp_eq_u32 s40, {16*88064}\ns_cselect_b32 s40, 0, s40")
            else:
                a(f"s_mov_b32 s27, {u * 88064}")
        a.vmop(f"buffer_load_dwordx4 v{6+k}, s[{SW}:{SW+3}], s27 offen offset:{1024*k}" + (" nt" if ("ntw" in X or "nt" in X) else "") + " lds", ("W", u))
    def dma_x(c, k):
        if "nodma" in X and c >= 2:
            a.vm.append(("X", c)); a.vmdone = len(a.vm); return
        if k == 0:
            a(f"s_add_u32 m0, s36, {(c & 1) * 16384}")
            if ROT:
                a("s_mov_b32 s28, s41")
                a("s_add_u32 s41, s41, 128\ns_and_b32 s41, s41, 1023")
            else:
                a(f"s_mov_b32 s28, {c * 128}")
        if k == 2:
            if ROT:
                a("s_add_u32 s28, s28, 14336")
            else:
                a(f"s_mov_b32 s28, {c * 128 + 14336}")
            a("s_nop 0")
        a.vmop(f"buffer_load_dwordx4 v{9+(k&1)}, s[{SX}:{SX+3}], s28 offen offset:{1024*k}" + (" nt" if ("ntx" in X or "nt" in X) else "") + " lds", ("X", c))
    def rd_w(S, jj):
        if "nordw" in X and S >= 1:
            a.lg.append(("w", S, jj)); a.lgdone = len(a.lg); return
        if "halfrdw" in X and S >= 1 and (jj & 1):
            a.lg.append(("w", S, jj)); return
        u, sp = S >> 1, S & 1
        mat, j = jj & 1, jj >> 1
        base = (u % 4) * 12288 + mat * 6144 + 16 * sp * 192 + j * 64
        r = WF(mat, j)
        a.lgop(f"ds_read_b64_tr_b16 v[{r}:{r+1}], v1 offset:{base}", ("w", S, jj))
        a.lgop(f"ds_read_b64_tr_b16 v[{r+2}:{r+3}], v1 offset:{base + 4*192}", ("w", S, jj))
    def rd_x(c, s):
        r = XF(c & 1, s)
        a.lgop(f"ds_read_b128 v[{r}:{r+3}], v{2+s} offset:{(c & 1) * 16384}", ("x", c, s))

    for k in range(4): dma_x(0, k)
    for k in range(3): dma_w(0, k)
    for k in range(3): dma_w(1, k)
    for k in range(4): dma_x(1, k)
    for k in range(3): dma_w(2, k)
    if tim: tim(a, 1)
    a.need(vm=[("W", 0), ("X", 0)])
    a("s_barrier")
    if tim: tim(a, 2)
    for s in range(4): rd_x(0, s)
    for jj in range(6): rd_w(0, jj)
    a("s_setprio 2")
    for u in range(16):
        c, hb = u >> 1, u & 1
        if tim and "mid" in X and u in (4, 8, 12): tim(a, {4: 4, 8: 5, 12: 6}[u])
        for sp in range(2):
            S = 2 * u + sp
            sx = S & 3
            for jj in range(6):
                mat, j = jj & 1, jj >> 1
                lg = [("w", S, jj)]
                if jj == 0: lg.append(("x", c, sx))
                a.need(lg=lg)
                d = ACC(mat, j)
                src_c = "0" if S == 0 else f"v[{d}:{d+15}]"
                a(f"v_mfma_f32_32x32x16_bf16 v[{d}:{d+15}], v[{WF(mat,j)}:{WF(mat,j)+3}], v[{XF(c&1,sx)}:{XF(c&1,sx)+3}], {src_c}")
                if sp == 1 and jj == 0 and u < 15:
                    a.need(vm=("W", u + 1))
                    if "nobar" not in X: a("s_barrier")
                if S + 1 < 32: rd_w(S + 1, jj)
                if sp == 0 and jj in (1, 3, 5) and u + 3 < 16:
                    dma_w(u + 3, jj >> 1)
                if hb == 0 and sp == 1 and jj in (1, 2, 3, 4) and c + 2 < 8:
                    if jj == 1:
                        a.need(lg=("x", c, 3))
                    dma_x(c + 2, jj - 1)
                if hb == 1 and sp == 0 and jj in (0, 2, 4) and c + 1 < 8:
                    if jj == 0: a.need(vm=("X", c + 1))
                    if jj == 0: rd_x(c + 1, 0); rd_x(c + 1, 1)
                    if jj == 2: rd_x(c + 1, 2)
                    if jj == 4: rd_x(c + 1, 3)
    a("s_setprio 0")
    if tim: tim(a, 3)
    lbl_done = a.newlabel("G1done")
    a("s_nop 7\ns_nop 3")
    for j in range(3):
        if j == 1:
            a(f"s_cmp_eq_u32 s25, 14\ns_cbranch_scc1 {lbl_done}")
        g, up = ACC(0, j), ACC(1, j)
        T = 16
        for r in range(16):
            a(f"v_max_f32 v{g+r}, 0, v{g+r}")
        for r in range(16):
            a(f"v_cvt_pk_bf16_f32 v{g+r}, 0, v{g+r}")
            a(f"v_cvt_pk_bf16_f32 v{up+r}, 0, v{up+r}")
        for r in range(16):
            a(f"v_mul_f32 v{g+r}, v{g+r}, v{up+r}")
        for r in range(8):
            a(f"v_cvt_pk_bf16_f32 v{T+8*j+r}, v{g+2*r}, v{g+2*r+1}")
        for p in range(2):
            n = T + 8 * j + 4 * p
            a("s_nop 0")
            a(f"v_permlane32_swap_b32 v{n}, v{n+2}")
            a(f"v_permlane32_swap_b32 v{n+1}, v{n+3}")
            a("s_nop 0")
            off = (2 * j + p) * 1024
            so = "0"
            if off > 4095:
                a(f"s_mov_b32 s30, {off}"); so = "s30"; off = 0
            a.vmop(f"buffer_store_dwordx4 v[{n}:{n+3}], v11, s[{SH}:{SH+3}], {so} offen offset:{off}", ("st",))
    a(f"{lbl_done}:")

def build_gemm1_test():
    a = Em()
    a("s_cmp_ge_u32 s2, 256\ns_cbranch_scc1 L_end")
    if TIMING:
        a("s_memtime s[90:91]")
    gemm1(a, "L_end")
    if TIMING:
        a("s_memtime s[92:93]\ns_waitcnt lgkmcnt(0)\ns_sub_u32 s92, s92, s90")
        a("s_waitcnt vmcnt(0)\ns_memtime s[94:95]\ns_waitcnt lgkmcnt(0)\ns_sub_u32 s94, s94, s90")
        srd_from(a, 84, 10, 11, 1 << 20, 0x1000000)
        a("v_mov_b32 v2, s92\nv_mov_b32 v3, s94\nv_lshrrev_b32 v4, 6, v0\nv_lshlrev_b32 v4, 3, v4\ns_lshl_b32 s30, s2, 5\nv_add_u32 v4, s30, v4")
        a("buffer_store_dwordx2 v[2:3], v4, s[84:87], 0 offen")
    a("L_end:\ns_endpgm")
    k = kernel_block(NAME + "_kernel", a.text(), 256)
    return build_file([(NAME + "_kernel", 256, 256, 81920)], [k])

if __name__ == "__main__":
    what = sys.argv[1]; out = sys.argv[2]
    s = {"gemm1": build_gemm1_test}[what]()
    open(out, "w").write(s)
```

```python
import sys, os
sys.path.insert(0, "dev"); sys.path.insert(0, "f")
from gen import *
from pp import prole
from kq import qrole
from hazard import fix
from timing import Tim

def build(X=(), TIM=0):
    a = Em()
    t = Tim(0) if TIM else None
    if t: t(a, 0)
    a("s_cmp_ge_u32 s2, 512\ns_cbranch_scc1 L_end")
    if "swap" in X: a("s_xor_b32 s2, s2, 256")
    a("s_cmp_ge_u32 s2, 256\ns_cbranch_scc1 L_q")
    prole(a, t, X)
    if t:
        a("s_waitcnt vmcnt(0)"); t.final(a, 7, 10, 11)
    a("s_endpgm")
    a("L_q:")
    b = Em()
    b._lbl = 5000
    qrole(b, t, X)
    if t:
        b("s_waitcnt vmcnt(0)"); t.final(b, 7, 42, 43)
    a.lines += b.lines
    a("L_end:\ns_endpgm")
    tx, n = fix(a.text(), False)
    k = kernel_block(NAME + "_kernel", tx, 256)
    return build_file([(NAME + "_kernel", 512, 256, 81920)], [k])

if __name__ == "__main__":
    out = sys.argv[1]
    X = tuple(x for x in sys.argv[2:] if x != "T")
    open(out, "w").write(build(X, "T" in sys.argv[2:]))
```

```python
import sys
sys.path.insert(0, "dev")
sys.path.insert(0, "f")
from gen import *
from kgen import LOG2E, LOG2E_LO, LN2, dpp_sum, dpp_sum2
from pp import spin_wait, nonce_get, X_get, WS_F1, WS_F3

KT_ROW = 1056
KT0 = 1056
KT_CH = 20 * KT_ROW
UB = 42240

def qrole(a, tim=None, X=()):
    SU, SWD, SWS = 32, 36, 48
    DBG, WSP, NON, CNT = 40, 42, 44, 46
    UTST, WFST = 65536, 73728
    GU, GW0 = 240, 248
    NV, PV = 252, 254
    UR, WR = 224, 232
    a("""
    s_load_dwordx16 s[4:19], s[0:1], 0
    s_load_dwordx2 s[20:21], s[0:1], 64
    s_load_dwordx4 s[24:27], s[0:1], 96
    s_load_dwordx4 s[40:43], s[0:1], 120
    s_and_b32 s3, s2, 255
    v_lshrrev_b32 v22, 6, v0
    v_and_b32 v1, 63, v0
    s_lshl_b32 s56, s3, 9
    v_readfirstlane_b32 s28, v22
    v_lshlrev_b32 v23, 1, v0
    v_add_u32 v23, s56, v23            ; (id2*256+tid)*2
    v_lshrrev_b32 v24, 7, v0
    v_lshlrev_b32 v24, 1, v24
    s_lshl_b32 s56, s3, 2
    v_add_u32 v24, s56, v24            ; ch*2
    s_and_b32 s29, s28, 1
    """)
    a("""
    s_lshl_b32 s56, s3, 3
    s_lshl_b32 s57, s28, 1
    s_add_u32 s30, s56, s57            ; token0
    s_lshl_b32 s56, s30, 10
    v_lshlrev_b32 v25, 4, v1           ; lane*16
    v_add_u32 v26, s56, v25
    """)
    a("""
    s_lshr_b32 s58, s3, 4              ; tokblk
    s_and_b32 s59, s3, 15              ; chgrp
    s_lshl_b32 s56, s58, 7
    s_add_u32 s56, s56, s28
    s_lshl_b32 s56, s56, 10
    s_lshl_b32 s57, s59, 6
    s_add_u32 s56, s56, s57
    v_lshrrev_b32 v27, 2, v1
    v_lshlrev_b32 v27, 12, v27
    v_and_b32 v28, 3, v1
    v_lshlrev_b32 v28, 4, v28
    v_add3_u32 v27, v27, v28, s56
    """)
    a("""
    s_lshl_b32 s56, s3, 2
    s_add_u32 s56, s56, s28
    s_lshr_b32 s60, s56, 3             ; ks
    s_and_b32 s61, s56, 7              ; cb64
    s_lshl_b32 s56, s60, 14
    s_lshl_b32 s57, s61, 7
    s_add_u32 s56, s56, s57
    v_lshrrev_b32 v28, 3, v1
    v_lshlrev_b32 v28, 10, v28
    v_and_b32 v29, 7, v1
    v_lshlrev_b32 v29, 4, v29
    v_add3_u32 v28, v28, v29, s56
    s_lshl_b32 s62, s28, 11            ; w*2048
    s_waitcnt lgkmcnt(0)
    """)
    for i, p in enumerate((6, 8, 10, 12, 14, 16)):
        a.vmop(f"global_load_ushort v{2+i}, v23, s[{p}:{p+1}]", "in")
    a.vmop("global_load_ushort v8, v24, s[18:19]", "in")
    a.vmop("global_load_ushort v9, v24, s[20:21]", "in")
    srd_from(a, SU, 4, 5, 2048 * 1024)
    srd_from(a, SWD, 24, 25, 1376 * 1024)
    a(f"s_add_u32 m0, s62, {UTST}")
    a("s_mov_b32 s56, 65536")
    a.vmop(f"buffer_load_dwordx4 v27, s[{SU}:{SU+3}], 0 offen lds", "ut")
    a(f"s_add_u32 m0, s62, {UTST + 1024}")
    a("s_nop 0")
    a.vmop(f"buffer_load_dwordx4 v27, s[{SU}:{SU+3}], s56 offen lds", "ut")
    a(f"s_add_u32 m0, s62, {WFST}")
    a("s_mov_b32 s56, 8192")
    a.vmop(f"buffer_load_dwordx4 v28, s[{SWD}:{SWD+3}], 0 offen lds", "wf")
    a(f"s_add_u32 m0, s62, {WFST + 1024}")
    a("s_nop 0")
    a.vmop(f"buffer_load_dwordx4 v28, s[{SWD}:{SWD+3}], s56 offen lds", "wf")
    a.vmop(f"global_load_dwordx4 v[{GU}:{GU+3}], v26, s[4:5]", "g")
    a.vmop(f"global_load_dwordx4 v[{GU+4}:{GU+7}], v26, s[4:5] offset:1024", "g")
    a.vmop(f"global_load_dwordx4 v[{GW0}:{GW0+3}], v25, s[26:27]", "g")
    srd_from(a, SWS, WSP, WSP + 1, WS_END)
    a(f"""
    v_lshrrev_b32 v10, 4, v1           ; g
    v_lshlrev_b32 v11, 3, v10
    v_bfe_u32 v12, v1, 2, 2            ; r
    v_add_u32 v11, v11, v12
    v_sub_u32 v11, 27, v11
    v_lshlrev_b32 v11, 6, v11
    v_and_b32 v13, 3, v1
    v_lshlrev_b32 v13, 3, v13          ; c*8
    s_add_u32 s56, s62, {UTST}
    v_add3_u32 v14, v11, v13, s56
    v_lshrrev_b32 v11, 5, v1
    v_lshlrev_b32 v11, 3, v11
    v_add_u32 v11, v11, v12
    v_lshlrev_b32 v11, 7, v11
    v_and_b32 v15, 1, v10
    v_lshlrev_b32 v15, 5, v15
    v_add3_u32 v11, v11, v15, v13
    s_add_u32 s56, s62, {WFST}
    v_add_u32 v15, s56, v11
    s_lshl_b32 s56, s58, 2
    s_add_u32 s56, s56, s28
    s_lshl_b32 s56, s56, 9
    s_lshl_b32 s57, s59, 5
    s_add_u32 s56, s56, s57
    s_lshl_b32 s56, s56, 6
    s_add_u32 s56, s56, {WS_UT}
    v_and_b32 v16, 15, v1
    v_lshlrev_b32 v16, 6, v16
    v_lshlrev_b32 v17, 4, v10
    v_add3_u32 v16, v16, v17, s56
    s_mul_i32 s56, s61, 172
    s_add_u32 s56, s56, s60
    s_lshl_b32 s56, s56, 10
    s_add_u32 s56, s56, {WS_WF}
    s_cmp_ge_u32 s60, 86
    s_cselect_b32 s64, 0x10000000, s56
    s_add_u32 s65, s64, 88064
    """)
    a(f"""
    s_lshl_b32 s56, s3, 7
    s_lshl_b32 s57, s28, 3
    s_add_u32 s56, s56, s57
    s_add_u32 s56, s56, {WS_F1}
    v_mov_b32 v17, s56
    s_lshr_b32 s56, s3, 4
    s_lshl_b32 s56, s56, 7
    s_add_u32 s56, s56, {WS_F1}
    v_lshrrev_b32 v18, 2, v1
    v_lshlrev_b32 v18, 11, v18
    v_and_b32 v19, 3, v1
    v_lshlrev_b32 v19, 3, v19
    v_add3_u32 v18, v18, v19, s56
    v_mov_b32 v19, 0
    s_mov_b64 s[66:67], -1
    """)
    a(f"""
    s_lshr_b32 s31, s28, 1                    ; cl
    s_lshl_b32 s47, s3, 1
    s_add_u32 s47, s47, s31                   ; ch
    v_lshrrev_b32 v20, 2, v1
    v_sub_u32 v20, 15, v20
    v_lshlrev_b32 v20, 17, v20
    v_and_b32 v21, 3, v1
    v_lshlrev_b32 v21, 4, v21
    s_lshl_b32 s56, s29, 16
    s_lshl_b32 s57, s47, 6
    s_add_u32 s56, s56, s57
    s_add_u32 s56, s56, {WS_UT}
    v_add3_u32 v20, v20, v21, s56
    """)

    Q = lambda q: (32 + 2 * q, 33 + 2 * q)
    T0 = lambda c: (64 + 2 * c, 65 + 2 * c)
    T1 = lambda c: (96 + 2 * c, 97 + 2 * c)
    T2 = lambda c: (128 + 2 * c, 129 + 2 * c)
    KE = (160, 161)
    E1, E64, E512, E128, E192, E256, E2, E3 = [(162 + 2 * i, 163 + 2 * i) for i in range(8)]
    E4 = Q(1)
    tcnt = [0]
    def cmul(d, x, y):
        t = 178 + 2 * (tcnt[0] % 4); tcnt[0] += 1
        assert x[0] % 2 == 0 and y[0] % 2 == 0 and d[0] % 2 == 0 and x[1] == x[0] + 1 and y[1] == y[0] + 1 and d[1] == d[0] + 1
        if "nopk" in X:
            a(f"v_mul_f32 v{t}, v{x[1]}, v{y[1]}")
            a(f"v_mul_f32 v{t+1}, v{x[1]}, v{y[0]}")
            a(f"v_fma_f32 v{d[0]}, v{x[0]}, v{y[0]}, -v{t}")
            a(f"v_fma_f32 v{d[1]}, v{x[0]}, v{y[1]}, v{t+1}")
            return
        a(f"v_pk_mul_f32 v[{t}:{t+1}], v[{x[0]}:{x[1]}], v[{y[0]}:{y[1]}] op_sel:[1,1] op_sel_hi:[1,0]")
        pend.append(f"v_pk_fma_f32 v[{d[0]}:{d[1]}], v[{x[0]}:{x[1]}], v[{y[0]}:{y[1]}], v[{t}:{t+1}] op_sel:[0,0,0] op_sel_hi:[0,1,1] neg_lo:[0,0,1]")
        a(pend.pop(0))
    pend = []
    PK = lambda g, part: 192 + (g * 2 + part) * 4 if g < 4 else 192 + ((g - 4) * 2 + part) * 4
    a("""
    v_and_b32 v30, 127, v0
    v_lshlrev_b32 v30, 4, v30
    v_lshrrev_b32 v31, 7, v0
    v_lshlrev_b32 v31, 15, v31
    v_add_u32 v30, v30, v31
    v_xor_b32 v31, 64, v30
    """)
    def put_group(g, cols, negim):
        if g >= 4:
            a.need(lg=("tw", g - 4))
        for part in range(2):
            for i in range(4):
                x, y = cols[2 * i][part], cols[2 * i + 1][part]
                n = "-" if (negim and part == 1) else ""
                a(f"v_cvt_pk_bf16_f32 v{PK(g,part)+i}, {n}v{x}, {n}v{y}")
            p = PK(g, part)
            a.lgop(f"ds_write_b128 v{30 + (g & 1)}, v[{p}:{p+3}] offset:{g*4096 + part*2048}", ("tw", g))

    def prep_rd():
        a.need(vm="wf")
        for cg in range(2):
            a.lgop(f"ds_read_b64_tr_b16 v[{UR+4*cg}:{UR+4*cg+1}], v14 offset:{256 + cg*32}", "utr")
            a.lgop(f"ds_read_b64_tr_b16 v[{UR+4*cg+2}:{UR+4*cg+3}], v14 offset:{cg*32}", "utr")
        for h in range(2):
            a.lgop(f"ds_read_b64_tr_b16 v[{WR+4*h}:{WR+4*h+1}], v15 offset:{h*64}", "wtr")
            a.lgop(f"ds_read_b64_tr_b16 v[{WR+4*h+2}:{WR+4*h+3}], v15 offset:{h*64 + 512}", "wtr")
    def prep_st():
        a.need(lg="utr")
        a.vmop(f"buffer_store_dwordx4 v[{UR}:{UR+3}], v16, s[{SWS}:{SWS+3}], 0 offen sc1", "st")
        a.vmop(f"buffer_store_dwordx4 v[{UR+4}:{UR+7}], v16, s[{SWS}:{SWS+3}], 0 offen offset:1024 sc1", "st")
        a.need(lg="wtr")
        a.vmop(f"buffer_store_dwordx4 v[{WR}:{WR+3}], v25, s[{SWS}:{SWS+3}], s64 offen sc1", "st")
        a.vmop(f"buffer_store_dwordx4 v[{WR+4}:{WR+7}], v25, s[{SWS}:{SWS+3}], s65 offen sc1", "st")
        a.vmop(f"global_load_dwordx2 v[{NV}:{NV+1}], v19, s[{DBG}:{DBG+1}] sc1", "non")
    def prep_flag():
        nonce_get(a, "Qn", NV, NON, DBG, 19, "non", cnt=CNT)
        a.drain(vm=True, lg=False)
        a(f"v_mov_b32 v{NV}, s{NON}\nv_mov_b32 v{NV+1}, s{NON+1}\ns_mov_b64 exec, 1")
        a.vmop(f"buffer_store_dwordx2 v[{NV}:{NV+1}], v17, s[{SWS}:{SWS+3}], 0 offen sc1", "f1")
        a("s_mov_b64 exec, -1")

    PR, PS, PFL = X_get(X, "pr", 0), X_get(X, "ps", 1), X_get(X, "pf", 5)
    QP, QM = X_get(X, "qp", 0), X_get(X, "qm", 0)
    QX = X_get(X, "qx", 0)
    def hook(g):
        if g == PR: prep_rd()
        if g == PS: prep_st()
        if g == PFL:
            prep_flag()
            if QP != QM: a(f"s_setprio {QM}")
            if QX == 1: a("s_waitcnt vmcnt(0)\ns_endpgm")
    if QP: a(f"s_setprio {QP}")
    if tim: tim(a, 1)
    a.need(vm="in")
    if tim: tim(a, 2)
    hook(-3)
    DT, LR, REV = 22, 23, 24
    a(f"""
    v_lshlrev_b32 v8, 16, v8
    s_mov_b32 s56, {LOG2E}
    s_mov_b32 s57, {LOG2E_LO}
    s_mov_b32 s63, {LN2}
    v_mul_f32 v186, s56, v8
    v_exp_f32 v187, v186
    v_fma_f32 v188, v8, s56, -v186
    v_fma_f32 v188, v8, s57, v188
    v_mul_f32 v188, s63, v188
    v_fma_f32 v187, v187, v188, v187
    """)
    for i in range(6):
        a(f"v_lshlrev_b32 v{2+i}, 16, v{2+i}")
    a(f"v_cvt_pk_bf16_f32 v{DT}, 0, v187")
    a("v_lshlrev_b32 v9, 16, v9")
    a(f"""
    v_mul_f32 v2, v{DT}, v2
    v_mul_f32 v3, v{DT}, v3
    v_mul_f32 v4, v{DT}, v4
    v_mul_f32 v5, v{DT}, v5
    v_mul_f32 v{LR}, s56, v2
    v_mul_f32 v{REV}, 0.15915494, v3
    """)
    def anchor(E, L, t):
        Lf = {1: None, 4: "4.0", 64: "0x42800000", 512: "0x44000000"}[L]
        if Lf is None:
            a(f"v_exp_f32 v{t}, v{LR}")
            a(f"v_fract_f32 v{t+1}, v{REV}")
        else:
            a(f"v_mul_f32 v{t}, {Lf}, v{LR}")
            a(f"v_mul_f32 v{t+1}, {Lf}, v{REV}")
            a(f"v_exp_f32 v{t}, v{t}")
            a(f"v_fract_f32 v{t+1}, v{t+1}")
    def anchor2(E, t):
        a(f"v_cos_f32 v{E[0]}, v{t+1}")
        a(f"v_sin_f32 v{E[1]}, v{t+1}")
    def anchor3(E, t):
        a(f"v_mul_f32 v{E[0]}, v{t}, v{E[0]}")
        a(f"v_mul_f32 v{E[1]}, v{t}, v{E[1]}")
    hook(-2)
    lst = [(E4, 4, 186), (E64, 64, 188), (E1, 1, 190), (E512, 512, 26)]
    for E, L, t in lst: anchor(E, L, t)
    cmul(T0(0), (6, 7), (4, 5))
    for E, L, t in lst: anchor2(E, t)
    a("s_nop 0")
    for E, L, t in lst: anchor3(E, t)
    a(f"v_mov_b32 v{Q(0)[0]}, 1.0\nv_mov_b32 v{Q(0)[1]}, 0")
    cmul(Q(2), E4, E4)
    cmul(E128, E64, E64)
    cmul(Q(3), Q(2), E4)
    cmul(E2, E1, E1)
    cmul(Q(4), Q(2), Q(2))
    cmul(E192, E128, E64)
    cmul(E256, E128, E128)
    cmul(E3, E2, E1)
    hook(-1)
    for q in range(5, 8): cmul(Q(q), Q(4), Q(q - 4))
    cmul(Q(8), Q(4), Q(4))
    put_group(0, [Q(q) for q in range(8)], True); hook(0)
    for q in range(9, 16): cmul(Q(q), Q(8), Q(q - 8))
    put_group(1, [Q(q) for q in range(8, 16)], True); hook(1)
    cmul(T0(4), T0(0), E1); cmul(T0(8), T0(0), E2); cmul(T0(12), T0(0), E3)
    cmul(T1(8), T0(0), E512)
    for b in range(4):
        for p, E in ((1, E64), (2, E128), (3, E192)):
            cmul(T0(4 * b + p), T0(4 * b), E)
        cmul(T1(9 + b), T1(8 + b), E64) if b < 3 else None
        if b == 1: put_group(2, [T0(c) for c in range(8)], False); hook(2)
    put_group(3, [T0(c) for c in range(8, 16)], False); hook(3)
    chain = [T1(8 + p) for p in range(8)] + [T2(p) for p in range(16)] + [KE]
    nxt = 4
    for c in range(8):
        src = T0(8 + c) if c < 4 else T0(c - 4)
        cmul(T1(c), src, E256)
        if nxt < 8:
            cmul(chain[nxt], chain[nxt - 1], E64); nxt += 1
    put_group(4, [T1(c) for c in range(8)], False); hook(4)
    put_group(5, [T1(c) for c in range(8, 16)], False); hook(5)
    cmul(chain[8], chain[7], E64)
    for p in range(9, 25):
        cmul(chain[p], chain[p - 2], E128)
        if p == 15: put_group(6, [T2(c) for c in range(8)], False); hook(6)
        if p == 23: put_group(7, [T2(c) for c in range(8, 16)], False); hook(7)

    if tim: tim(a, 3)
    if QX == 2: a("s_waitcnt vmcnt(0)\ns_endpgm")
    a.vmop(f"buffer_load_dwordx2 v[{PV}:{PV+1}], v18, s[{SWS}:{SWS+3}], 0 offen sc1", "poll")
    dpp_sum(a, KE[0])
    a("s_nop 0")
    a(f"v_readlane_b32 s68, v{KE[0]}, 63")
    a(f"s_add_u32 s56, s62, {WFST}")
    a("v_mov_b32 v3, s56")
    a("v_mov_b32 v4, s68")
    a.lgop("ds_write_b32 v3, v4", "kp")

    a("""
    v_lshrrev_b32 v2, 4, v1            ; kg
    v_lshlrev_b32 v3, 3, v2
    v_bfe_u32 v4, v1, 2, 2             ; r
    v_add_u32 v3, v3, v4
    v_lshlrev_b32 v3, 4, v3
    v_bfe_u32 v5, v1, 1, 1             ; c>>1
    v_lshlrev_b32 v6, 6, v5
    v_xor_b32 v3, v3, v6
    v_lshlrev_b32 v5, 12, v5
    v_and_b32 v6, 1, v1
    v_lshlrev_b32 v6, 3, v6
    v_add3_u32 v3, v3, v5, v6
    s_lshr_b32 s56, s28, 1
    s_lshl_b32 s57, s56, 15            ; cl*32768
    v_add_u32 v10, s57, v3             ; q1
    v_xor_b32 v11, 64, v10             ; q2
    s_cmp_eq_u32 s29, 0
    s_mov_b32 s69, 24576
    s_cselect_b32 s71, 8192, s69
    s_cselect_b32 s70, 16384, s69
    v_add_u32 v12, s71, v10
    v_add_u32 v13, s71, v11
    v_add_u32 v14, s70, v10
    v_add_u32 v15, s70, v11
    """)
    a("v_mov_b32 v29, v18")
    APOLL = 29
    a(f"""
    s_lshl_b32 s68, s56, 12
    s_add_u32 s68, s68, {UTST}
    v_and_b32 v16, 15, v1              ; col
    v_lshlrev_b32 v17, 3, v2           ; 8g
    v_lshlrev_b32 v18, 5, v16          ; 32col
    v_add3_u32 v18, v18, v17, s68      ; base+32col+8g
    v_bfe_u32 v19, v1, 2, 2
    v_lshlrev_b32 v19, 7, v19          ; b*128
    v_and_b32 v21, 3, v1
    v_lshlrev_b32 v21, 5, v21
    v_add3_u32 v19, v19, v21, v17
    v_add_u32 v19, s68, v19
    v_add_u32 v21, 1024, v18
    s_cmp_eq_u32 s29, 0
    s_cselect_b64 vcc, -1, 0
    v_cndmask_b32 v16, v21, v19, vcc   ; vSA
    v_add_u32 v17, 512, v18
    v_cndmask_b32 v17, v21, v17, vcc   ; vSB
    """)
    spin_wait(a, "Qf1", APOLL, PV, SWS, 66, NON, "poll", cnt=CNT)
    a.vmdone = len(a.vm)
    a.vmop(f"buffer_load_dwordx4 v[{UR}:{UR+3}], v20, s[{SWS}:{SWS+3}], 0 offen sc1", "u")
    a("s_mov_b32 s56, 32768")
    a.vmop(f"buffer_load_dwordx4 v[{UR+4}:{UR+7}], v20, s[{SWS}:{SWS+3}], s56 offen sc1", "u")
    if tim: tim(a, 4)
    a("""
    v_cmp_eq_u32 vcc, 0, v1
    s_cmp_eq_u32 s29, 0
    s_cselect_b64 s[70:71], vcc, 0
    v_mov_b32 v21, 0
    v_mov_b32 v22, 0
    v_mov_b32 v23, 0
    v_cndmask_b32 v20, 0, v9, s[70:71]
    """)
    a(f"""
    s_lshr_b32 s56, s28, 1
    s_lshl_b32 s56, s56, 12
    s_add_u32 s56, s56, {WFST}
    v_mov_b32 v24, s56
    """)
    a.drain(vm=False, lg=True)
    a("s_barrier")
    QF, AF_, BF_ = 32, 64, 96
    a.lgop("ds_read_b32 v25, v24", "k2")
    a.lgop("ds_read_b32 v26, v24 offset:2048", "k2")
    for s in range(8):
        for (F, r1, r2, tag) in ((QF, 10, 11, "q"), (AF_, 12, 13, "a"), (BF_, 14, 15, "b")):
            a.lgop(f"ds_read_b64_tr_b16 v[{F+4*s}:{F+4*s+1}], v{r1} offset:{s*512}", (tag, s))
            a.lgop(f"ds_read_b64_tr_b16 v[{F+4*s+2}:{F+4*s+3}], v{r2} offset:{s*512}", (tag, s))
    DA, DB = 128, 132
    a.need(lg="k2")
    a("v_add_f32 v25, v25, v26")
    a(f"s_add_u32 s56, s68, 1536")
    a("v_mov_b32 v27, s56")
    a("v_cvt_pk_bf16_f32 v25, v25, v25")
    for s in range(8):
        a.need(lg=[("q", s), ("a", s)])
        ca = "v[20:23]" if s == 0 else f"v[{DA}:{DA+3}]"
        a(f"v_mfma_f32_16x16x32_bf16 v[{DA}:{DA+3}], v[{QF+4*s}:{QF+4*s+3}], v[{AF_+4*s}:{AF_+4*s+3}], {ca}")
        a.need(lg=("b", s))
        cb = "0" if s == 0 else f"v[{DB}:{DB+3}]"
        a(f"v_mfma_f32_16x16x32_bf16 v[{DB}:{DB+3}], v[{QF+4*s}:{QF+4*s+3}], v[{BF_+4*s}:{BF_+4*s+3}], {cb}")
    a.lgop("ds_write_b16 v27, v25", "sw")
    I_, S_, LLp, LL = 0x03020100, 0x05040302, 0x05040100, 0x01000100
    a(f"""
    v_lshlrev_b32 v2, 4, v1            ; 16*lambda
    v_add_u32 v2, s68, v2
    s_lshl_b32 s56, s29, 8             ; 2p*128
    v_add_u32 v3, s56, v2              ; T0 row A
    v_add_u32 v4, 128, v3              ; T0 row B
    v_add_u32 v5, 512, v2              ; E4
    v_add_u32 v6, 384, v2              ; E2
    v_cmp_gt_u32 vcc, 16, v1
    s_cmp_eq_u32 s29, 1
    s_cselect_b64 s[70:71], vcc, 0
    v_cndmask_b32 v6, v5, v6, s[70:71]
    v_cmp_gt_u32 vcc, 8, v1
    v_cndmask_b32 v6, v6, v3, vcc
    v_cndmask_b32 v7, v5, v4, vcc
    s_cselect_b32 s56, 16, 32          ; thrA
    s_mov_b32 s72, {I_}
    s_mov_b32 s73, {S_}
    s_mov_b32 s74, {LLp}
    s_cselect_b32 s69, s74, {LL}
    s_cselect_b32 s76, s73, s72
    v_mov_b32 v8, s72
    v_mov_b32 v9, s76
    v_cndmask_b32 v9, v9, v8, vcc
    v_mov_b32 v10, s74
    v_cmp_gt_u32 vcc, 32, v1
    v_cndmask_b32 v9, v10, v9, vcc     ; selB
    v_cmp_gt_u32 vcc, s56, v1
    v_cndmask_b32 v11, v10, v8, vcc
    v_mov_b32 v12, s69
    v_cndmask_b32 v12, v12, v8, vcc
    """)
    a(f"v_cvt_pk_bf16_f32 v136, v{DA}, v{DA+1}")
    a(f"v_cvt_pk_bf16_f32 v137, v{DA+2}, v{DA+3}")
    a(f"v_cvt_pk_bf16_f32 v138, v{DB}, v{DB+1}")
    a(f"v_cvt_pk_bf16_f32 v139, v{DB+2}, v{DB+3}")
    a.lgop("ds_write_b64 v16, v[136:137]", "sw")
    a.lgop("ds_write_b64 v17, v[138:139]", "sw")

    def gcalc():
        GW = 64
        a.need(vm="g")
        for i in range(4):
            a(f"v_lshlrev_b32 v{GW+2*i}, 16, v{GW0+i}")
            a(f"v_and_b32 v{GW+2*i+1}, 0xffff0000, v{GW0+i}")
        for tk in range(2):
            Xr = 72 + 8 * tk
            for i in range(4):
                a(f"v_lshlrev_b32 v{Xr+2*i}, 16, v{GU+4*tk+i}")
                a(f"v_and_b32 v{Xr+2*i+1}, 0xffff0000, v{GU+4*tk+i}")
            for i in range(8):
                a(f"v_mul_f32 v{Xr+i}, v{Xr+i}, v{GW+i}")
            for i in range(8):
                a(f"v_cvt_pk_bf16_f32 v{Xr+i}, 0, v{Xr+i}")
            for st in (4, 2, 1):
                for i in range(st):
                    a(f"v_add_f32 v{Xr+i}, v{Xr+i}, v{Xr+i+st}")
        dpp_sum2(a, 72, 80)
        a(f"s_mov_b32 s56, {LOG2E | 0x80000000}")
        for tk in range(2):
            a(f"v_cvt_pk_bf16_f32 v{72+8*tk}, 0, v{72+8*tk}")
        for tk in range(2):
            a(f"v_mul_f32 v{72+8*tk}, s56, v{72+8*tk}")
        for tk in range(2):
            a(f"v_exp_f32 v{72+8*tk}, v{72+8*tk}")
        a("s_nop 0")
        for tk in range(2):
            a(f"v_add_f32 v{72+8*tk}, 1.0, v{72+8*tk}")
        for tk in range(2):
            a(f"v_rcp_f32 v{72+8*tk}, v{72+8*tk}")
        a("s_nop 0")
        a("v_cvt_pk_bf16_f32 v88, 0, v72")
        a("v_cvt_pk_bf16_f32 v90, 0, v80")
        a("v_sub_f32 v89, 1.0, v88")
        a("v_sub_f32 v91, 1.0, v90")
        a("v_cvt_pk_bf16_f32 v89, 0, v89")
        a("v_cvt_pk_bf16_f32 v91, 0, v91")
        a("s_lshl_b32 s56, s30, 3")
        a(f"s_add_u32 s56, s56, {WS_G}")
        a("v_mov_b32 v92, s56")
        a("s_lshl_b64 exec, 1, 63")
        a.vmop(f"buffer_store_dwordx4 v[88:91], v92, s[{SWS}:{SWS+3}], 0 offen sc1", "gst")
        a("s_mov_b64 exec, -1")
    gcalc()

    cAT, cZ, cT, cB, cW0, cW1, cR0, cR1, cA0, cA1, cU = 232, 233, 234, 235, 236, 237, 238, 239, 240, 241, 242
    ZR = 244
    t0, t1, t2, t3, tj, tg, tl = 248, 249, 250, 251, 243, 252, 253
    assert KT0 == KT_ROW
    a(f"""
    v_lshlrev_b32 v{tl}, 4, v1                ; lane*16
    s_lshl_b32 s56, s47, 12
    s_lshl_b32 s57, s29, 11
    s_add_u32 s56, s56, s57
    s_add_u32 s56, s56, {WS_AT}
    v_add_u32 v{cAT}, s56, v{tl}
    s_lshl_b32 s56, s31, 2
    s_lshl_b32 s57, s29, 1
    s_add_u32 s56, s56, s57
    s_mul_i32 s56, s56, 1280
    s_add_u32 s77, s56, {UB}
    v_add_u32 v{cU}, s77, v{tl}
    v_bfe_u32 v{t0}, v1, 4, 1
    v_mul_u32_u24 v{t0}, 1280, v{t0}
    v_and_b32 v{tj}, 15, v1                   ; i / j
    v_lshlrev_b32 v{t1}, 4, v{tj}
    v_add3_u32 v{cZ}, v{t0}, v{t1}, s77
    v_mov_b32 v{ZR}, 0
    v_mov_b32 v{ZR+1}, 0
    v_mov_b32 v{ZR+2}, 0
    v_mov_b32 v{ZR+3}, 0
    s_mul_i32 s58, s31, {KT_CH}
    s_mul_i32 s57, s29, {2*KT_ROW}
    s_add_u32 s56, s58, s57
    v_add_u32 v{cT}, s56, v{tl}
    v_lshrrev_b32 v{tg}, 4, v1                ; kg / g
    s_lshl_b32 s57, s29, 1
    s_sub_u32 s57, 4, s57
    v_add_u32 v{t0}, s57, v{tj}
    v_mul_u32_u24 v{t0}, {KT_ROW}, v{t0}
    v_lshlrev_b32 v{t1}, 4, v{tg}
    v_add3_u32 v{cA0}, v{t0}, v{t1}, s58
    v_subrev_u32 v{cA1}, {KT_ROW}, v{cA0}
    v_sub_u32 v{t0}, v{tg}, v{tj}
    v_add_u32 v{t0}, 15, v{t0}
    v_lshlrev_b32 v{t0}, 4, v{t0}
    v_add_u32 v{cB}, s77, v{t0}
    v_and_b32 v{t0}, 3, v{tj}
    v_lshlrev_b32 v{t0}, 1, v{t0}
    v_bfe_u32 v{t1}, v{tj}, 2, 1
    v_or_b32 v{t0}, v{t0}, v{t1}
    v_xor_b32 v{t0}, v{t0}, v{tg}
    v_lshlrev_b32 v{t0}, 4, v{t0}
    v_lshlrev_b32 v{t1}, 7, v{tj}
    s_lshl_b32 s56, s28, 13
    v_add3_u32 v{cW0}, v{t0}, v{t1}, s56
    v_xor_b32 v{cW1}, 64, v{cW0}
    v_lshrrev_b32 v{t0}, 2, v1                ; j
    v_and_b32 v{t1}, 3, v{t0}
    v_lshlrev_b32 v{t1}, 1, v{t1}
    v_bfe_u32 v{t2}, v{t0}, 2, 1
    v_or_b32 v{t1}, v{t1}, v{t2}
    v_and_b32 v{t2}, 3, v1
    v_lshlrev_b32 v{t2}, 1, v{t2}
    v_xor_b32 v{t1}, v{t1}, v{t2}
    v_lshlrev_b32 v{t1}, 4, v{t1}
    v_lshlrev_b32 v{t0}, 7, v{t0}
    s_lshl_b32 s56, s31, 14
    s_lshl_b32 s57, s29, 12
    s_add_u32 s56, s56, s57
    v_add3_u32 v{cR0}, v{t0}, v{t1}, s56
    v_xor_b32 v{cR1}, 16, v{cR0}
    """)
    a.drain(vm=False, lg=True)
    a("s_barrier")
    if tim: tim(a, 5)
    XA, XB = 32, 40
    a.lgop(f"ds_read_b128 v[{XA}:{XA+3}], v6", "xa")
    a.lgop(f"ds_read_b32 v{XA+4}, v6 offset:16", "xa")
    a.lgop(f"ds_read_b128 v[{XB}:{XB+3}], v7", "xb")
    a.lgop(f"ds_read_b32 v{XB+4}, v7 offset:16", "xb")
    a.lgop(f"ds_write_b128 v{cZ}, v[{ZR}:{ZR+3}] offset:1024", "z")
    R0, R1 = 46, 52
    OA, OB = R0 + 2, R1 + 2
    T = 64
    for i, R, XX in ((0, R0, XA), (1, R1, XB)):
        a.need(lg="xa" if i == 0 else "xb")
        for j in range(4):
            sel = (12 if j % 2 == 0 else 11) if i == 0 else 9
            a(f"v_perm_b32 v{R+2+j}, v{XX+j+1}, v{XX+j}, v{sel}")
        a("s_nop 1")
        a(f"v_mov_b32_dpp v{R}, v{R+4} wave_shr:1 row_mask:0xf bank_mask:0xf bound_ctrl:1")
        a(f"v_mov_b32_dpp v{R+1}, v{R+5} wave_shr:1 row_mask:0xf bank_mask:0xf bound_ctrl:1")
        tb = T + 12 * i
        def off(m): return (4 * m + 16 + i) * KT_ROW
        a.lgop(f"ds_write_b128 v{cT}, v[{R+2}:{R+5}] offset:{off(0)}", "t")
        for j in range(4):
            a(f"v_alignbit_b32 v{tb+j}, v{R+2+j}, v{R+1+j}, 16")
        a.lgop(f"ds_write_b128 v{cT}, v[{tb}:{tb+3}] offset:{off(-1)}", "t")
        for j in range(4):
            a(f"v_mov_b32 v{tb+4+j}, v{R+1+j}")
        a.lgop(f"ds_write_b128 v{cT}, v[{tb+4}:{tb+7}] offset:{off(-2)}", "t")
        for j in range(4):
            a(f"v_alignbit_b32 v{tb+8+j}, v{R+1+j}, v{R+j}, 16")
        a.lgop(f"ds_write_b128 v{cT}, v[{tb+8}:{tb+11}] offset:{off(-3)}", "t")
        a.lgop(f"ds_write_b128 v{cT}, v[{R}:{R+3}] offset:{off(-4)}", "t")
    a.need(vm="u")
    a.lgop(f"ds_write_b128 v{cU}, v[{UR}:{UR+3}]", "uw")
    a.lgop(f"ds_write_b128 v{cU}, v[{UR+4}:{UR+7}] offset:1280", "uw")
    a.drain(vm=False, lg=True)
    a("s_barrier")
    if tim: tim(a, 6)
    if QX == 3: a("s_waitcnt vmcnt(0)\ns_endpgm")
    prio = X_get(X, "cprio", 1)
    if prio: a(f"s_setprio {prio}")
    D = 4; NB = D + 1
    ACC = lambda eta, z: 32 + (eta * 2 + z) * 4
    AF = lambda e, w: 64 + 64 * e + 4 * w
    BF = lambda b: 192 + 6 * b
    NS = 32
    def rd(s):
        e, st = s >> 4, s & 15
        b = BF(s % NB)
        a.lgop(f"ds_read_b128 v[{AF(e,st)}:{AF(e,st)+3}], v{cA0+e} offset:{64*st}", ("A", s))
        o = st * 64 + e * 1280
        a.lgop(f"ds_read_b128 v[{b}:{b+3}], v{cB} offset:{o}", ("B", s))
        a.lgop(f"ds_read_b64 v[{b+4}:{b+5}], v{cB} offset:{o+16}", ("B", s))
    for s in range(D): rd(s)
    first = set()
    for s in range(NS):
        e, st = s >> 4, s & 15
        v = 12 - st
        b = BF(s % NB)
        a.need(lg=[("A", s), ("B", s)])
        n = 0
        for eta in (3, 2, 1, 0):
            w = 4 * eta - v
            if not (0 <= w <= 15): continue
            for z in (1, 0):
                d = ACC(eta, z)
                c = f"v[{d}:{d+3}]" if (eta, z) in first else "0"
                first.add((eta, z))
                bo = b if z == 1 else b + 2
                a(f"v_mfma_f32_16x16x32_bf16 v[{d}:{d+3}], v[{AF(e,w)}:{AF(e,w)+3}], v[{bo}:{bo+3}], {c}")
                n += 1
                if n == 1 and s + D < NS:
                    rd(s + D)
    if prio: a("s_setprio 0")
    a("s_barrier")
    for eta in (3, 2, 1, 0):
        for z in (1, 0):
            d = ACC(eta, z)
            a.lgop(f"ds_write_b128 v{cW0+z}, v[{d}:{d+3}] offset:{eta*2048}", "rw")
    a.drain(vm=False, lg=True)
    a("s_barrier")
    XR = 64
    for n in range(2):
        for s in range(2):
            for h in range(2):
                r = XR + n * 16 + s * 8 + h * 4
                a.lgop(f"ds_read_b128 v[{r}:{r+3}], v{cR0+h} offset:{s*8192 + n*2048}", ("r", n))
    for n in range(2):
        a.need(lg=("r", n))
        r = XR + n * 16
        for k in range(8):
            a(f"v_add_f32 v{r+k}, v{r+k}, v{r+8+k}")
        for k in range(4):
            a(f"v_cvt_pk_bf16_f32 v{r+8+k}, v{r+2*k}, v{r+2*k+1}")
        a.vmop(f"buffer_store_dwordx4 v[{r+8}:{r+11}], v{cAT}, s[{SWS}:{SWS+3}], 0 offen offset:{n*1024} sc1", "st")
    a.drain(vm=True, lg=False)
    a("s_barrier")
    lbl = a.newlabel("CVdone")
    a(f"s_cmp_lg_u32 s28, 0\ns_cbranch_scc1 {lbl}")
    a(f"s_lshl_b32 s56, s3, 7\ns_add_u32 s56, s56, {WS_F3}")
    a(f"v_mov_b32 v2, s56\nv_mov_b32 v4, s{NON}\nv_mov_b32 v5, s{NON+1}")
    a("s_mov_b64 exec, 1")
    a(f"buffer_store_dwordx2 v[4:5], v2, s[{SWS}:{SWS+3}], 0 offen sc1")
    a("s_mov_b64 exec, -1")
    a(f"{lbl}:")
```

```python
import sys, os
sys.path.insert(0, "dev"); sys.path.insert(0, "f")
from gen import *
from pp import prole
from kq import qrole
from hazard import fix
from timing import Tim

def build(X=(), TIM=0):
    a = Em()
    t = Tim(0, rt=("C" not in X)) if TIM else None
    if t: t(a, 0)
    a("s_cmp_ge_u32 s2, 512\ns_cbranch_scc1 L_end")
    if "en" in X:
        a("""
        s_cmp_lg_u32 s2, 0
        s_cbranch_scc1 L_nn
        v_cmp_eq_u32 vcc, 0, v0
        s_cbranch_vccz L_nn
        s_load_dwordx2 s[4:5], s[0:1], 120
        s_memrealtime s[6:7]
        v_mov_b32 v3, 0
        s_waitcnt lgkmcnt(0)
        s_or_b32 s6, s6, 1
        v_mov_b32 v4, s6
        v_mov_b32 v5, s7
        s_mov_b64 exec, 1
        global_store_dwordx2 v3, v[4:5], s[4:5] sc1
        s_mov_b64 exec, -1
        L_nn:
        """)
    if "swap" in X: a("s_xor_b32 s2, s2, 256")
    a("s_cmp_ge_u32 s2, 256\ns_cbranch_scc1 L_q")
    prole(a, t, X)
    if t:
        a("s_waitcnt vmcnt(0)"); t.final(a, 7, 10, 11)
    a("s_endpgm")
    a("L_q:")
    b = Em()
    b._lbl = 5000
    qrole(b, t, X)
    if t:
        b("s_waitcnt vmcnt(0)"); t.final(b, 7, 42, 43)
    a.lines += b.lines
    a("L_end:\ns_endpgm")
    tx, n = fix(a.text(), False)
    k = kernel_block(NAME + "_kernel", tx, 256)
    return build_file([(NAME + "_kernel", 512, 256, 81920)], [k])

if __name__ == "__main__":
    out = sys.argv[1]
    X = tuple(x for x in sys.argv[2:] if x != "T")
    open(out, "w").write(build(X, "T" in sys.argv[2:]))
```

```python
import sys
sys.path.insert(0, "dev")
sys.path.insert(0, "f")
from gen import *
from kgen import LOG2E, LOG2E_LO, LN2, dpp_sum, dpp_sum2
from pp import spin_wait, nonce_get, X_get, WS_F1, WS_F3

KT_ROW = 1056
KT0 = 1056
KT_CH = 20 * KT_ROW
UB = 42240

def qrole(a, tim=None, X=()):
    SU, SWD, SWS = 32, 36, 48
    DBG, WSP, NON, CNT = 40, 42, 44, 46
    UTST, WFST = 65536, 73728
    GU, GW0 = 240, 248
    NV, PV = 252, 254
    UR, WR = 224, 232
    a("""
    s_load_dwordx16 s[4:19], s[0:1], 0
    s_load_dwordx2 s[20:21], s[0:1], 64
    s_load_dwordx4 s[24:27], s[0:1], 96
    s_load_dwordx4 s[40:43], s[0:1], 120
    s_load_dwordx4 s[52:55], s[0:1], 80
    s_and_b32 s3, s2, 255
    v_lshrrev_b32 v22, 6, v0
    v_and_b32 v1, 63, v0
    s_lshl_b32 s56, s3, 9
    v_readfirstlane_b32 s28, v22
    v_lshlrev_b32 v23, 1, v0
    v_add_u32 v23, s56, v23            ; (id2*256+tid)*2
    v_lshrrev_b32 v24, 7, v0
    v_lshlrev_b32 v24, 1, v24
    s_lshl_b32 s56, s3, 2
    v_add_u32 v24, s56, v24            ; ch*2
    s_and_b32 s29, s28, 1
    """)
    a("""
    s_lshl_b32 s56, s3, 3
    s_lshl_b32 s57, s28, 1
    s_add_u32 s30, s56, s57            ; token0
    s_lshl_b32 s56, s30, 10
    v_lshlrev_b32 v25, 4, v1           ; lane*16
    v_add_u32 v26, s56, v25
    """)
    a("""
    s_lshr_b32 s58, s3, 4              ; tokblk
    s_and_b32 s59, s3, 15              ; chgrp
    s_lshl_b32 s56, s58, 7
    s_add_u32 s56, s56, s28
    s_lshl_b32 s56, s56, 10
    s_lshl_b32 s57, s59, 6
    s_add_u32 s56, s56, s57
    v_lshrrev_b32 v27, 2, v1
    v_lshlrev_b32 v27, 12, v27
    v_and_b32 v28, 3, v1
    v_lshlrev_b32 v28, 4, v28
    v_add3_u32 v27, v27, v28, s56
    """)
    a("""
    s_lshl_b32 s56, s3, 2
    s_add_u32 s56, s56, s28
    s_lshr_b32 s60, s56, 3             ; ks
    s_and_b32 s61, s56, 7              ; cb64
    s_lshl_b32 s56, s60, 14
    s_lshl_b32 s57, s61, 7
    s_add_u32 s56, s56, s57
    v_lshrrev_b32 v28, 3, v1
    v_lshlrev_b32 v28, 10, v28
    v_and_b32 v29, 7, v1
    v_lshlrev_b32 v29, 4, v29
    v_add3_u32 v28, v28, v29, s56
    s_lshl_b32 s62, s28, 11            ; w*2048
    s_waitcnt lgkmcnt(0)
    """)
    for i, p in enumerate((6, 8, 10, 12, 14, 16)):
        a.vmop(f"global_load_ushort v{2+i}, v23, s[{p}:{p+1}]", "in")
    a.vmop("global_load_ushort v8, v24, s[18:19]", "in")
    a.vmop("global_load_ushort v9, v24, s[20:21]", "in")
    srd_from(a, SU, 4, 5, 2048 * 1024)
    srd_from(a, SWD, 24, 25, 1376 * 1024)
    a(f"s_add_u32 m0, s62, {UTST}")
    a("s_mov_b32 s56, 65536")
    a.vmop(f"buffer_load_dwordx4 v27, s[{SU}:{SU+3}], 0 offen lds", "ut")
    a(f"s_add_u32 m0, s62, {UTST + 1024}")
    a("s_nop 0")
    a.vmop(f"buffer_load_dwordx4 v27, s[{SU}:{SU+3}], s56 offen lds", "ut")
    a(f"s_add_u32 m0, s62, {WFST}")
    a("s_mov_b32 s56, 8192")
    a.vmop(f"buffer_load_dwordx4 v28, s[{SWD}:{SWD+3}], 0 offen lds", "wf")
    a(f"s_add_u32 m0, s62, {WFST + 1024}")
    a("s_nop 0")
    a.vmop(f"buffer_load_dwordx4 v28, s[{SWD}:{SWD+3}], s56 offen lds", "wf")
    a.vmop(f"global_load_dwordx4 v[{GU}:{GU+3}], v26, s[4:5]", "g")
    a.vmop(f"global_load_dwordx4 v[{GU+4}:{GU+7}], v26, s[4:5] offset:1024", "g")
    a.vmop(f"global_load_dwordx4 v[{GW0}:{GW0+3}], v25, s[26:27]", "g")
    srd_from(a, SWS, WSP, WSP + 1, WS_END)
    a(f"""
    v_lshrrev_b32 v10, 4, v1           ; g
    v_lshlrev_b32 v11, 3, v10
    v_bfe_u32 v12, v1, 2, 2            ; r
    v_add_u32 v11, v11, v12
    v_sub_u32 v11, 27, v11
    v_lshlrev_b32 v11, 6, v11
    v_and_b32 v13, 3, v1
    v_lshlrev_b32 v13, 3, v13          ; c*8
    s_add_u32 s56, s62, {UTST}
    v_add3_u32 v14, v11, v13, s56
    v_lshrrev_b32 v11, 5, v1
    v_lshlrev_b32 v11, 3, v11
    v_add_u32 v11, v11, v12
    v_lshlrev_b32 v11, 7, v11
    v_and_b32 v15, 1, v10
    v_lshlrev_b32 v15, 5, v15
    v_add3_u32 v11, v11, v15, v13
    s_add_u32 s56, s62, {WFST}
    v_add_u32 v15, s56, v11
    s_lshl_b32 s56, s58, 2
    s_add_u32 s56, s56, s28
    s_lshl_b32 s56, s56, 9
    s_lshl_b32 s57, s59, 5
    s_add_u32 s56, s56, s57
    s_lshl_b32 s56, s56, 6
    s_add_u32 s56, s56, {WS_UT}
    v_and_b32 v16, 15, v1
    v_lshlrev_b32 v16, 6, v16
    v_lshlrev_b32 v17, 4, v10
    v_add3_u32 v16, v16, v17, s56
    s_mul_i32 s56, s61, 172
    s_add_u32 s56, s56, s60
    s_lshl_b32 s56, s56, 10
    s_add_u32 s56, s56, {WS_WF}
    s_cmp_ge_u32 s60, 86
    s_cselect_b32 s64, 0x10000000, s56
    s_add_u32 s65, s64, 88064
    """)
    a(f"""
    s_lshl_b32 s56, s3, 7
    s_lshl_b32 s57, s28, 3
    s_add_u32 s56, s56, s57
    s_add_u32 s56, s56, {WS_F1}
    v_mov_b32 v17, s56
    s_lshr_b32 s56, s3, 4
    s_lshl_b32 s56, s56, 7
    s_add_u32 s56, s56, {WS_F1}
    v_lshrrev_b32 v18, 2, v1
    v_lshlrev_b32 v18, 11, v18
    v_and_b32 v19, 3, v1
    v_lshlrev_b32 v19, 3, v19
    v_add3_u32 v18, v18, v19, s56
    v_mov_b32 v19, 0
    s_mov_b64 s[66:67], -1
    """)
    a(f"""
    s_lshr_b32 s31, s28, 1                    ; cl
    s_lshl_b32 s47, s3, 1
    s_add_u32 s47, s47, s31                   ; ch
    v_lshrrev_b32 v20, 2, v1
    v_sub_u32 v20, 15, v20
    v_lshlrev_b32 v20, 17, v20
    v_and_b32 v21, 3, v1
    v_lshlrev_b32 v21, 4, v21
    s_lshl_b32 s56, s29, 16
    s_lshl_b32 s57, s47, 6
    s_add_u32 s56, s56, s57
    s_add_u32 s56, s56, {WS_UT}
    v_add3_u32 v20, v20, v21, s56
    """)

    L2H = X_get(X, "l2", -99)
    if L2H != -99:
        a("""
        s_lshr_b32 s56, s3, 3                     ; j
        s_cmp_ge_u32 s56, 16
        s_cselect_b32 s52, s54, s52
        s_cselect_b32 s53, s55, s53
        s_mov_b32 s54, 1409024
        s_mov_b32 s55, 0x00020000
        s_and_b32 s57, s56, 15
        s_lshl_b32 s57, s57, 3
        s_add_u32 s57, s57, 96
        v_lshrrev_b32 v10, 5, v0
        v_add_u32 v10, s57, v10
        v_mul_u32_u24 v10, 2752, v10
        v_and_b32 v11, 31, v0
        s_and_b32 s57, s3, 1
        s_mul_i32 s58, s57, 1536
        s_cmp_eq_u32 s57, 0
        s_cselect_b32 s57, 24, 19
        v_lshlrev_b32 v12, 6, v11
        v_add3_u32 v12, v12, v10, s58
        v_cmp_gt_u32 vcc, s57, v11
        v_mov_b32 v10, 0x8000000
        v_cndmask_b32 v12, v10, v12, vcc
        s_bfe_u32 s57, s3, 0x20001                ; x>>1
        s_lshl_b32 s57, s57, 19
        s_lshl_b32 s58, s56, 14                   ; j*16 rows*1024
        s_add_u32 s57, s57, s58
        v_lshrrev_b32 v11, 4, v0
        v_lshlrev_b32 v11, 10, v11
        v_and_b32 v13, 15, v0
        v_cmp_le_u32 vcc, 4, v13
        v_lshlrev_b32 v13, 6, v13
        v_add3_u32 v13, v13, v11, s57
        v_cndmask_b32 v13, v10, v13, vcc
        """)
    def l2pf():
        a.vmop("buffer_load_dword v28, v12, s[52:55], 0 offen", "l2")
        a.vmop(f"buffer_load_dword v28, v13, s[{SU}:{SU+3}], 0 offen", "l2")
        for i in (1, 2, 3):
            a(f"s_mov_b32 s56, {i*128*2752}")
            a.vmop("buffer_load_dword v28, v12, s[52:55], s56 offen", "l2")

    Q = lambda q: (32 + 2 * q, 33 + 2 * q)
    T0 = lambda c: (64 + 2 * c, 65 + 2 * c)
    T1 = lambda c: (96 + 2 * c, 97 + 2 * c)
    T2 = lambda c: (128 + 2 * c, 129 + 2 * c)
    KE = (160, 161)
    E1, E64, E512, E128, E192, E256, E2, E3 = [(162 + 2 * i, 163 + 2 * i) for i in range(8)]
    E4 = Q(1)
    tcnt = [0]
    def cmul(d, x, y):
        t = 178 + 2 * (tcnt[0] % 4); tcnt[0] += 1
        assert x[0] % 2 == 0 and y[0] % 2 == 0 and d[0] % 2 == 0 and x[1] == x[0] + 1 and y[1] == y[0] + 1 and d[1] == d[0] + 1
        if "nopk" in X:
            a(f"v_mul_f32 v{t}, v{x[1]}, v{y[1]}")
            a(f"v_mul_f32 v{t+1}, v{x[1]}, v{y[0]}")
            a(f"v_fma_f32 v{d[0]}, v{x[0]}, v{y[0]}, -v{t}")
            a(f"v_fma_f32 v{d[1]}, v{x[0]}, v{y[1]}, v{t+1}")
            return
        a(f"v_pk_mul_f32 v[{t}:{t+1}], v[{x[0]}:{x[1]}], v[{y[0]}:{y[1]}] op_sel:[1,1] op_sel_hi:[1,0]")
        pend.append(f"v_pk_fma_f32 v[{d[0]}:{d[1]}], v[{x[0]}:{x[1]}], v[{y[0]}:{y[1]}], v[{t}:{t+1}] op_sel:[0,0,0] op_sel_hi:[0,1,1] neg_lo:[0,0,1]")
        a(pend.pop(0))
    pend = []
    PK = lambda g, part: 192 + (g * 2 + part) * 4 if g < 4 else 192 + ((g - 4) * 2 + part) * 4
    a("""
    v_and_b32 v30, 127, v0
    v_lshlrev_b32 v30, 4, v30
    v_lshrrev_b32 v31, 7, v0
    v_lshlrev_b32 v31, 15, v31
    v_add_u32 v30, v30, v31
    v_xor_b32 v31, 64, v30
    """)
    def put_group(g, cols, negim):
        if g >= 4:
            a.need(lg=("tw", g - 4))
        for part in range(2):
            for i in range(4):
                x, y = cols[2 * i][part], cols[2 * i + 1][part]
                n = "-" if (negim and part == 1) else ""
                a(f"v_cvt_pk_bf16_f32 v{PK(g,part)+i}, {n}v{x}, {n}v{y}")
            p = PK(g, part)
            a.lgop(f"ds_write_b128 v{30 + (g & 1)}, v[{p}:{p+3}] offset:{g*4096 + part*2048}", ("tw", g))

    def prep_rd():
        a.need(vm="wf")
        for cg in range(2):
            a.lgop(f"ds_read_b64_tr_b16 v[{UR+4*cg}:{UR+4*cg+1}], v14 offset:{256 + cg*32}", "utr")
            a.lgop(f"ds_read_b64_tr_b16 v[{UR+4*cg+2}:{UR+4*cg+3}], v14 offset:{cg*32}", "utr")
        for h in range(2):
            a.lgop(f"ds_read_b64_tr_b16 v[{WR+4*h}:{WR+4*h+1}], v15 offset:{h*64}", "wtr")
            a.lgop(f"ds_read_b64_tr_b16 v[{WR+4*h+2}:{WR+4*h+3}], v15 offset:{h*64 + 512}", "wtr")
    def prep_st():
        a.need(lg="utr")
        a.vmop(f"buffer_store_dwordx4 v[{UR}:{UR+3}], v16, s[{SWS}:{SWS+3}], 0 offen sc1", "st")
        a.vmop(f"buffer_store_dwordx4 v[{UR+4}:{UR+7}], v16, s[{SWS}:{SWS+3}], 0 offen offset:1024 sc1", "st")
        a.need(lg="wtr")
        a.vmop(f"buffer_store_dwordx4 v[{WR}:{WR+3}], v25, s[{SWS}:{SWS+3}], s64 offen sc1", "st")
        a.vmop(f"buffer_store_dwordx4 v[{WR+4}:{WR+7}], v25, s[{SWS}:{SWS+3}], s65 offen sc1", "st")
        a.vmop(f"global_load_dwordx2 v[{NV}:{NV+1}], v19, s[{DBG}:{DBG+1}] sc1", "non")
    def prep_flag():
        nonce_get(a, "Qn", NV, NON, DBG, 19, "non", cnt=CNT)
        a.need(vm="st")
        a(f"v_mov_b32 v{NV}, s{NON}\nv_mov_b32 v{NV+1}, s{NON+1}\ns_mov_b64 exec, 1")
        a.vmop(f"buffer_store_dwordx2 v[{NV}:{NV+1}], v17, s[{SWS}:{SWS+3}], 0 offen sc1", "f1")
        a("s_mov_b64 exec, -1")

    PR, PS, PFL = X_get(X, "pr", 0), X_get(X, "ps", 1), X_get(X, "pf", 5)
    QP, QM = X_get(X, "qp", 0), X_get(X, "qm", 0)
    QX = X_get(X, "qx", 0)
    def hook(g):
        if g == PR: prep_rd()
        if g == PS: prep_st()
        if g == L2H: l2pf()
        if g == PFL:
            prep_flag()
            if QP != QM: a(f"s_setprio {QM}")
            if QX == 1: a("s_waitcnt vmcnt(0)\ns_endpgm")
    if QP: a(f"s_setprio {QP}")
    if tim: tim(a, 1)
    a.need(vm="in")
    if tim: tim(a, 2)
    hook(-3)
    DT, LR, REV = 22, 23, 24
    a(f"""
    v_lshlrev_b32 v8, 16, v8
    s_mov_b32 s56, {LOG2E}
    s_mov_b32 s57, {LOG2E_LO}
    s_mov_b32 s63, {LN2}
    v_mul_f32 v186, s56, v8
    v_exp_f32 v187, v186
    v_fma_f32 v188, v8, s56, -v186
    v_fma_f32 v188, v8, s57, v188
    v_mul_f32 v188, s63, v188
    v_fma_f32 v187, v187, v188, v187
    """)
    for i in range(6):
        a(f"v_lshlrev_b32 v{2+i}, 16, v{2+i}")
    a(f"v_cvt_pk_bf16_f32 v{DT}, 0, v187")
    a("v_lshlrev_b32 v9, 16, v9")
    a(f"""
    v_mul_f32 v2, v{DT}, v2
    v_mul_f32 v3, v{DT}, v3
    v_mul_f32 v4, v{DT}, v4
    v_mul_f32 v5, v{DT}, v5
    v_mul_f32 v{LR}, s56, v2
    v_mul_f32 v{REV}, 0.15915494, v3
    """)
    def anchor(E, L, t):
        Lf = {1: None, 4: "4.0", 64: "0x42800000", 512: "0x44000000"}[L]
        if Lf is None:
            a(f"v_exp_f32 v{t}, v{LR}")
            a(f"v_fract_f32 v{t+1}, v{REV}")
        else:
            a(f"v_mul_f32 v{t}, {Lf}, v{LR}")
            a(f"v_mul_f32 v{t+1}, {Lf}, v{REV}")
            a(f"v_exp_f32 v{t}, v{t}")
            a(f"v_fract_f32 v{t+1}, v{t+1}")
    def anchor2(E, t):
        a(f"v_cos_f32 v{E[0]}, v{t+1}")
        a(f"v_sin_f32 v{E[1]}, v{t+1}")
    def anchor3(E, t):
        a(f"v_mul_f32 v{E[0]}, v{t}, v{E[0]}")
        a(f"v_mul_f32 v{E[1]}, v{t}, v{E[1]}")
    hook(-2)
    lst = [(E4, 4, 186), (E64, 64, 188), (E1, 1, 190), (E512, 512, 26)]
    for E, L, t in lst: anchor(E, L, t)
    cmul(T0(0), (6, 7), (4, 5))
    for E, L, t in lst: anchor2(E, t)
    a("s_nop 0")
    for E, L, t in lst: anchor3(E, t)
    a(f"v_mov_b32 v{Q(0)[0]}, 1.0\nv_mov_b32 v{Q(0)[1]}, 0")
    cmul(Q(2), E4, E4)
    cmul(E128, E64, E64)
    cmul(Q(3), Q(2), E4)
    cmul(E2, E1, E1)
    cmul(Q(4), Q(2), Q(2))
    cmul(E192, E128, E64)
    cmul(E256, E128, E128)
    cmul(E3, E2, E1)
    hook(-1)
    for q in range(5, 8): cmul(Q(q), Q(4), Q(q - 4))
    cmul(Q(8), Q(4), Q(4))
    put_group(0, [Q(q) for q in range(8)], True); hook(0)
    for q in range(9, 16): cmul(Q(q), Q(8), Q(q - 8))
    put_group(1, [Q(q) for q in range(8, 16)], True); hook(1)
    cmul(T0(4), T0(0), E1); cmul(T0(8), T0(0), E2); cmul(T0(12), T0(0), E3)
    cmul(T1(8), T0(0), E512)
    for b in range(4):
        for p, E in ((1, E64), (2, E128), (3, E192)):
            cmul(T0(4 * b + p), T0(4 * b), E)
        cmul(T1(9 + b), T1(8 + b), E64) if b < 3 else None
        if b == 1: put_group(2, [T0(c) for c in range(8)], False); hook(2)
    put_group(3, [T0(c) for c in range(8, 16)], False); hook(3)
    chain = [T1(8 + p) for p in range(8)] + [T2(p) for p in range(16)] + [KE]
    nxt = 4
    for c in range(8):
        src = T0(8 + c) if c < 4 else T0(c - 4)
        cmul(T1(c), src, E256)
        if nxt < 8:
            cmul(chain[nxt], chain[nxt - 1], E64); nxt += 1
    put_group(4, [T1(c) for c in range(8)], False); hook(4)
    put_group(5, [T1(c) for c in range(8, 16)], False); hook(5)
    cmul(chain[8], chain[7], E64)
    for p in range(9, 25):
        cmul(chain[p], chain[p - 2], E128)
        if p == 15: put_group(6, [T2(c) for c in range(8)], False); hook(6)
        if p == 23: put_group(7, [T2(c) for c in range(8, 16)], False); hook(7)

    if tim: tim(a, 3)
    if QX == 2: a("s_waitcnt vmcnt(0)\ns_endpgm")
    a.vmop(f"buffer_load_dwordx2 v[{PV}:{PV+1}], v18, s[{SWS}:{SWS+3}], 0 offen sc1", "poll")
    dpp_sum(a, KE[0])
    a("s_nop 0")
    a(f"v_readlane_b32 s68, v{KE[0]}, 63")
    a(f"s_add_u32 s56, s62, {WFST}")
    a("v_mov_b32 v3, s56")
    a("v_mov_b32 v4, s68")
    a.lgop("ds_write_b32 v3, v4", "kp")

    a("""
    v_lshrrev_b32 v2, 4, v1            ; kg
    v_lshlrev_b32 v3, 3, v2
    v_bfe_u32 v4, v1, 2, 2             ; r
    v_add_u32 v3, v3, v4
    v_lshlrev_b32 v3, 4, v3
    v_bfe_u32 v5, v1, 1, 1             ; c>>1
    v_lshlrev_b32 v6, 6, v5
    v_xor_b32 v3, v3, v6
    v_lshlrev_b32 v5, 12, v5
    v_and_b32 v6, 1, v1
    v_lshlrev_b32 v6, 3, v6
    v_add3_u32 v3, v3, v5, v6
    s_lshr_b32 s56, s28, 1
    s_lshl_b32 s57, s56, 15            ; cl*32768
    v_add_u32 v10, s57, v3             ; q1
    v_xor_b32 v11, 64, v10             ; q2
    s_cmp_eq_u32 s29, 0
    s_mov_b32 s69, 24576
    s_cselect_b32 s71, 8192, s69
    s_cselect_b32 s70, 16384, s69
    v_add_u32 v12, s71, v10
    v_add_u32 v13, s71, v11
    v_add_u32 v14, s70, v10
    v_add_u32 v15, s70, v11
    """)
    a("v_mov_b32 v29, v18")
    APOLL = 29
    a(f"""
    s_lshl_b32 s68, s56, 12
    s_add_u32 s68, s68, {UTST}
    v_and_b32 v16, 15, v1              ; col
    v_lshlrev_b32 v17, 3, v2           ; 8g
    v_lshlrev_b32 v18, 5, v16          ; 32col
    v_add3_u32 v18, v18, v17, s68      ; base+32col+8g
    v_bfe_u32 v19, v1, 2, 2
    v_lshlrev_b32 v19, 7, v19          ; b*128
    v_and_b32 v21, 3, v1
    v_lshlrev_b32 v21, 5, v21
    v_add3_u32 v19, v19, v21, v17
    v_add_u32 v19, s68, v19
    v_add_u32 v21, 1024, v18
    s_cmp_eq_u32 s29, 0
    s_cselect_b64 vcc, -1, 0
    v_cndmask_b32 v16, v21, v19, vcc   ; vSA
    v_add_u32 v17, 512, v18
    v_cndmask_b32 v17, v21, v17, vcc   ; vSB
    """)
    spin_wait(a, "Qf1", APOLL, PV, SWS, 66, NON, "poll", cnt=CNT)
    a.vmdone = len(a.vm)
    a.vmop(f"buffer_load_dwordx4 v[{UR}:{UR+3}], v20, s[{SWS}:{SWS+3}], 0 offen sc1", "u")
    a("s_mov_b32 s56, 32768")
    a.vmop(f"buffer_load_dwordx4 v[{UR+4}:{UR+7}], v20, s[{SWS}:{SWS+3}], s56 offen sc1", "u")
    if tim: tim(a, 4)
    a("""
    v_cmp_eq_u32 vcc, 0, v1
    s_cmp_eq_u32 s29, 0
    s_cselect_b64 s[70:71], vcc, 0
    v_mov_b32 v21, 0
    v_mov_b32 v22, 0
    v_mov_b32 v23, 0
    v_cndmask_b32 v20, 0, v9, s[70:71]
    """)
    a(f"""
    s_lshr_b32 s56, s28, 1
    s_lshl_b32 s56, s56, 12
    s_add_u32 s56, s56, {WFST}
    v_mov_b32 v24, s56
    """)
    a.drain(vm=False, lg=True)
    a("s_barrier")
    QF, AF_, BF_ = 32, 64, 96
    a.lgop("ds_read_b32 v25, v24", "k2")
    a.lgop("ds_read_b32 v26, v24 offset:2048", "k2")
    for s in range(8):
        for (F, r1, r2, tag) in ((QF, 10, 11, "q"), (AF_, 12, 13, "a"), (BF_, 14, 15, "b")):
            a.lgop(f"ds_read_b64_tr_b16 v[{F+4*s}:{F+4*s+1}], v{r1} offset:{s*512}", (tag, s))
            a.lgop(f"ds_read_b64_tr_b16 v[{F+4*s+2}:{F+4*s+3}], v{r2} offset:{s*512}", (tag, s))
    DA, DB = 128, 132
    a.need(lg="k2")
    a("v_add_f32 v25, v25, v26")
    a(f"s_add_u32 s56, s68, 1536")
    a("v_mov_b32 v27, s56")
    a("v_cvt_pk_bf16_f32 v25, v25, v25")
    for s in range(8):
        a.need(lg=[("q", s), ("a", s)])
        ca = "v[20:23]" if s == 0 else f"v[{DA}:{DA+3}]"
        a(f"v_mfma_f32_16x16x32_bf16 v[{DA}:{DA+3}], v[{QF+4*s}:{QF+4*s+3}], v[{AF_+4*s}:{AF_+4*s+3}], {ca}")
        a.need(lg=("b", s))
        cb = "0" if s == 0 else f"v[{DB}:{DB+3}]"
        a(f"v_mfma_f32_16x16x32_bf16 v[{DB}:{DB+3}], v[{QF+4*s}:{QF+4*s+3}], v[{BF_+4*s}:{BF_+4*s+3}], {cb}")
    a.lgop("ds_write_b16 v27, v25", "sw")
    I_, S_, LLp, LL = 0x03020100, 0x05040302, 0x05040100, 0x01000100
    a(f"""
    v_lshlrev_b32 v2, 4, v1            ; 16*lambda
    v_add_u32 v2, s68, v2
    s_lshl_b32 s56, s29, 8             ; 2p*128
    v_add_u32 v3, s56, v2              ; T0 row A
    v_add_u32 v4, 128, v3              ; T0 row B
    v_add_u32 v5, 512, v2              ; E4
    v_add_u32 v6, 384, v2              ; E2
    v_cmp_gt_u32 vcc, 16, v1
    s_cmp_eq_u32 s29, 1
    s_cselect_b64 s[70:71], vcc, 0
    v_cndmask_b32 v6, v5, v6, s[70:71]
    v_cmp_gt_u32 vcc, 8, v1
    v_cndmask_b32 v6, v6, v3, vcc
    v_cndmask_b32 v7, v5, v4, vcc
    s_cselect_b32 s56, 16, 32          ; thrA
    s_mov_b32 s72, {I_}
    s_mov_b32 s73, {S_}
    s_mov_b32 s74, {LLp}
    s_cselect_b32 s69, s74, {LL}
    s_cselect_b32 s76, s73, s72
    v_mov_b32 v8, s72
    v_mov_b32 v9, s76
    v_cndmask_b32 v9, v9, v8, vcc
    v_mov_b32 v10, s74
    v_cmp_gt_u32 vcc, 32, v1
    v_cndmask_b32 v9, v10, v9, vcc     ; selB
    v_cmp_gt_u32 vcc, s56, v1
    v_cndmask_b32 v11, v10, v8, vcc
    v_mov_b32 v12, s69
    v_cndmask_b32 v12, v12, v8, vcc
    """)
    a(f"v_cvt_pk_bf16_f32 v136, v{DA}, v{DA+1}")
    a(f"v_cvt_pk_bf16_f32 v137, v{DA+2}, v{DA+3}")
    a(f"v_cvt_pk_bf16_f32 v138, v{DB}, v{DB+1}")
    a(f"v_cvt_pk_bf16_f32 v139, v{DB+2}, v{DB+3}")
    a.lgop("ds_write_b64 v16, v[136:137]", "sw")
    a.lgop("ds_write_b64 v17, v[138:139]", "sw")

    def gcalc():
        GW = 64
        a.need(vm="g")
        for i in range(4):
            a(f"v_lshlrev_b32 v{GW+2*i}, 16, v{GW0+i}")
            a(f"v_and_b32 v{GW+2*i+1}, 0xffff0000, v{GW0+i}")
        for tk in range(2):
            Xr = 72 + 8 * tk
            for i in range(4):
                a(f"v_lshlrev_b32 v{Xr+2*i}, 16, v{GU+4*tk+i}")
                a(f"v_and_b32 v{Xr+2*i+1}, 0xffff0000, v{GU+4*tk+i}")
            for i in range(8):
                a(f"v_mul_f32 v{Xr+i}, v{Xr+i}, v{GW+i}")
            for i in range(8):
                a(f"v_cvt_pk_bf16_f32 v{Xr+i}, 0, v{Xr+i}")
            for st in (4, 2, 1):
                for i in range(st):
                    a(f"v_add_f32 v{Xr+i}, v{Xr+i}, v{Xr+i+st}")
        dpp_sum2(a, 72, 80)
        a(f"s_mov_b32 s56, {LOG2E | 0x80000000}")
        for tk in range(2):
            a(f"v_cvt_pk_bf16_f32 v{72+8*tk}, 0, v{72+8*tk}")
        for tk in range(2):
            a(f"v_mul_f32 v{72+8*tk}, s56, v{72+8*tk}")
        for tk in range(2):
            a(f"v_exp_f32 v{72+8*tk}, v{72+8*tk}")
        a("s_nop 0")
        for tk in range(2):
            a(f"v_add_f32 v{72+8*tk}, 1.0, v{72+8*tk}")
        for tk in range(2):
            a(f"v_rcp_f32 v{72+8*tk}, v{72+8*tk}")
        a("s_nop 0")
        a("v_cvt_pk_bf16_f32 v88, 0, v72")
        a("v_cvt_pk_bf16_f32 v90, 0, v80")
        a("v_sub_f32 v89, 1.0, v88")
        a("v_sub_f32 v91, 1.0, v90")
        a("v_cvt_pk_bf16_f32 v89, 0, v89")
        a("v_cvt_pk_bf16_f32 v91, 0, v91")
        a("s_lshl_b32 s56, s30, 3")
        a(f"s_add_u32 s56, s56, {WS_G}")
        a("v_mov_b32 v92, s56")
        a("s_lshl_b64 exec, 1, 63")
        a.vmop(f"buffer_store_dwordx4 v[88:91], v92, s[{SWS}:{SWS+3}], 0 offen sc1", "gst")
        a("s_mov_b64 exec, -1")
    gcalc()

    cAT, cZ, cT, cB, cW0, cW1, cR0, cR1, cA0, cA1, cU = 232, 233, 234, 235, 236, 237, 238, 239, 240, 241, 242
    ZR = 244
    t0, t1, t2, t3, tj, tg, tl = 248, 249, 250, 251, 243, 252, 253
    assert KT0 == KT_ROW
    a(f"""
    v_lshlrev_b32 v{tl}, 4, v1                ; lane*16
    s_lshl_b32 s56, s47, 12
    s_lshl_b32 s57, s29, 11
    s_add_u32 s56, s56, s57
    s_add_u32 s56, s56, {WS_AT}
    v_add_u32 v{cAT}, s56, v{tl}
    s_lshl_b32 s56, s31, 2
    s_lshl_b32 s57, s29, 1
    s_add_u32 s56, s56, s57
    s_mul_i32 s56, s56, 1280
    s_add_u32 s77, s56, {UB}
    v_add_u32 v{cU}, s77, v{tl}
    v_bfe_u32 v{t0}, v1, 4, 1
    v_mul_u32_u24 v{t0}, 1280, v{t0}
    v_and_b32 v{tj}, 15, v1                   ; i / j
    v_lshlrev_b32 v{t1}, 4, v{tj}
    v_add3_u32 v{cZ}, v{t0}, v{t1}, s77
    v_mov_b32 v{ZR}, 0
    v_mov_b32 v{ZR+1}, 0
    v_mov_b32 v{ZR+2}, 0
    v_mov_b32 v{ZR+3}, 0
    s_mul_i32 s58, s31, {KT_CH}
    s_mul_i32 s57, s29, {2*KT_ROW}
    s_add_u32 s56, s58, s57
    v_add_u32 v{cT}, s56, v{tl}
    v_lshrrev_b32 v{tg}, 4, v1                ; kg / g
    s_lshl_b32 s57, s29, 1
    s_sub_u32 s57, 4, s57
    v_add_u32 v{t0}, s57, v{tj}
    v_mul_u32_u24 v{t0}, {KT_ROW}, v{t0}
    v_lshlrev_b32 v{t1}, 4, v{tg}
    v_add3_u32 v{cA0}, v{t0}, v{t1}, s58
    v_subrev_u32 v{cA1}, {KT_ROW}, v{cA0}
    v_sub_u32 v{t0}, v{tg}, v{tj}
    v_add_u32 v{t0}, 15, v{t0}
    v_lshlrev_b32 v{t0}, 4, v{t0}
    v_add_u32 v{cB}, s77, v{t0}
    v_and_b32 v{t0}, 3, v{tj}
    v_lshlrev_b32 v{t0}, 1, v{t0}
    v_bfe_u32 v{t1}, v{tj}, 2, 1
    v_or_b32 v{t0}, v{t0}, v{t1}
    v_xor_b32 v{t0}, v{t0}, v{tg}
    v_lshlrev_b32 v{t0}, 4, v{t0}
    v_lshlrev_b32 v{t1}, 7, v{tj}
    s_lshl_b32 s56, s28, 13
    v_add3_u32 v{cW0}, v{t0}, v{t1}, s56
    v_xor_b32 v{cW1}, 64, v{cW0}
    v_lshrrev_b32 v{t0}, 2, v1                ; j
    v_and_b32 v{t1}, 3, v{t0}
    v_lshlrev_b32 v{t1}, 1, v{t1}
    v_bfe_u32 v{t2}, v{t0}, 2, 1
    v_or_b32 v{t1}, v{t1}, v{t2}
    v_and_b32 v{t2}, 3, v1
    v_lshlrev_b32 v{t2}, 1, v{t2}
    v_xor_b32 v{t1}, v{t1}, v{t2}
    v_lshlrev_b32 v{t1}, 4, v{t1}
    v_lshlrev_b32 v{t0}, 7, v{t0}
    s_lshl_b32 s56, s31, 14
    s_lshl_b32 s57, s29, 12
    s_add_u32 s56, s56, s57
    v_add3_u32 v{cR0}, v{t0}, v{t1}, s56
    v_xor_b32 v{cR1}, 16, v{cR0}
    """)
    a.drain(vm=False, lg=True)
    a("s_barrier")
    if tim: tim(a, 5)
    XA, XB = 32, 40
    a.lgop(f"ds_read_b128 v[{XA}:{XA+3}], v6", "xa")
    a.lgop(f"ds_read_b32 v{XA+4}, v6 offset:16", "xa")
    a.lgop(f"ds_read_b128 v[{XB}:{XB+3}], v7", "xb")
    a.lgop(f"ds_read_b32 v{XB+4}, v7 offset:16", "xb")
    a.lgop(f"ds_write_b128 v{cZ}, v[{ZR}:{ZR+3}] offset:1024", "z")
    R0, R1 = 46, 52
    OA, OB = R0 + 2, R1 + 2
    T = 64
    for i, R, XX in ((0, R0, XA), (1, R1, XB)):
        a.need(lg="xa" if i == 0 else "xb")
        for j in range(4):
            sel = (12 if j % 2 == 0 else 11) if i == 0 else 9
            a(f"v_perm_b32 v{R+2+j}, v{XX+j+1}, v{XX+j}, v{sel}")
        a("s_nop 1")
        a(f"v_mov_b32_dpp v{R}, v{R+4} wave_shr:1 row_mask:0xf bank_mask:0xf bound_ctrl:1")
        a(f"v_mov_b32_dpp v{R+1}, v{R+5} wave_shr:1 row_mask:0xf bank_mask:0xf bound_ctrl:1")
        tb = T + 12 * i
        def off(m): return (4 * m + 16 + i) * KT_ROW
        a.lgop(f"ds_write_b128 v{cT}, v[{R+2}:{R+5}] offset:{off(0)}", "t")
        for j in range(4):
            a(f"v_alignbit_b32 v{tb+j}, v{R+2+j}, v{R+1+j}, 16")
        a.lgop(f"ds_write_b128 v{cT}, v[{tb}:{tb+3}] offset:{off(-1)}", "t")
        for j in range(4):
            a(f"v_mov_b32 v{tb+4+j}, v{R+1+j}")
        a.lgop(f"ds_write_b128 v{cT}, v[{tb+4}:{tb+7}] offset:{off(-2)}", "t")
        for j in range(4):
            a(f"v_alignbit_b32 v{tb+8+j}, v{R+1+j}, v{R+j}, 16")
        a.lgop(f"ds_write_b128 v{cT}, v[{tb+8}:{tb+11}] offset:{off(-3)}", "t")
        a.lgop(f"ds_write_b128 v{cT}, v[{R}:{R+3}] offset:{off(-4)}", "t")
    a.need(vm="u")
    a.lgop(f"ds_write_b128 v{cU}, v[{UR}:{UR+3}]", "uw")
    a.lgop(f"ds_write_b128 v{cU}, v[{UR+4}:{UR+7}] offset:1280", "uw")
    a.drain(vm=False, lg=True)
    a("s_barrier")
    if tim: tim(a, 6)
    if QX == 3: a("s_waitcnt vmcnt(0)\ns_endpgm")
    prio = X_get(X, "cprio", 1)
    if prio: a(f"s_setprio {prio}")
    D = 4; NB = D + 1
    ACC = lambda eta, z: 32 + (eta * 2 + z) * 4
    AF = lambda e, w: 64 + 64 * e + 4 * w
    BF = lambda b: 192 + 6 * b
    NS = 32
    def rd(s):
        e, st = s >> 4, s & 15
        b = BF(s % NB)
        a.lgop(f"ds_read_b128 v[{AF(e,st)}:{AF(e,st)+3}], v{cA0+e} offset:{64*st}", ("A", s))
        o = st * 64 + e * 1280
        a.lgop(f"ds_read_b128 v[{b}:{b+3}], v{cB} offset:{o}", ("B", s))
        a.lgop(f"ds_read_b64 v[{b+4}:{b+5}], v{cB} offset:{o+16}", ("B", s))
    for s in range(D): rd(s)
    first = set()
    for s in range(NS):
        e, st = s >> 4, s & 15
        v = 12 - st
        b = BF(s % NB)
        a.need(lg=[("A", s), ("B", s)])
        n = 0
        for eta in (3, 2, 1, 0):
            w = 4 * eta - v
            if not (0 <= w <= 15): continue
            for z in (1, 0):
                d = ACC(eta, z)
                c = f"v[{d}:{d+3}]" if (eta, z) in first else "0"
                first.add((eta, z))
                bo = b if z == 1 else b + 2
                a(f"v_mfma_f32_16x16x32_bf16 v[{d}:{d+3}], v[{AF(e,w)}:{AF(e,w)+3}], v[{bo}:{bo+3}], {c}")
                n += 1
                if n == 1 and s + D < NS:
                    rd(s + D)
    if prio: a("s_setprio 0")
    a("s_barrier")
    for eta in (3, 2, 1, 0):
        for z in (1, 0):
            d = ACC(eta, z)
            a.lgop(f"ds_write_b128 v{cW0+z}, v[{d}:{d+3}] offset:{eta*2048}", "rw")
    a.drain(vm=False, lg=True)
    a("s_barrier")
    XR = 64
    for n in range(2):
        for s in range(2):
            for h in range(2):
                r = XR + n * 16 + s * 8 + h * 4
                a.lgop(f"ds_read_b128 v[{r}:{r+3}], v{cR0+h} offset:{s*8192 + n*2048}", ("r", n))
    for n in range(2):
        a.need(lg=("r", n))
        r = XR + n * 16
        for k in range(8):
            a(f"v_add_f32 v{r+k}, v{r+k}, v{r+8+k}")
        for k in range(4):
            a(f"v_cvt_pk_bf16_f32 v{r+8+k}, v{r+2*k}, v{r+2*k+1}")
        a.vmop(f"buffer_store_dwordx4 v[{r+8}:{r+11}], v{cAT}, s[{SWS}:{SWS+3}], 0 offen offset:{n*1024} sc1", "st")
    a.drain(vm=True, lg=False)
    a("s_barrier")
    lbl = a.newlabel("CVdone")
    a(f"s_cmp_lg_u32 s28, 0\ns_cbranch_scc1 {lbl}")
    a(f"s_lshl_b32 s56, s3, 7\ns_add_u32 s56, s56, {WS_F3}")
    a(f"v_mov_b32 v2, s56\nv_mov_b32 v4, s{NON}\nv_mov_b32 v5, s{NON+1}")
    a("s_mov_b64 exec, 1")
    a(f"buffer_store_dwordx2 v[4:5], v2, s[{SWS}:{SWS+3}], 0 offen sc1")
    a("s_mov_b64 exec, -1")
    a(f"{lbl}:")
```

```python
import sys, os
sys.path.insert(0, "dev"); sys.path.insert(0, "f")
from gen import *
from pp import prole, X_get
from kq import qrole
from hazard import fix
from timing import Tim

def build(X=(), TIM=0):
    a = Em()
    t = Tim(0, rt=("C" not in X), hw=("HW" in X)) if TIM else None
    if t: t(a, 0)
    a("s_cmp_ge_u32 s2, 512\ns_cbranch_scc1 L_end")
    if "en" in X:
        a("""
        s_cmp_lg_u32 s2, 0
        s_cbranch_scc1 L_nn
        v_cmp_eq_u32 vcc, 0, v0
        s_cbranch_vccz L_nn
        s_load_dwordx2 s[4:5], s[0:1], 120
        s_memrealtime s[6:7]
        v_mov_b32 v3, 0
        s_waitcnt lgkmcnt(0)
        s_or_b32 s6, s6, 1
        v_mov_b32 v4, s6
        v_mov_b32 v5, s7
        s_mov_b64 exec, 1
        global_store_dwordx2 v3, v[4:5], s[4:5] sc1
        s_mov_b64 exec, -1
        L_nn:
        """)
    CP = X_get(X, "cp", 0)
    if CP:
        a(f"""
        s_cmp_ge_u32 s2, {CP}
        s_cbranch_scc1 L_ncp
        s_getpc_b64 s[10:11]
        L_pc:
        v_lshlrev_b32 v217, 6, v0
        s_mov_b32 s12, L_end-L_pc
        v_cmp_gt_u32 vcc, s12, v217
        s_and_saveexec_b64 s[14:15], vcc
        global_load_dword v216, v217, s[10:11]
        s_mov_b64 exec, s[14:15]
        v_add_u32 v217, 16384, v217
        v_cmp_gt_u32 vcc, s12, v217
        s_and_saveexec_b64 s[14:15], vcc
        s_cbranch_execz L_ncp2
        global_load_dword v216, v217, s[10:11]
        L_ncp2:
        s_mov_b64 exec, s[14:15]
        L_ncp:
        """)
    if "swap" in X: a("s_xor_b32 s2, s2, 256")
    a("s_cmp_ge_u32 s2, 256\ns_cbranch_scc1 L_q")
    prole(a, t, X)
    if t:
        a("s_waitcnt vmcnt(0)"); t.final(a, 7, 10, 11)
    a("s_endpgm")
    a("L_q:")
    b = Em()
    b._lbl = 5000
    qrole(b, t, X)
    if t:
        b("s_waitcnt vmcnt(0)"); t.final(b, 7, 42, 43)
    a.lines += b.lines
    a("L_end:\ns_endpgm")
    tx, n = fix(a.text(), False)
    k = kernel_block(NAME + "_kernel", tx, 256)
    return build_file([(NAME + "_kernel", 512, 256, 81920)], [k])

if __name__ == "__main__":
    out = sys.argv[1]
    X = tuple(x for x in sys.argv[2:] if x != "T")
    open(out, "w").write(build(X, "T" in sys.argv[2:]))
```

```python
import sys
sys.path.insert(0, "dev")
sys.path.insert(0, "f")
from gen import *
from kgen import LOG2E, LOG2E_LO, LN2, dpp_sum, dpp_sum2
from pp import spin_wait, nonce_get, X_get, WS_F1, WS_F3

KT_ROW = 1056
KT0 = 1056
KT_CH = 20 * KT_ROW
UB = 42240

def qrole(a, tim=None, X=()):
    SU, SWD, SWS = 32, 36, 48
    DBG, WSP, NON, CNT = 40, 42, 44, 46
    UTST, WFST = 65536, 73728
    GU, GW0 = 240, 248
    NV, PV = 252, 254
    UR, WR = 224, 232
    a("""
    s_load_dwordx16 s[4:19], s[0:1], 0
    s_load_dwordx2 s[20:21], s[0:1], 64
    s_load_dwordx4 s[24:27], s[0:1], 96
    s_load_dwordx4 s[40:43], s[0:1], 120
    s_load_dwordx4 s[52:55], s[0:1], 80
    s_and_b32 s3, s2, 255
    v_lshrrev_b32 v22, 6, v0
    v_and_b32 v1, 63, v0
    s_lshl_b32 s56, s3, 9
    v_readfirstlane_b32 s28, v22
    v_lshlrev_b32 v23, 1, v0
    v_add_u32 v23, s56, v23            ; (id2*256+tid)*2
    v_lshrrev_b32 v24, 7, v0
    v_lshlrev_b32 v24, 1, v24
    s_lshl_b32 s56, s3, 2
    v_add_u32 v24, s56, v24            ; ch*2
    s_and_b32 s29, s28, 1
    """)
    a("""
    s_lshl_b32 s56, s3, 3
    s_lshl_b32 s57, s28, 1
    s_add_u32 s30, s56, s57            ; token0
    s_lshl_b32 s56, s30, 10
    v_lshlrev_b32 v25, 4, v1           ; lane*16
    v_add_u32 v26, s56, v25
    """)
    a("""
    s_lshr_b32 s58, s3, 4              ; tokblk
    s_and_b32 s59, s3, 15              ; chgrp
    s_lshl_b32 s56, s58, 7
    s_add_u32 s56, s56, s28
    s_lshl_b32 s56, s56, 10
    s_lshl_b32 s57, s59, 6
    s_add_u32 s56, s56, s57
    v_lshrrev_b32 v27, 2, v1
    v_lshlrev_b32 v27, 12, v27
    v_and_b32 v28, 3, v1
    v_lshlrev_b32 v28, 4, v28
    v_add3_u32 v27, v27, v28, s56
    """)
    a("""
    s_lshl_b32 s56, s3, 2
    s_add_u32 s56, s56, s28
    s_lshr_b32 s60, s56, 3             ; ks
    s_and_b32 s61, s56, 7              ; cb64
    s_lshl_b32 s56, s60, 14
    s_lshl_b32 s57, s61, 7
    s_add_u32 s56, s56, s57
    v_lshrrev_b32 v28, 3, v1
    v_lshlrev_b32 v28, 10, v28
    v_and_b32 v29, 7, v1
    v_lshlrev_b32 v29, 4, v29
    v_add3_u32 v28, v28, v29, s56
    s_lshl_b32 s62, s28, 11            ; w*2048
    s_waitcnt lgkmcnt(0)
    """)
    for i, p in enumerate((6, 8, 10, 12, 14, 16)):
        a.vmop(f"global_load_ushort v{2+i}, v23, s[{p}:{p+1}]", "in")
    a.vmop("global_load_ushort v8, v24, s[18:19]", "in")
    a.vmop("global_load_ushort v9, v24, s[20:21]", "in")
    srd_from(a, SU, 4, 5, 2048 * 1024)
    srd_from(a, SWD, 24, 25, 1376 * 1024)
    a(f"s_add_u32 m0, s62, {UTST}")
    a("s_mov_b32 s56, 65536")
    a.vmop(f"buffer_load_dwordx4 v27, s[{SU}:{SU+3}], 0 offen lds", "ut")
    a(f"s_add_u32 m0, s62, {UTST + 1024}")
    a("s_nop 0")
    a.vmop(f"buffer_load_dwordx4 v27, s[{SU}:{SU+3}], s56 offen lds", "ut")
    a(f"s_add_u32 m0, s62, {WFST}")
    a("s_mov_b32 s56, 8192")
    a.vmop(f"buffer_load_dwordx4 v28, s[{SWD}:{SWD+3}], 0 offen lds", "wf")
    a(f"s_add_u32 m0, s62, {WFST + 1024}")
    a("s_nop 0")
    a.vmop(f"buffer_load_dwordx4 v28, s[{SWD}:{SWD+3}], s56 offen lds", "wf")
    a.vmop(f"global_load_dwordx4 v[{GU}:{GU+3}], v26, s[4:5]", "g")
    a.vmop(f"global_load_dwordx4 v[{GU+4}:{GU+7}], v26, s[4:5] offset:1024", "g")
    a.vmop(f"global_load_dwordx4 v[{GW0}:{GW0+3}], v25, s[26:27]", "g")
    srd_from(a, SWS, WSP, WSP + 1, WS_END)
    a(f"""
    v_lshrrev_b32 v10, 4, v1           ; g
    v_lshlrev_b32 v11, 3, v10
    v_bfe_u32 v12, v1, 2, 2            ; r
    v_add_u32 v11, v11, v12
    v_sub_u32 v11, 27, v11
    v_lshlrev_b32 v11, 6, v11
    v_and_b32 v13, 3, v1
    v_lshlrev_b32 v13, 3, v13          ; c*8
    s_add_u32 s56, s62, {UTST}
    v_add3_u32 v14, v11, v13, s56
    v_lshrrev_b32 v11, 5, v1
    v_lshlrev_b32 v11, 3, v11
    v_add_u32 v11, v11, v12
    v_lshlrev_b32 v11, 7, v11
    v_and_b32 v15, 1, v10
    v_lshlrev_b32 v15, 5, v15
    v_add3_u32 v11, v11, v15, v13
    s_add_u32 s56, s62, {WFST}
    v_add_u32 v15, s56, v11
    s_lshl_b32 s56, s58, 2
    s_add_u32 s56, s56, s28
    s_lshl_b32 s56, s56, 9
    s_lshl_b32 s57, s59, 5
    s_add_u32 s56, s56, s57
    s_lshl_b32 s56, s56, 6
    s_add_u32 s56, s56, {WS_UT}
    v_and_b32 v16, 15, v1
    v_lshlrev_b32 v16, 6, v16
    v_lshlrev_b32 v17, 4, v10
    v_add3_u32 v16, v16, v17, s56
    s_mul_i32 s56, s61, 172
    s_add_u32 s56, s56, s60
    s_lshl_b32 s56, s56, 10
    s_add_u32 s56, s56, {WS_WF}
    s_cmp_ge_u32 s60, 86
    s_cselect_b32 s64, 0x10000000, s56
    s_add_u32 s65, s64, 88064
    """)
    a(f"""
    s_lshl_b32 s56, s3, 7
    s_lshl_b32 s57, s28, 3
    s_add_u32 s56, s56, s57
    s_add_u32 s56, s56, {WS_F1}
    v_mov_b32 v17, s56
    s_lshr_b32 s56, s3, 4
    s_lshl_b32 s56, s56, 7
    s_add_u32 s56, s56, {WS_F1}
    v_lshrrev_b32 v18, 2, v1
    v_lshlrev_b32 v18, 11, v18
    v_and_b32 v19, 3, v1
    v_lshlrev_b32 v19, 3, v19
    v_add3_u32 v18, v18, v19, s56
    v_mov_b32 v19, 0
    s_mov_b64 s[66:67], -1
    """)
    a(f"""
    s_lshr_b32 s31, s28, 1                    ; cl
    s_lshl_b32 s47, s3, 1
    s_add_u32 s47, s47, s31                   ; ch
    v_lshrrev_b32 v20, 2, v1
    v_sub_u32 v20, 15, v20
    v_lshlrev_b32 v20, 17, v20
    v_and_b32 v21, 3, v1
    v_lshlrev_b32 v21, 4, v21
    s_lshl_b32 s56, s29, 16
    s_lshl_b32 s57, s47, 6
    s_add_u32 s56, s56, s57
    s_add_u32 s56, s56, {WS_UT}
    v_add3_u32 v20, v20, v21, s56
    """)

    L2H = X_get(X, "l2", -99)
    if L2H != -99:
        a("""
        s_lshr_b32 s56, s3, 3                     ; j
        s_cmp_ge_u32 s56, 16
        s_cselect_b32 s52, s54, s52
        s_cselect_b32 s53, s55, s53
        s_mov_b32 s54, 1409024
        s_mov_b32 s55, 0x00020000
        s_and_b32 s57, s56, 15
        s_lshl_b32 s57, s57, 3
        s_add_u32 s57, s57, 96
        v_lshrrev_b32 v10, 5, v0
        v_add_u32 v10, s57, v10
        v_mul_u32_u24 v10, 2752, v10
        v_and_b32 v11, 31, v0
        s_and_b32 s57, s3, 1
        s_mul_i32 s58, s57, 1536
        s_cmp_eq_u32 s57, 0
        s_cselect_b32 s57, 24, 19
        v_lshlrev_b32 v12, 6, v11
        v_add3_u32 v12, v12, v10, s58
        v_cmp_gt_u32 vcc, s57, v11
        v_mov_b32 v10, 0x8000000
        v_cndmask_b32 v12, v10, v12, vcc
        s_bfe_u32 s57, s3, 0x20001                ; x>>1
        s_lshl_b32 s57, s57, 19
        s_lshl_b32 s58, s56, 14                   ; j*16 rows*1024
        s_add_u32 s57, s57, s58
        v_lshrrev_b32 v11, 4, v0
        v_lshlrev_b32 v11, 10, v11
        v_and_b32 v13, 15, v0
        v_cmp_le_u32 vcc, 4, v13
        v_lshlrev_b32 v13, 6, v13
        v_add3_u32 v13, v13, v11, s57
        v_cndmask_b32 v13, v10, v13, vcc
        """)
    def l2pf():
        a.vmop("buffer_load_dword v28, v12, s[52:55], 0 offen", "l2")
        a.vmop(f"buffer_load_dword v28, v13, s[{SU}:{SU+3}], 0 offen", "l2")
        for i in (1, 2, 3):
            a(f"s_mov_b32 s56, {i*128*2752}")
            a.vmop("buffer_load_dword v28, v12, s[52:55], s56 offen", "l2")

    Q = lambda q: (32 + 2 * q, 33 + 2 * q)
    T0 = lambda c: (64 + 2 * c, 65 + 2 * c)
    T1 = lambda c: (96 + 2 * c, 97 + 2 * c)
    T2 = lambda c: (128 + 2 * c, 129 + 2 * c)
    KE = (160, 161)
    E1, E64, E512, E128, E192, E256, E2, E3 = [(162 + 2 * i, 163 + 2 * i) for i in range(8)]
    E4 = Q(1)
    tcnt = [0]
    def cmul(d, x, y):
        t = 178 + 2 * (tcnt[0] % 4); tcnt[0] += 1
        assert x[0] % 2 == 0 and y[0] % 2 == 0 and d[0] % 2 == 0 and x[1] == x[0] + 1 and y[1] == y[0] + 1 and d[1] == d[0] + 1
        if "nopk" in X:
            a(f"v_mul_f32 v{t}, v{x[1]}, v{y[1]}")
            a(f"v_mul_f32 v{t+1}, v{x[1]}, v{y[0]}")
            a(f"v_fma_f32 v{d[0]}, v{x[0]}, v{y[0]}, -v{t}")
            a(f"v_fma_f32 v{d[1]}, v{x[0]}, v{y[1]}, v{t+1}")
            return
        a(f"v_pk_mul_f32 v[{t}:{t+1}], v[{x[0]}:{x[1]}], v[{y[0]}:{y[1]}] op_sel:[1,1] op_sel_hi:[1,0]")
        pend.append(f"v_pk_fma_f32 v[{d[0]}:{d[1]}], v[{x[0]}:{x[1]}], v[{y[0]}:{y[1]}], v[{t}:{t+1}] op_sel:[0,0,0] op_sel_hi:[0,1,1] neg_lo:[0,0,1]")
        a(pend.pop(0))
    pend = []
    PK = lambda g, part: 192 + (g * 2 + part) * 4 if g < 4 else 192 + ((g - 4) * 2 + part) * 4
    a("""
    v_and_b32 v30, 127, v0
    v_lshlrev_b32 v30, 4, v30
    v_lshrrev_b32 v31, 7, v0
    v_lshlrev_b32 v31, 15, v31
    v_add_u32 v30, v30, v31
    v_xor_b32 v31, 64, v30
    """)
    def put_group(g, cols, negim):
        if g >= 4:
            a.need(lg=("tw", g - 4))
        for part in range(2):
            for i in range(4):
                x, y = cols[2 * i][part], cols[2 * i + 1][part]
                n = "-" if (negim and part == 1) else ""
                a(f"v_cvt_pk_bf16_f32 v{PK(g,part)+i}, {n}v{x}, {n}v{y}")
            p = PK(g, part)
            a.lgop(f"ds_write_b128 v{30 + (g & 1)}, v[{p}:{p+3}] offset:{g*4096 + part*2048}", ("tw", g))

    def prep_rd():
        a.need(vm="wf")
        for cg in range(2):
            a.lgop(f"ds_read_b64_tr_b16 v[{UR+4*cg}:{UR+4*cg+1}], v14 offset:{256 + cg*32}", "utr")
            a.lgop(f"ds_read_b64_tr_b16 v[{UR+4*cg+2}:{UR+4*cg+3}], v14 offset:{cg*32}", "utr")
        for h in range(2):
            a.lgop(f"ds_read_b64_tr_b16 v[{WR+4*h}:{WR+4*h+1}], v15 offset:{h*64}", "wtr")
            a.lgop(f"ds_read_b64_tr_b16 v[{WR+4*h+2}:{WR+4*h+3}], v15 offset:{h*64 + 512}", "wtr")
    def prep_st():
        a.need(lg="utr")
        a.vmop(f"buffer_store_dwordx4 v[{UR}:{UR+3}], v16, s[{SWS}:{SWS+3}], 0 offen sc1", "st")
        a.vmop(f"buffer_store_dwordx4 v[{UR+4}:{UR+7}], v16, s[{SWS}:{SWS+3}], 0 offen offset:1024 sc1", "st")
        a.need(lg="wtr")
        a.vmop(f"buffer_store_dwordx4 v[{WR}:{WR+3}], v25, s[{SWS}:{SWS+3}], s64 offen sc1", "st")
        a.vmop(f"buffer_store_dwordx4 v[{WR+4}:{WR+7}], v25, s[{SWS}:{SWS+3}], s65 offen sc1", "st")
        a.vmop(f"global_load_dwordx2 v[{NV}:{NV+1}], v19, s[{DBG}:{DBG+1}] sc1", "non")
    def prep_flag():
        nonce_get(a, "Qn", NV, NON, DBG, 19, "non", cnt=CNT)
        a.need(vm="st")
        a(f"v_mov_b32 v{NV}, s{NON}\nv_mov_b32 v{NV+1}, s{NON+1}\ns_mov_b64 exec, 1")
        a.vmop(f"buffer_store_dwordx2 v[{NV}:{NV+1}], v17, s[{SWS}:{SWS+3}], 0 offen sc1", "f1")
        a("s_mov_b64 exec, -1")

    PR, PS, PFL = X_get(X, "pr", 0), X_get(X, "ps", 1), X_get(X, "pf", 5)
    QP, QM = X_get(X, "qp", 0), X_get(X, "qm", 0)
    QX = X_get(X, "qx", 0)
    def hook(g):
        if g == PR: prep_rd()
        if g == PS: prep_st()
        if g == L2H: l2pf()
        if g == PFL:
            prep_flag()
            if QP != QM: a(f"s_setprio {QM}")
            if QX == 1: a("s_waitcnt vmcnt(0)\ns_endpgm")
    if QP: a(f"s_setprio {QP}")
    if tim: tim(a, 1)
    a.need(vm="in")
    if tim: tim(a, 2)
    hook(-3)
    DT, LR, REV = 22, 23, 24
    a(f"""
    v_lshlrev_b32 v8, 16, v8
    s_mov_b32 s56, {LOG2E}
    s_mov_b32 s57, {LOG2E_LO}
    s_mov_b32 s63, {LN2}
    v_mul_f32 v186, s56, v8
    v_exp_f32 v187, v186
    v_fma_f32 v188, v8, s56, -v186
    v_fma_f32 v188, v8, s57, v188
    v_mul_f32 v188, s63, v188
    v_fma_f32 v187, v187, v188, v187
    """)
    for i in range(6):
        a(f"v_lshlrev_b32 v{2+i}, 16, v{2+i}")
    a(f"v_cvt_pk_bf16_f32 v{DT}, 0, v187")
    a("v_lshlrev_b32 v9, 16, v9")
    a(f"""
    v_mul_f32 v2, v{DT}, v2
    v_mul_f32 v3, v{DT}, v3
    v_mul_f32 v4, v{DT}, v4
    v_mul_f32 v5, v{DT}, v5
    v_mul_f32 v{LR}, s56, v2
    v_mul_f32 v{REV}, 0.15915494, v3
    """)
    def anchor(E, L, t):
        Lf = {1: None, 4: "4.0", 64: "0x42800000", 512: "0x44000000"}[L]
        if Lf is None:
            a(f"v_exp_f32 v{t}, v{LR}")
            a(f"v_fract_f32 v{t+1}, v{REV}")
        else:
            a(f"v_mul_f32 v{t}, {Lf}, v{LR}")
            a(f"v_mul_f32 v{t+1}, {Lf}, v{REV}")
            a(f"v_exp_f32 v{t}, v{t}")
            a(f"v_fract_f32 v{t+1}, v{t+1}")
    def anchor2(E, t):
        a(f"v_cos_f32 v{E[0]}, v{t+1}")
        a(f"v_sin_f32 v{E[1]}, v{t+1}")
    def anchor3(E, t):
        a(f"v_mul_f32 v{E[0]}, v{t}, v{E[0]}")
        a(f"v_mul_f32 v{E[1]}, v{t}, v{E[1]}")
    hook(-2)
    lst = [(E4, 4, 186), (E64, 64, 188), (E1, 1, 190), (E512, 512, 26)]
    for E, L, t in lst: anchor(E, L, t)
    cmul(T0(0), (6, 7), (4, 5))
    for E, L, t in lst: anchor2(E, t)
    a("s_nop 0")
    for E, L, t in lst: anchor3(E, t)
    a(f"v_mov_b32 v{Q(0)[0]}, 1.0\nv_mov_b32 v{Q(0)[1]}, 0")
    cmul(Q(2), E4, E4)
    cmul(E128, E64, E64)
    cmul(Q(3), Q(2), E4)
    cmul(E2, E1, E1)
    cmul(Q(4), Q(2), Q(2))
    cmul(E192, E128, E64)
    cmul(E256, E128, E128)
    cmul(E3, E2, E1)
    hook(-1)
    for q in range(5, 8): cmul(Q(q), Q(4), Q(q - 4))
    cmul(Q(8), Q(4), Q(4))
    put_group(0, [Q(q) for q in range(8)], True); hook(0)
    for q in range(9, 16): cmul(Q(q), Q(8), Q(q - 8))
    put_group(1, [Q(q) for q in range(8, 16)], True); hook(1)
    cmul(T0(4), T0(0), E1); cmul(T0(8), T0(0), E2); cmul(T0(12), T0(0), E3)
    cmul(T1(8), T0(0), E512)
    for b in range(4):
        for p, E in ((1, E64), (2, E128), (3, E192)):
            cmul(T0(4 * b + p), T0(4 * b), E)
        cmul(T1(9 + b), T1(8 + b), E64) if b < 3 else None
        if b == 1: put_group(2, [T0(c) for c in range(8)], False); hook(2)
    put_group(3, [T0(c) for c in range(8, 16)], False); hook(3)
    chain = [T1(8 + p) for p in range(8)] + [T2(p) for p in range(16)] + [KE]
    nxt = 4
    for c in range(8):
        src = T0(8 + c) if c < 4 else T0(c - 4)
        cmul(T1(c), src, E256)
        if nxt < 8:
            cmul(chain[nxt], chain[nxt - 1], E64); nxt += 1
    put_group(4, [T1(c) for c in range(8)], False); hook(4)
    put_group(5, [T1(c) for c in range(8, 16)], False); hook(5)
    cmul(chain[8], chain[7], E64)
    for p in range(9, 25):
        cmul(chain[p], chain[p - 2], E128)
        if p == 15: put_group(6, [T2(c) for c in range(8)], False); hook(6)
        if p == 23: put_group(7, [T2(c) for c in range(8, 16)], False); hook(7)

    if tim: tim(a, 3)
    if QX == 2: a("s_waitcnt vmcnt(0)\ns_endpgm")
    a.vmop(f"buffer_load_dwordx2 v[{PV}:{PV+1}], v18, s[{SWS}:{SWS+3}], 0 offen sc1", "poll")
    dpp_sum(a, KE[0])
    a("s_nop 0")
    a(f"v_readlane_b32 s68, v{KE[0]}, 63")
    a(f"s_add_u32 s56, s62, {WFST}")
    a("v_mov_b32 v3, s56")
    a("v_mov_b32 v4, s68")
    a.lgop("ds_write_b32 v3, v4", "kp")

    a("""
    v_lshrrev_b32 v2, 4, v1            ; kg
    v_lshlrev_b32 v3, 3, v2
    v_bfe_u32 v4, v1, 2, 2             ; r
    v_add_u32 v3, v3, v4
    v_lshlrev_b32 v3, 4, v3
    v_bfe_u32 v5, v1, 1, 1             ; c>>1
    v_lshlrev_b32 v6, 6, v5
    v_xor_b32 v3, v3, v6
    v_lshlrev_b32 v5, 12, v5
    v_and_b32 v6, 1, v1
    v_lshlrev_b32 v6, 3, v6
    v_add3_u32 v3, v3, v5, v6
    s_lshr_b32 s56, s28, 1
    s_lshl_b32 s57, s56, 15            ; cl*32768
    v_add_u32 v10, s57, v3             ; q1
    v_xor_b32 v11, 64, v10             ; q2
    s_cmp_eq_u32 s29, 0
    s_mov_b32 s69, 24576
    s_cselect_b32 s71, 8192, s69
    s_cselect_b32 s70, 16384, s69
    v_add_u32 v12, s71, v10
    v_add_u32 v13, s71, v11
    v_add_u32 v14, s70, v10
    v_add_u32 v15, s70, v11
    """)
    a("v_mov_b32 v29, v18")
    APOLL = 29
    a(f"""
    s_lshl_b32 s68, s56, 12
    s_add_u32 s68, s68, {UTST}
    v_and_b32 v16, 15, v1              ; col
    v_lshlrev_b32 v17, 3, v2           ; 8g
    v_lshlrev_b32 v18, 5, v16          ; 32col
    v_add3_u32 v18, v18, v17, s68      ; base+32col+8g
    v_bfe_u32 v19, v1, 2, 2
    v_lshlrev_b32 v19, 7, v19          ; b*128
    v_and_b32 v21, 3, v1
    v_lshlrev_b32 v21, 5, v21
    v_add3_u32 v19, v19, v21, v17
    v_add_u32 v19, s68, v19
    v_add_u32 v21, 1024, v18
    s_cmp_eq_u32 s29, 0
    s_cselect_b64 vcc, -1, 0
    v_cndmask_b32 v16, v21, v19, vcc   ; vSA
    v_add_u32 v17, 512, v18
    v_cndmask_b32 v17, v21, v17, vcc   ; vSB
    """)
    QD = X_get(X, "qd", 0)
    def uload(vaddr):
        spin_wait(a, "Qf1", APOLL, PV, SWS, 66, NON, "poll", cnt=CNT)
        a.vmop(f"buffer_load_dwordx4 v[{UR}:{UR+3}], v{vaddr}, s[{SWS}:{SWS+3}], 0 offen sc1", "u")
        a("s_mov_b32 s56, 32768")
        a.vmop(f"buffer_load_dwordx4 v[{UR+4}:{UR+7}], v{vaddr}, s[{SWS}:{SWS+3}], s56 offen sc1", "u")
    if QD: a("v_mov_b32 v28, v20")
    else: uload(20)
    if tim: tim(a, 4)
    a("""
    v_cmp_eq_u32 vcc, 0, v1
    s_cmp_eq_u32 s29, 0
    s_cselect_b64 s[70:71], vcc, 0
    v_mov_b32 v21, 0
    v_mov_b32 v22, 0
    v_mov_b32 v23, 0
    v_cndmask_b32 v20, 0, v9, s[70:71]
    """)
    a(f"""
    s_lshr_b32 s56, s28, 1
    s_lshl_b32 s56, s56, 12
    s_add_u32 s56, s56, {WFST}
    v_mov_b32 v24, s56
    """)
    a.drain(vm=False, lg=True)
    a("s_barrier")
    QF, AF_, BF_ = 32, 64, 96
    a.lgop("ds_read_b32 v25, v24", "k2")
    a.lgop("ds_read_b32 v26, v24 offset:2048", "k2")
    for s in range(8):
        for (F, r1, r2, tag) in ((QF, 10, 11, "q"), (AF_, 12, 13, "a"), (BF_, 14, 15, "b")):
            a.lgop(f"ds_read_b64_tr_b16 v[{F+4*s}:{F+4*s+1}], v{r1} offset:{s*512}", (tag, s))
            a.lgop(f"ds_read_b64_tr_b16 v[{F+4*s+2}:{F+4*s+3}], v{r2} offset:{s*512}", (tag, s))
    DA, DB = 128, 132
    a.need(lg="k2")
    a("v_add_f32 v25, v25, v26")
    a(f"s_add_u32 s56, s68, 1536")
    a("v_mov_b32 v27, s56")
    a("v_cvt_pk_bf16_f32 v25, v25, v25")
    for s in range(8):
        a.need(lg=[("q", s), ("a", s)])
        ca = "v[20:23]" if s == 0 else f"v[{DA}:{DA+3}]"
        a(f"v_mfma_f32_16x16x32_bf16 v[{DA}:{DA+3}], v[{QF+4*s}:{QF+4*s+3}], v[{AF_+4*s}:{AF_+4*s+3}], {ca}")
        a.need(lg=("b", s))
        cb = "0" if s == 0 else f"v[{DB}:{DB+3}]"
        a(f"v_mfma_f32_16x16x32_bf16 v[{DB}:{DB+3}], v[{QF+4*s}:{QF+4*s+3}], v[{BF_+4*s}:{BF_+4*s+3}], {cb}")
    a.lgop("ds_write_b16 v27, v25", "sw")
    I_, S_, LLp, LL = 0x03020100, 0x05040302, 0x05040100, 0x01000100
    a(f"""
    v_lshlrev_b32 v2, 4, v1            ; 16*lambda
    v_add_u32 v2, s68, v2
    s_lshl_b32 s56, s29, 8             ; 2p*128
    v_add_u32 v3, s56, v2              ; T0 row A
    v_add_u32 v4, 128, v3              ; T0 row B
    v_add_u32 v5, 512, v2              ; E4
    v_add_u32 v6, 384, v2              ; E2
    v_cmp_gt_u32 vcc, 16, v1
    s_cmp_eq_u32 s29, 1
    s_cselect_b64 s[70:71], vcc, 0
    v_cndmask_b32 v6, v5, v6, s[70:71]
    v_cmp_gt_u32 vcc, 8, v1
    v_cndmask_b32 v6, v6, v3, vcc
    v_cndmask_b32 v7, v5, v4, vcc
    s_cselect_b32 s56, 16, 32          ; thrA
    s_mov_b32 s72, {I_}
    s_mov_b32 s73, {S_}
    s_mov_b32 s74, {LLp}
    s_cselect_b32 s69, s74, {LL}
    s_cselect_b32 s76, s73, s72
    v_mov_b32 v8, s72
    v_mov_b32 v9, s76
    v_cndmask_b32 v9, v9, v8, vcc
    v_mov_b32 v10, s74
    v_cmp_gt_u32 vcc, 32, v1
    v_cndmask_b32 v9, v10, v9, vcc     ; selB
    v_cmp_gt_u32 vcc, s56, v1
    v_cndmask_b32 v11, v10, v8, vcc
    v_mov_b32 v12, s69
    v_cndmask_b32 v12, v12, v8, vcc
    """)
    a(f"v_cvt_pk_bf16_f32 v136, v{DA}, v{DA+1}")
    a(f"v_cvt_pk_bf16_f32 v137, v{DA+2}, v{DA+3}")
    a(f"v_cvt_pk_bf16_f32 v138, v{DB}, v{DB+1}")
    a(f"v_cvt_pk_bf16_f32 v139, v{DB+2}, v{DB+3}")
    a.lgop("ds_write_b64 v16, v[136:137]", "sw")
    a.lgop("ds_write_b64 v17, v[138:139]", "sw")

    if QD == 1: uload(28)
    def gcalc():
        GW = 64
        a.need(vm="g")
        for i in range(4):
            a(f"v_lshlrev_b32 v{GW+2*i}, 16, v{GW0+i}")
            a(f"v_and_b32 v{GW+2*i+1}, 0xffff0000, v{GW0+i}")
        for tk in range(2):
            Xr = 72 + 8 * tk
            for i in range(4):
                a(f"v_lshlrev_b32 v{Xr+2*i}, 16, v{GU+4*tk+i}")
                a(f"v_and_b32 v{Xr+2*i+1}, 0xffff0000, v{GU+4*tk+i}")
            for i in range(8):
                a(f"v_mul_f32 v{Xr+i}, v{Xr+i}, v{GW+i}")
            for i in range(8):
                a(f"v_cvt_pk_bf16_f32 v{Xr+i}, 0, v{Xr+i}")
            for st in (4, 2, 1):
                for i in range(st):
                    a(f"v_add_f32 v{Xr+i}, v{Xr+i}, v{Xr+i+st}")
        dpp_sum2(a, 72, 80)
        a(f"s_mov_b32 s56, {LOG2E | 0x80000000}")
        for tk in range(2):
            a(f"v_cvt_pk_bf16_f32 v{72+8*tk}, 0, v{72+8*tk}")
        for tk in range(2):
            a(f"v_mul_f32 v{72+8*tk}, s56, v{72+8*tk}")
        for tk in range(2):
            a(f"v_exp_f32 v{72+8*tk}, v{72+8*tk}")
        a("s_nop 0")
        for tk in range(2):
            a(f"v_add_f32 v{72+8*tk}, 1.0, v{72+8*tk}")
        for tk in range(2):
            a(f"v_rcp_f32 v{72+8*tk}, v{72+8*tk}")
        a("s_nop 0")
        a("v_cvt_pk_bf16_f32 v88, 0, v72")
        a("v_cvt_pk_bf16_f32 v90, 0, v80")
        a("v_sub_f32 v89, 1.0, v88")
        a("v_sub_f32 v91, 1.0, v90")
        a("v_cvt_pk_bf16_f32 v89, 0, v89")
        a("v_cvt_pk_bf16_f32 v91, 0, v91")
        a("s_lshl_b32 s56, s30, 3")
        a(f"s_add_u32 s56, s56, {WS_G}")
        a("v_mov_b32 v92, s56")
        a("s_lshl_b64 exec, 1, 63")
        a.vmop(f"buffer_store_dwordx4 v[88:91], v92, s[{SWS}:{SWS+3}], 0 offen sc1", "gst")
        a("s_mov_b64 exec, -1")
    gcalc()
    if QD == 2: uload(28)

    cAT, cZ, cT, cB, cW0, cW1, cR0, cR1, cA0, cA1, cU = 232, 233, 234, 235, 236, 237, 238, 239, 240, 241, 242
    ZR = 244
    t0, t1, t2, t3, tj, tg, tl = 248, 249, 250, 251, 243, 252, 253
    assert KT0 == KT_ROW
    a(f"""
    v_lshlrev_b32 v{tl}, 4, v1                ; lane*16
    s_lshl_b32 s56, s47, 12
    s_lshl_b32 s57, s29, 11
    s_add_u32 s56, s56, s57
    s_add_u32 s56, s56, {WS_AT}
    v_add_u32 v{cAT}, s56, v{tl}
    s_lshl_b32 s56, s31, 2
    s_lshl_b32 s57, s29, 1
    s_add_u32 s56, s56, s57
    s_mul_i32 s56, s56, 1280
    s_add_u32 s77, s56, {UB}
    v_add_u32 v{cU}, s77, v{tl}
    v_bfe_u32 v{t0}, v1, 4, 1
    v_mul_u32_u24 v{t0}, 1280, v{t0}
    v_and_b32 v{tj}, 15, v1                   ; i / j
    v_lshlrev_b32 v{t1}, 4, v{tj}
    v_add3_u32 v{cZ}, v{t0}, v{t1}, s77
    v_mov_b32 v{ZR}, 0
    v_mov_b32 v{ZR+1}, 0
    v_mov_b32 v{ZR+2}, 0
    v_mov_b32 v{ZR+3}, 0
    s_mul_i32 s58, s31, {KT_CH}
    s_mul_i32 s57, s29, {2*KT_ROW}
    s_add_u32 s56, s58, s57
    v_add_u32 v{cT}, s56, v{tl}
    v_lshrrev_b32 v{tg}, 4, v1                ; kg / g
    s_lshl_b32 s57, s29, 1
    s_sub_u32 s57, 4, s57
    v_add_u32 v{t0}, s57, v{tj}
    v_mul_u32_u24 v{t0}, {KT_ROW}, v{t0}
    v_lshlrev_b32 v{t1}, 4, v{tg}
    v_add3_u32 v{cA0}, v{t0}, v{t1}, s58
    v_subrev_u32 v{cA1}, {KT_ROW}, v{cA0}
    v_sub_u32 v{t0}, v{tg}, v{tj}
    v_add_u32 v{t0}, 15, v{t0}
    v_lshlrev_b32 v{t0}, 4, v{t0}
    v_add_u32 v{cB}, s77, v{t0}
    v_and_b32 v{t0}, 3, v{tj}
    v_lshlrev_b32 v{t0}, 1, v{t0}
    v_bfe_u32 v{t1}, v{tj}, 2, 1
    v_or_b32 v{t0}, v{t0}, v{t1}
    v_xor_b32 v{t0}, v{t0}, v{tg}
    v_lshlrev_b32 v{t0}, 4, v{t0}
    v_lshlrev_b32 v{t1}, 7, v{tj}
    s_lshl_b32 s56, s28, 13
    v_add3_u32 v{cW0}, v{t0}, v{t1}, s56
    v_xor_b32 v{cW1}, 64, v{cW0}
    v_lshrrev_b32 v{t0}, 2, v1                ; j
    v_and_b32 v{t1}, 3, v{t0}
    v_lshlrev_b32 v{t1}, 1, v{t1}
    v_bfe_u32 v{t2}, v{t0}, 2, 1
    v_or_b32 v{t1}, v{t1}, v{t2}
    v_and_b32 v{t2}, 3, v1
    v_lshlrev_b32 v{t2}, 1, v{t2}
    v_xor_b32 v{t1}, v{t1}, v{t2}
    v_lshlrev_b32 v{t1}, 4, v{t1}
    v_lshlrev_b32 v{t0}, 7, v{t0}
    s_lshl_b32 s56, s31, 14
    s_lshl_b32 s57, s29, 12
    s_add_u32 s56, s56, s57
    v_add3_u32 v{cR0}, v{t0}, v{t1}, s56
    v_xor_b32 v{cR1}, 16, v{cR0}
    """)
    a.drain(vm=False, lg=True)
    a("s_barrier")
    if tim: tim(a, 5)
    XA, XB = 32, 40
    a.lgop(f"ds_read_b128 v[{XA}:{XA+3}], v6", "xa")
    a.lgop(f"ds_read_b32 v{XA+4}, v6 offset:16", "xa")
    a.lgop(f"ds_read_b128 v[{XB}:{XB+3}], v7", "xb")
    a.lgop(f"ds_read_b32 v{XB+4}, v7 offset:16", "xb")
    a.lgop(f"ds_write_b128 v{cZ}, v[{ZR}:{ZR+3}] offset:1024", "z")
    R0, R1 = 46, 52
    OA, OB = R0 + 2, R1 + 2
    T = 64
    for i, R, XX in ((0, R0, XA), (1, R1, XB)):
        a.need(lg="xa" if i == 0 else "xb")
        for j in range(4):
            sel = (12 if j % 2 == 0 else 11) if i == 0 else 9
            a(f"v_perm_b32 v{R+2+j}, v{XX+j+1}, v{XX+j}, v{sel}")
        a("s_nop 1")
        a(f"v_mov_b32_dpp v{R}, v{R+4} wave_shr:1 row_mask:0xf bank_mask:0xf bound_ctrl:1")
        a(f"v_mov_b32_dpp v{R+1}, v{R+5} wave_shr:1 row_mask:0xf bank_mask:0xf bound_ctrl:1")
        tb = T + 12 * i
        def off(m): return (4 * m + 16 + i) * KT_ROW
        a.lgop(f"ds_write_b128 v{cT}, v[{R+2}:{R+5}] offset:{off(0)}", "t")
        for j in range(4):
            a(f"v_alignbit_b32 v{tb+j}, v{R+2+j}, v{R+1+j}, 16")
        a.lgop(f"ds_write_b128 v{cT}, v[{tb}:{tb+3}] offset:{off(-1)}", "t")
        for j in range(4):
            a(f"v_mov_b32 v{tb+4+j}, v{R+1+j}")
        a.lgop(f"ds_write_b128 v{cT}, v[{tb+4}:{tb+7}] offset:{off(-2)}", "t")
        for j in range(4):
            a(f"v_alignbit_b32 v{tb+8+j}, v{R+1+j}, v{R+j}, 16")
        a.lgop(f"ds_write_b128 v{cT}, v[{tb+8}:{tb+11}] offset:{off(-3)}", "t")
        a.lgop(f"ds_write_b128 v{cT}, v[{R}:{R+3}] offset:{off(-4)}", "t")
    a.need(vm="u")
    a.lgop(f"ds_write_b128 v{cU}, v[{UR}:{UR+3}]", "uw")
    a.lgop(f"ds_write_b128 v{cU}, v[{UR+4}:{UR+7}] offset:1280", "uw")
    a.drain(vm=False, lg=True)
    a("s_barrier")
    if tim: tim(a, 6)
    if QX == 3: a("s_waitcnt vmcnt(0)\ns_endpgm")
    prio = X_get(X, "cprio", 1)
    if prio: a(f"s_setprio {prio}")
    D = 4; NB = D + 1
    ACC = lambda eta, z: 32 + (eta * 2 + z) * 4
    AF = lambda e, w: 64 + 64 * e + 4 * w
    BF = lambda b: 192 + 6 * b
    NS = 32
    def rd(s):
        e, st = s >> 4, s & 15
        b = BF(s % NB)
        a.lgop(f"ds_read_b128 v[{AF(e,st)}:{AF(e,st)+3}], v{cA0+e} offset:{64*st}", ("A", s))
        o = st * 64 + e * 1280
        a.lgop(f"ds_read_b128 v[{b}:{b+3}], v{cB} offset:{o}", ("B", s))
        a.lgop(f"ds_read_b64 v[{b+4}:{b+5}], v{cB} offset:{o+16}", ("B", s))
    for s in range(D): rd(s)
    first = set()
    for s in range(NS):
        e, st = s >> 4, s & 15
        v = 12 - st
        b = BF(s % NB)
        a.need(lg=[("A", s), ("B", s)])
        n = 0
        for eta in (3, 2, 1, 0):
            w = 4 * eta - v
            if not (0 <= w <= 15): continue
            for z in (1, 0):
                d = ACC(eta, z)
                c = f"v[{d}:{d+3}]" if (eta, z) in first else "0"
                first.add((eta, z))
                bo = b if z == 1 else b + 2
                a(f"v_mfma_f32_16x16x32_bf16 v[{d}:{d+3}], v[{AF(e,w)}:{AF(e,w)+3}], v[{bo}:{bo+3}], {c}")
                n += 1
                if n == 1 and s + D < NS:
                    rd(s + D)
    if prio: a("s_setprio 0")
    a("s_barrier")
    for eta in (3, 2, 1, 0):
        for z in (1, 0):
            d = ACC(eta, z)
            a.lgop(f"ds_write_b128 v{cW0+z}, v[{d}:{d+3}] offset:{eta*2048}", "rw")
    a.drain(vm=False, lg=True)
    a("s_barrier")
    XR = 64
    for n in range(2):
        for s in range(2):
            for h in range(2):
                r = XR + n * 16 + s * 8 + h * 4
                a.lgop(f"ds_read_b128 v[{r}:{r+3}], v{cR0+h} offset:{s*8192 + n*2048}", ("r", n))
    for n in range(2):
        a.need(lg=("r", n))
        r = XR + n * 16
        for k in range(8):
            a(f"v_add_f32 v{r+k}, v{r+k}, v{r+8+k}")
        for k in range(4):
            a(f"v_cvt_pk_bf16_f32 v{r+8+k}, v{r+2*k}, v{r+2*k+1}")
        a.vmop(f"buffer_store_dwordx4 v[{r+8}:{r+11}], v{cAT}, s[{SWS}:{SWS+3}], 0 offen offset:{n*1024} sc1", "st")
    a.drain(vm=True, lg=False)
    a("s_barrier")
    lbl = a.newlabel("CVdone")
    a(f"s_cmp_lg_u32 s28, 0\ns_cbranch_scc1 {lbl}")
    a(f"s_lshl_b32 s56, s3, 7\ns_add_u32 s56, s56, {WS_F3}")
    a(f"v_mov_b32 v2, s56\nv_mov_b32 v4, s{NON}\nv_mov_b32 v5, s{NON+1}")
    a("s_mov_b64 exec, 1")
    a(f"buffer_store_dwordx2 v[4:5], v2, s[{SWS}:{SWS+3}], 0 offen sc1")
    a("s_mov_b64 exec, -1")
    a(f"{lbl}:")
```

```python
import sys
sys.path.insert(0, "dev")
from gen import *

WS_F3 = 0x588000
WS_FH = 0x590000
WS_F1 = 0x5B0000
SPIN = 0x2000
NON = 42

def spin_wait(a, name, vaddr, vdat, srd, mask_s, non, first_issued_tag=None, cnt=70):
    ok = a.newlabel(name + "ok"); sp = a.newlabel(name + "sp")
    if first_issued_tag is not None:
        a.need(vm=first_issued_tag)
        a(f"s_mov_b64 exec, s[{mask_s}:{mask_s+1}]")
        a(f"v_cmp_ne_u64 vcc, s[{non}:{non+1}], v[{vdat}:{vdat+1}]")
        a("s_mov_b64 exec, -1")
        a(f"s_cbranch_vccz {ok}")
    a(f"s_mov_b32 s{cnt}, {SPIN}")
    a(f"{sp}:")
    a(f"s_mov_b64 exec, s[{mask_s}:{mask_s+1}]")
    a(f"buffer_load_dwordx2 v[{vdat}:{vdat+1}], v{vaddr}, s[{srd}:{srd+3}], 0 offen sc1")
    a(f"s_sub_u32 s{cnt}, s{cnt}, 1")
    a("s_waitcnt vmcnt(0)")
    a(f"v_cmp_ne_u64 vcc, s[{non}:{non+1}], v[{vdat}:{vdat+1}]")
    a("s_mov_b64 exec, -1")
    a(f"s_cbranch_vccz {ok}")
    a(f"s_cmp_lg_u32 s{cnt}, 0")
    a(f"s_cbranch_scc1 {sp}")
    a(f"{ok}:")

def nonce_get(a, name, vdat, non, dbg, vz, first_issued_tag=None, cnt=70):
    ok = a.newlabel(name + "ok"); sp = a.newlabel(name + "sp")
    if first_issued_tag is not None:
        a.need(vm=first_issued_tag)
        a(f"v_readfirstlane_b32 s{non}, v{vdat}")
        a(f"v_readfirstlane_b32 s{non+1}, v{vdat+1}")
        a(f"s_cmp_lg_u32 s{non}, 0")
        a(f"s_cbranch_scc1 {ok}")
    a(f"s_mov_b32 s{cnt}, {SPIN}")
    a(f"{sp}:")
    a(f"global_load_dwordx2 v[{vdat}:{vdat+1}], v{vz}, s[{dbg}:{dbg+1}] sc1")
    a(f"s_sub_u32 s{cnt}, s{cnt}, 1")
    a("s_waitcnt vmcnt(0)")
    a(f"v_readfirstlane_b32 s{non}, v{vdat}")
    a(f"v_readfirstlane_b32 s{non+1}, v{vdat+1}")
    a(f"s_cmp_lg_u32 s{non}, 0")
    a(f"s_cbranch_scc1 {ok}")
    a(f"s_cmp_lg_u32 s{cnt}, 0")
    a(f"s_cbranch_scc1 {sp}")
    a(f"{ok}:")

def prole(a, tim=None, X=()):
    ACC = lambda mat, j: 64 + (2 * j + mat) * 16
    WF = lambda mat, j: 160 + (2 * j + mat) * 4
    XF = lambda b, s: 184 + b * 16 + s * 4
    SX, SW, SH, SWS, SO = 12, 16, 20, 48, 52
    DBG, OUT = 46, 44
    XBASE = 49152
    AW0, AH0, AW1, AH1 = 40, 41, 42, 43
    AF3, AAT, AG, AST, ATR, AOUT, AL16, AFH, AF1, AFHP, VZ = 44, 45, 46, 47, 48, 49, 50, 51, 52, 58, 59
    PV, GV, AT0 = 54, 56, 60
    lbl_idle = a.newlabel("Pidle")
    PST = "pst" in X
    tim0 = tim
    if tim and PST:
        mp = {1: 4, 2: 5, 3: 6}
        tim = lambda aa, k: tim0(aa, mp[k]) if k in mp else None
    a("""
    s_load_dwordx2 s[4:5], s[0:1], 0
    s_load_dwordx2 s[6:7], s[0:1], 80
    s_load_dwordx2 s[8:9], s[0:1], 88
    s_load_dwordx4 s[44:47], s[0:1], 112
    s_load_dwordx2 s[10:11], s[0:1], 128
    s_and_b32 s30, s2, 7
    s_lshr_b32 s31, s2, 3
    s_lshr_b32 s26, s30, 1
    s_lshl_b32 s26, s26, 2
    s_and_b32 s32, s31, 3
    s_add_u32 s26, s26, s32
    s_and_b32 s25, s30, 1
    s_lshl_b32 s25, s25, 3
    s_lshr_b32 s32, s31, 2
    s_add_u32 s25, s25, s32
    v_lshrrev_b32 v12, 6, v0
    v_and_b32 v13, 63, v0
    s_mov_b32 s29, 0
    v_readfirstlane_b32 s24, v12
    """)
    lb = a.newlabel("M2")
    a(f"s_lshr_b32 s32, s31, 2\ns_cmp_lg_u32 s32, 7\ns_cbranch_scc1 {lb}")
    a(f"s_bfe_u32 s29, s31, 0x10001")
    a(f"s_and_b32 s32, s30, 1\ns_lshl_b32 s32, s32, 1\ns_add_u32 s26, s26, s32\ns_mov_b32 s25, 7")
    a(f"{lb}:")
    a("s_and_b32 s30, s24, 1\ns_mul_i32 s30, s30, 192")
    a("s_mul_i32 s31, s25, 192")
    a("s_mov_b32 s33, 2752\ns_mov_b32 s34, 0xaaab")
    a("s_cmp_eq_u32 s25, 14\ns_cselect_b32 s37, 64, 0x10000\nv_mov_b32 v17, 0x8000000")
    for k in range(3):
        a(f"v_add_u32 v14, s30, v13")
        if k: a(f"v_add_u32 v14, {64*k}, v14")
        a("v_mul_lo_u32 v15, v14, s34\nv_lshrrev_b32 v15, 19, v15")
        a("v_mul_u32_u24 v16, 12, v15\nv_sub_u32 v16, v14, v16\nv_lshlrev_b32 v16, 4, v16")
        a("v_mul_lo_u32 v15, v15, s33\nv_add_u32 v15, v15, v16")
        a(f"v_add_u32 v{6+k}, s31, v15")
        if k: a(f"v_subrev_u32 v{6+k}, {1024*k}, v{6+k}")
        a(f"v_cmp_le_u32 vcc, s37, v16\nv_cndmask_b32 v{6+k}, v{6+k}, v17, vcc")
    a("s_lshl_b32 s30, s26, 7\ns_lshl_b32 s31, s24, 5\ns_add_u32 s30, s30, s31\ns_lshl_b32 s30, s30, 10")
    a("""
    v_lshrrev_b32 v14, 3, v13
    v_lshlrev_b32 v14, 10, v14
    v_add_u32 v14, s30, v14
    v_lshrrev_b32 v15, 4, v13
    v_and_b32 v16, 7, v13
    v_xor_b32 v17, v16, v15
    v_lshlrev_b32 v17, 4, v17
    v_add_u32 v9, v14, v17
    v_or_b32 v15, 4, v15
    v_xor_b32 v17, v16, v15
    v_lshlrev_b32 v17, 4, v17
    v_add_u32 v10, v14, v17
    v_add_u32 v10, 7168, v10
    """)
    a("s_mul_i32 s35, s24, 3072")
    a(f"s_lshl_b32 s36, s24, 12\ns_add_u32 s36, s36, {XBASE}")
    a("s_memrealtime s[42:43]")
    a("s_waitcnt lgkmcnt(0)")
    if tim0 and PST: tim0(a, 1)
    srd_from(a, SX, 4, 5, 2048 * 1024)
    a("s_cmp_ge_u32 s24, 2\ns_cselect_b32 s6, s8, s6\ns_cselect_b32 s7, s9, s7")
    srd_from(a, SW, 6, 7, 512 * 2752)

    def dma_w(u, k):
        if k == 0:
            a(f"s_add_u32 m0, s35, {(u % 4) * 12288}")
            a(f"s_mov_b32 s27, {u * 88064}")
        a.vmop(f"buffer_load_dwordx4 v{6+k}, s[{SW}:{SW+3}], s27 offen offset:{1024*k} lds", ("W", u))
    def dma_x(c, k):
        if k == 0:
            a(f"s_add_u32 m0, s36, {(c & 1) * 16384}")
            a(f"s_mov_b32 s28, {c * 128}")
        if k == 2:
            a(f"s_mov_b32 s28, {c * 128 + 14336}")
            a("s_nop 0")
        a.vmop(f"buffer_load_dwordx4 v{9+(k&1)}, s[{SX}:{SX+3}], s28 offen offset:{1024*k} lds", ("X", c))
    def rd_w(S, jj):
        u, sp = S >> 1, S & 1
        mat, j = jj & 1, jj >> 1
        base = (u % 4) * 12288 + mat * 6144 + 16 * sp * 192 + j * 64
        r = WF(mat, j)
        a.lgop(f"ds_read_b64_tr_b16 v[{r}:{r+1}], v1 offset:{base}", ("w", S, jj))
        a.lgop(f"ds_read_b64_tr_b16 v[{r+2}:{r+3}], v1 offset:{base + 4*192}", ("w", S, jj))
    def rd_x(c, s):
        r = XF(c & 1, s)
        a.lgop(f"ds_read_b128 v[{r}:{r+3}], v{2+s} offset:{(c & 1) * 16384}", ("x", c, s))

    lbl_nold = a.newlabel("Pnold")
    a(f"s_cmp_lg_u32 s29, 0\ns_cbranch_scc1 {lbl_nold}")
    PS2 = "pst2" in X
    if tim0 and PS2:
        tim = lambda aa, k: None
        tim0(a, 1)
    for k in range(4): dma_x(0, k)
    if tim0 and PS2: tim0(a, 2)
    for k in range(3): dma_w(0, k)
    if tim0 and PS2: tim0(a, 3)
    for k in range(3): dma_w(1, k)
    if tim0 and PS2: tim0(a, 4)
    for k in range(4): dma_x(1, k)
    if tim0 and PS2: tim0(a, 5)
    for k in range(3): dma_w(2, k)
    if tim0 and PS2: tim0(a, 6)
    a(f"{lbl_nold}:")
    if tim0 and PST: tim0(a, 2)
    lbl_nn = a.newlabel("Pnn")
    if "en" in X: a(f"s_branch {lbl_nn}")
    a(f"s_cmp_lg_u32 s2, 240\ns_cbranch_scc1 {lbl_nn}")
    a(f"s_cmp_lg_u32 s24, 0\ns_cbranch_scc1 {lbl_nn}")
    a(f"s_or_b32 s42, s42, 1\nv_mov_b32 v14, s42\nv_mov_b32 v15, s43\nv_mov_b32 v16, 0\ns_mov_b64 exec, 1")
    a(f"global_store_dwordx2 v16, v[14:15], s[{DBG}:{DBG+1}] sc1")
    a("s_mov_b64 exec, -1")
    a(f"{lbl_nn}:")
    srd_from(a, SH, 10, 11, H_SIZE, WS_H)
    srd_from(a, SWS, 10, 11, WS_END)
    srd_from(a, SO, OUT, OUT + 1, 2048 * 1024)
    a("""
    v_lshrrev_b32 v14, 5, v13
    v_lshlrev_b32 v14, 3, v14
    v_bfe_u32 v15, v13, 2, 2
    v_add_u32 v14, v14, v15
    v_mul_u32_u24 v14, 192, v14
    v_bfe_u32 v15, v13, 4, 1
    v_lshlrev_b32 v15, 5, v15
    v_and_b32 v16, 3, v13
    v_lshlrev_b32 v16, 3, v16
    v_add3_u32 v1, v14, v15, v16
    """)
    a("""
    v_and_b32 v14, 31, v13
    v_bfe_u32 v15, v13, 1, 3
    v_lshrrev_b32 v16, 5, v13
    v_xor_b32 v15, v15, v16
    v_lshlrev_b32 v14, 7, v14
    """)
    a(f"s_lshl_b32 s30, s24, 12\ns_add_u32 s30, s30, {XBASE}\nv_add_u32 v14, s30, v14")
    for s in range(4):
        a(f"v_xor_b32 v16, {2*s}, v15\nv_lshlrev_b32 v16, 4, v16\nv_add_u32 v{2+s}, v14, v16")
    a("s_lshl_b32 s30, s26, 2\ns_add_u32 s30, s30, s24\ns_mul_i32 s31, s30, 86\ns_mul_i32 s32, s25, 6\ns_add_u32 s31, s31, s32\ns_lshl_b32 s31, s31, 10")
    a(f"v_lshlrev_b32 v{AL16}, 4, v13\nv_add_u32 v11, s31, v{AL16}")
    a(f"s_lshl_b32 s30, s30, 4\ns_add_u32 s30, s30, s25\ns_lshl_b32 s30, s30, 7\ns_add_u32 s30, s30, {WS_FH}\nv_mov_b32 v{AFHP}, s30\nv_mov_b32 v{VZ}, 0")

    if tim0 and PST: tim0(a, 3)
    a("""
    s_and_b32 s30, s2, 7
    s_lshr_b32 s31, s2, 3
    s_lshl_b32 s56, s30, 3
    s_and_b32 s57, s31, 3
    s_lshl_b32 s57, s57, 1
    s_add_u32 s38, s56, s57                   ; tb0
    s_lshr_b32 s39, s31, 2                    ; group
    s_lshl_b32 s40, s39, 1                    ; cb0
    s_mul_i32 s56, s24, 22
    s_cmp_eq_u32 s24, 3
    s_cselect_b32 s57, 1, 0
    s_sub_u32 s41, s56, s57                   ; ks0
    s_and_b32 s57, s24, 1
    s_lshr_b32 s58, s24, 1
    s_add_u32 s60, s40, s57
    s_add_u32 s61, s38, s58
    s_xor_b32 s62, s60, 1
    s_xor_b32 s63, s61, 1
    """)
    for (dst, blk, base) in ((AW0, 60, WS_WF), (AH0, 61, WS_H), (AW1, 62, WS_WF), (AH1, 63, WS_H)):
        a(f"s_mul_i32 s57, s{blk}, 86\ns_add_u32 s57, s57, s41\ns_lshl_b32 s57, s57, 10")
        if base: a(f"s_add_u32 s57, s57, {base}")
        a(f"v_add_u32 v{dst}, s57, v{AL16}")
    a(f"s_mov_b32 s59, {5*4096}\ns_cmp_ge_u32 s24, 2\ns_cselect_b32 s59, 0x10000000, s59")
    a(f"""
    v_add_u32 v14, s41, v13
    v_lshlrev_b32 v14, 3, v14
    v_add_u32 v14, s39, v14
    v_lshrrev_b32 v15, 2, v14
    v_lshlrev_b32 v15, 7, v15
    v_and_b32 v14, 3, v14
    v_lshlrev_b32 v14, 3, v14
    s_mov_b32 s56, {WS_F1}
    v_add3_u32 v{AF1}, v14, v15, s56
    s_cmp_ge_u32 s24, 2
    s_mov_b32 s72, 0x3fffff
    s_cselect_b32 s72, 0x1fffff, s72
    s_mov_b32 s73, 0
    """)
    a(f"""
    s_lshr_b32 s56, s24, 1
    s_mul_i32 s56, s56, 7
    s_and_b32 s57, s24, 1
    s_mul_i32 s58, s57, 3
    s_add_u32 s56, s56, s58                   ; ct0
    s_cmp_eq_u32 s57, 1
    s_mov_b32 s74, 0xff
    s_cselect_b32 s74, 0x3ff, s74
    s_mov_b32 s75, 0
    s_lshl_b32 s57, s38, 4
    s_add_u32 s56, s56, s57
    s_lshl_b32 s56, s56, 7
    s_add_u32 s56, s56, {WS_FH}
    v_and_b32 v14, 1, v13
    v_lshlrev_b32 v14, 11, v14
    v_lshrrev_b32 v15, 1, v13
    v_lshlrev_b32 v15, 7, v15
    v_add3_u32 v{AFH}, v14, v15, s56
    """)
    a(f"""
    s_lshl_b32 s56, s39, 5
    s_lshl_b32 s57, s38, 2
    s_sub_u32 s57, s57, 32
    v_cmp_gt_u32 vcc, 32, v13
    v_mov_b32 v14, s57
    v_mov_b32 v15, s56
    v_cndmask_b32 v14, v14, v15, vcc
    v_add_u32 v14, v14, v13
    v_lshlrev_b32 v14, 7, v14
    v_add_u32 v{AF3}, {WS_F3}, v14
    s_mov_b32 s76, -1
    s_mov_b32 s77, 0xff
    """)
    a(f"""
    s_lshl_b32 s56, s60, 17
    s_lshl_b32 s57, s61, 6
    s_add_u32 s56, s56, s57
    s_add_u32 s56, s56, {WS_AT}
    v_lshrrev_b32 v14, 2, v13
    v_lshlrev_b32 v14, 12, v14
    v_and_b32 v15, 3, v13
    v_lshlrev_b32 v16, 4, v15
    v_add3_u32 v{AAT}, v14, v16, s56
    v_and_b32 v17, 31, v13                    ; token in tile
    s_lshl_b32 s56, s61, 8
    s_add_u32 s56, s56, {WS_G}
    v_lshlrev_b32 v14, 3, v17
    v_add_u32 v{AG}, s56, v14
    """)
    G2_ST = 49152
    if "wp" in X:
        a("s_mul_i32 s65, s24, 20480\ns_add_u32 s56, s65, 18432")
    else:
        a(f"s_lshl_b32 s56, s24, 11\ns_add_u32 s56, s56, {G2_ST}")
    a(f"""
    v_add_u32 v{AST}, s56, v{AL16}
    v_lshrrev_b32 v14, 5, v13
    v_lshlrev_b32 v14, 2, v14
    v_bfe_u32 v16, v13, 2, 2
    v_add_u32 v14, v14, v16
    v_lshlrev_b32 v14, 6, v14
    v_bfe_u32 v16, v13, 4, 1
    v_lshlrev_b32 v16, 5, v16
    v_lshlrev_b32 v15, 3, v15
    v_add3_u32 v14, v14, v16, v15
    v_add_u32 v{ATR}, s56, v14
    s_lshl_b32 s56, s61, 15
    s_lshl_b32 s57, s60, 6
    s_add_u32 s56, s56, s57
    v_lshlrev_b32 v14, 10, v17
    v_lshrrev_b32 v15, 5, v13
    v_lshlrev_b32 v15, 4, v15
    v_add3_u32 v{AOUT}, v14, v15, s56
    """)
    for i in (1, 2, 3):
        a(f"s_xor_b32 s56, s24, {i}\ns_mul_i32 s56, s56, {20480 if 'wp' in X else 12288}\ns_add_u32 s{65+i}, s56, {(i-1)*4096}")
    a("s_mul_i32 s69, s24, 12288")
    a(f"s_cmp_lg_u32 s29, 0\ns_cbranch_scc1 {lbl_idle}")

    if tim and "es" not in X: tim(a, 1)
    a.need(vm=[("W", 0), ("X", 0)])
    a("s_barrier")
    if tim and "es" not in X: tim(a, 2)
    for s in range(4): rd_x(0, s)
    for jj in range(6): rd_w(0, jj)
    a("s_setprio 2")
    WP = "wp" in X
    NU, FU = X_get(X, "nu", 9), X_get(X, "fu", 11 if WP else 12)
    REGW = list(range(12)) + [21]
    LDSW = list(range(12, 21))
    def wreg(s):
        i = REGW.index(s)
        if i < 5: return 216 + 8 * i
        if i < 8: return 16 + 8 * (i - 5)
        return 176 + 8 * (i - 8)
    cur = [None]
    def soff(s):
        so = (s >> 2) * 4096
        if s == 21: return "s59"
        if so == 0: return "0"
        if cur[0] != so:
            a(f"s_mov_b32 s64, {so}"); cur[0] = so
        return "s64"
    def ldw(s, k):
        r = wreg(s) + 4 * k
        sreg = soff(s)
        a.vmop(f"buffer_load_dwordx4 v[{r}:{r+3}], v{40+2*k}, s[{SWS}:{SWS+3}], {sreg} offen offset:{(s&3)*1024} sc1", ("w2", s, k))
    m0cur = [None]
    def ldw_lds(s, k):
        sreg = soff(s)
        m = k * 9216 + ((s >> 2) - 3) * 4096
        if m0cur[0] != m:
            a(f"s_add_u32 m0, s65, {m}"); m0cur[0] = m
        a.vmop(f"buffer_load_dwordx4 v{40+2*k}, s[{SWS}:{SWS+3}], {sreg} offen offset:{(s&3)*1024} sc1 lds", ("w2", s, k))
    early = [(s_, k_) for s_ in REGW[:8] for k_ in range(2)]
    W0U = X_get(X, "w0u", 13)
    for u in range(16):
        c, hb = u >> 1, u & 1
        for sp in range(2):
            S = 2 * u + sp
            sx = S & 3
            for jj in range(6):
                mat, j = jj & 1, jj >> 1
                lg = [("w", S, jj)]
                if jj == 0: lg.append(("x", c, sx))
                a.need(lg=lg)
                d = ACC(mat, j)
                src_c = "0" if S == 0 else f"v[{d}:{d+15}]"
                a(f"v_mfma_f32_32x32x16_bf16 v[{d}:{d+15}], v[{WF(mat,j)}:{WF(mat,j)+3}], v[{XF(c&1,sx)}:{XF(c&1,sx)+3}], {src_c}")
                if sp == 1 and jj == 0 and u < 15:
                    a.need(vm=("W", u + 1))
                    a("s_barrier")
                if S + 1 < 32: rd_w(S + 1, jj)
                if sp == 0 and jj in (1, 3, 5) and u + 3 < 16:
                    dma_w(u + 3, jj >> 1)
                if hb == 0 and sp == 1 and jj in (1, 2, 3, 4) and c + 2 < 8:
                    if jj == 1:
                        a.need(lg=("x", c, 3))
                    dma_x(c + 2, jj - 1)
                if hb == 1 and sp == 0 and jj in (0, 2, 4) and c + 1 < 8:
                    if jj == 0: a.need(vm=("X", c + 1))
                    if jj == 0: rd_x(c + 1, 0); rd_x(c + 1, 1)
                    if jj == 2: rd_x(c + 1, 2)
                    if jj == 4: rd_x(c + 1, 3)
                if u == NU and sp == 1 and jj == 5:
                    a.vmop(f"global_load_dwordx2 v[{PV}:{PV+1}], v{VZ}, s[{DBG}:{DBG+1}] sc1", "non")
                if u == NU + 2 and sp == 1 and jj == 5:
                    nonce_get(a, "Pn", PV, NON, DBG, VZ, "non")
                if u == FU and sp == 1 and jj == 5:
                    a("s_mov_b64 exec, s[72:73]")
                    a.vmop(f"buffer_load_dwordx2 v[{PV}:{PV+1}], v{AF1}, s[{SWS}:{SWS+3}], 0 offen sc1", "f1")
                    a("s_mov_b64 exec, -1")
                if WP:
                    if u == W0U - 1 and sp == 1 and jj == 5:
                        spin_wait(a, "Pf1", AF1, PV, SWS, 72, NON, "f1")
                    if u >= W0U and jj in (1, 3, 5) and early:
                        ldw(*early.pop(0))
    if tim: tim(a, 3)
    if not WP: spin_wait(a, "Pf1", AF1, PV, SWS, 72, NON, "f1")
    if WP:
        while early: ldw(*early.pop(0))
        a("s_barrier")
        if tim and "es" in X: tim(a, 1)
        lds_list = [(s_, k_) for k_ in range(2) for s_ in LDSW]
        for _ in range(X_get(X, "d0", 0)): ldw_lds(*lds_list.pop(0))
    lbl_done = a.newlabel("G1done")
    a("s_nop 7\ns_nop 3")
    for j in range(3):
        if j == 1:
            a(f"s_cmp_eq_u32 s25, 14\ns_cbranch_scc1 {lbl_done}")
        g, up = ACC(0, j), ACC(1, j)
        T = 160 if WP else 16
        for r in range(16):
            a(f"v_max_f32 v{g+r}, 0, v{g+r}")
        if "fe" in X:
            for r in range(16):
                a(f"v_mul_f32 v{g+r}, v{g+r}, v{up+r}")
        else:
            for r in range(16):
                a(f"v_cvt_pk_bf16_f32 v{g+r}, 0, v{g+r}")
                a(f"v_cvt_pk_bf16_f32 v{up+r}, 0, v{up+r}")
            for r in range(16):
                a(f"v_mul_f32 v{g+r}, v{g+r}, v{up+r}")
        for r in range(8):
            a(f"v_cvt_pk_bf16_f32 v{T+8*j+r}, v{g+2*r}, v{g+2*r+1}")
        for p in range(2):
            n = T + 8 * j + 4 * p
            a("s_nop 0")
            a(f"v_permlane32_swap_b32 v{n}, v{n+2}")
            a(f"v_permlane32_swap_b32 v{n+1}, v{n+3}")
            a("s_nop 0")
            off = (2 * j + p) * 1024
            so = "0"
            if off > 4095:
                a(f"s_mov_b32 s30, {off}"); so = "s30"; off = 0
            a.vmop(f"buffer_store_dwordx4 v[{n}:{n+3}], v11, s[{SH}:{SH+3}], {so} offen offset:{off} sc1", ("st",))
        for _ in range(X_get(X, "pad", 0)): a("s_nop 15")
        if WP and j == 0:
            for _ in range(min(X_get(X, "d1", 0), len(lds_list))): ldw_lds(*lds_list.pop(0))
    a(f"{lbl_done}:")
    if tim and "es" in X: tim(a, 2)
    if WP:
        gemm2_wp(a, tim, X, locals())
        return

    PF = 8
    ACC2 = lambda i: 64 + 16 * i
    FR = lambda b, k: 128 + (b * 4 + k) * 4
    cur = [None]
    def ld(s, k):
        so = (s >> 2) * 4096
        if s == 21:
            sreg = "s59"
        elif so == 0:
            sreg = "0"
        else:
            if cur[0] != so:
                a(f"s_mov_b32 s64, {so}"); cur[0] = so
            sreg = "s64"
        r = FR(s % PF, k)
        a.vmop(f"buffer_load_dwordx4 v[{r}:{r+3}], v{40+k}, s[{SWS}:{SWS+3}], {sreg} offen offset:{(s&3)*1024} sc1", ("f", s, k))
    lbl_j = a.newlabel("Pjoin")
    for s in range(PF):
        ld(s, 0); ld(s, 2)
    a(f"s_waitcnt vmcnt({2*PF})")
    a(f"v_mov_b32 v{PV}, s{NON}\nv_mov_b32 v{PV+1}, s{NON+1}\ns_mov_b64 exec, 1")
    a.vmop(f"buffer_store_dwordx2 v[{PV}:{PV+1}], v{AFHP}, s[{SWS}:{SWS+3}], 0 offen sc1", "fh")
    a("s_mov_b64 exec, -1")
    a(f"s_branch {lbl_j}")
    a(f"{lbl_idle}:")
    sv = (list(a.vm), a.vmdone, list(a.lg), a.lgdone)
    nonce_get(a, "Pi", PV, NON, DBG, VZ)
    spin_wait(a, "Pi1", AF1, PV, SWS, 72, NON)
    cur[0] = None
    for s in range(PF):
        ld(s, 0); ld(s, 2)
    a.vm, a.vmdone, a.lg, a.lgdone = sv
    cur[0] = None
    a(f"{lbl_j}:")
    if tim: tim(a, 4)
    a("s_setprio 2")
    spin_wait(a, "Pfh", AFH, PV, SWS, 74, NON)
    a.vmdone = len(a.vm)
    if tim: tim(a, 5)
    for s in range(PF):
        ld(s, 1); ld(s, 3)
    poll_at, chk_at = X_get(X, "pa", 14), X_get(X, "ca", 19)
    ATB = 16
    for s in range(22):
        b = s % PF
        W0, H0, W1, H1 = (FR(b, k) for k in range(4))
        nxt = s + PF < 22
        def mf(i, W, H):
            d = ACC2(i)
            c = "0" if s == 0 else f"v[{d}:{d+15}]"
            a(f"v_mfma_f32_32x32x16_bf16 v[{d}:{d+15}], v[{W}:{W+3}], v[{H}:{H+3}], {c}")
        if s < PF:
            a.need(vm=[("f", s, 1)]); mf(0, W0, H0); mf(1, W1, H0)
            a.need(vm=[("f", s, 3)]); mf(2, W0, H1)
            mf(3, W1, H1)
            if nxt:
                for k in (1, 3, 0, 2): ld(s + PF, k)
        else:
            a.need(vm=[("f", s, 0), ("f", s, 1), ("f", s, 2), ("f", s, 3)])
            mf(0, W0, H0)
            mf(1, W1, H0)
            mf(2, W0, H1)
            mf(3, W1, H1)
            if nxt:
                for k in (1, 3, 0, 2): ld(s + PF, k)
        if s == poll_at:
            a("s_mov_b64 exec, s[76:77]")
            a.vmop(f"buffer_load_dwordx2 v[{PV}:{PV+1}], v{AF3}, s[{SWS}:{SWS+3}], 0 offen sc1", "poll")
            a("s_mov_b64 exec, -1")
        if s == chk_at:
            if "nof3" not in X: spin_wait(a, "Pf3", AF3, PV, SWS, 76, NON, "poll")
            a.vmop(f"buffer_load_dwordx4 v[{ATB}:{ATB+3}], v{AAT}, s[{SWS}:{SWS+3}], 0 offen sc1", "at")
            a("s_mov_b32 s64, 65536"); cur[0] = 65536
            a.vmop(f"buffer_load_dwordx4 v[{ATB+4}:{ATB+7}], v{AAT}, s[{SWS}:{SWS+3}], s64 offen sc1", "at")
            a.vmop(f"buffer_load_dwordx2 v[{GV}:{GV+1}], v{AG}, s[{SWS}:{SWS+3}], 0 offen sc1", "g")
    if tim: tim(a, 6)
    for i in (1, 2, 3):
        a(f"v_add_u32 v{3+i}, s{65+i}, v{AL16}")
    a(f"v_add_u32 v7, s69, v{AL16}")
    for i in (1, 2, 3):
        for q in range(4):
            r = ACC2(i) + 4 * q
            a.lgop(f"ds_write_b128 v{3+i}, v[{r}:{r+3}] offset:{q*1024}", "rw")
    a.need(vm="at")
    a.lgop(f"ds_write_b128 v{AST}, v[{ATB}:{ATB+3}]", "sa")
    a.lgop(f"ds_write_b128 v{AST}, v[{ATB+4}:{ATB+7}] offset:1024", "sa")
    a.drain(vm=False, lg=True)
    a("s_barrier")
    XR = 128
    for i in range(3):
        for q in range(4):
            r = XR + 16 * i + 4 * q
            a.lgop(f"ds_read_b128 v[{r}:{r+3}], v7 offset:{i*4096 + q*1024}", ("p", i))
    AV = 176
    for q in range(4):
        a.lgop(f"ds_read_b64_tr_b16 v[{AV+2*q}:{AV+2*q+1}], v{ATR} offset:{q*512}", "a")
    A0 = ACC2(0)
    for i in range(3):
        a.need(lg=("p", i))
        for r in range(16):
            a(f"v_add_f32 v{A0+r}, v{A0+r}, v{XR+16*i+r}")
    a.need(lg="a", vm="g")
    U = 184
    for q in range(4):
        for k in range(2):
            a(f"v_lshlrev_b32 v{U+4*q+2*k}, 16, v{AV+2*q+k}")
            a(f"v_and_b32 v{U+4*q+2*k+1}, 0xffff0000, v{AV+2*q+k}")
    for r in range(16):
        a(f"v_cvt_pk_bf16_f32 v{A0+r}, 0, v{A0+r}")
    for r in range(16):
        a(f"v_mul_f32 v{U+r}, v{GV}, v{U+r}")
    for r in range(16):
        a(f"v_mul_f32 v{A0+r}, v{GV+1}, v{A0+r}")
    for r in range(16):
        a(f"v_cvt_pk_bf16_f32 v{U+r}, 0, v{U+r}")
    for r in range(16):
        a(f"v_cvt_pk_bf16_f32 v{A0+r}, 0, v{A0+r}")
    for r in range(16):
        a(f"v_add_f32 v{U+r}, v{U+r}, v{A0+r}")
    P = 200
    for k in range(8):
        a(f"v_cvt_pk_bf16_f32 v{P+k}, v{U+2*k}, v{U+2*k+1}")
    for pr in range(2):
        n = P + 4 * pr
        a(f"v_permlane32_swap_b32 v{n}, v{n+2}")
        a(f"v_permlane32_swap_b32 v{n+1}, v{n+3}")
        a.vmop(f"buffer_store_dwordx4 v[{n}:{n+3}], v{AOUT}, s[{SO}:{SO+3}], 0 offen offset:{pr*32}", "st")

def gemm2_wp(a, tim, X, L):
    g = L
    SWS, SO, NON_, PV, GV = g["SWS"], g["SO"], NON, g["PV"], g["GV"]
    AFHP, AF1, AFH, AF3, AAT, AG, AL16, ATR, AOUT, VZ, DBG = (g[k] for k in "AFHP AF1 AFH AF3 AAT AG AL16 ATR AOUT VZ DBG".split())
    REGW, LDSW, wreg, ldw, ldw_lds, soff, cur, m0cur, lbl_idle = (g[k] for k in "REGW LDSW wreg ldw ldw_lds soff cur m0cur lbl_idle".split())
    ACC2 = lambda i: 64 + 16 * i
    lbl_j = a.newlabel("Pjoin")
    cur[0] = None
    late = [(ldw, s_, k_) for s_ in REGW[8:] for k_ in range(2)] + [(ldw_lds, s_, k_) for (s_, k_) in g["lds_list"]]
    K1 = min(X_get(X, "k1", 14), len(late))
    for f_, s_, k_ in late[:K1]: f_(s_, k_)
    a(f"s_waitcnt vmcnt({K1})")
    if tim and "es" in X: tim(a, 4)
    a(f"v_mov_b32 v{PV}, s{NON}\nv_mov_b32 v{PV+1}, s{NON+1}\ns_mov_b64 exec, 1")
    a.vmop(f"buffer_store_dwordx2 v[{PV}:{PV+1}], v{AFHP}, s[{SWS}:{SWS+3}], 0 offen sc1", "fh")
    a("s_mov_b64 exec, -1")
    for f_, s_, k_ in late[K1:]: f_(s_, k_)
    a(f"s_branch {lbl_j}")
    a(f"{lbl_idle}:")
    sv = (list(a.vm), a.vmdone, list(a.lg), a.lgdone)
    nonce_get(a, "Pi", PV, NON, DBG, VZ)
    spin_wait(a, "Pi1", AF1, PV, SWS, 72, NON)
    cur[0] = None; m0cur[0] = None
    for s_ in REGW:
        for k_ in range(2): ldw(s_, k_)
    for k_ in range(2):
        for s_ in LDSW: ldw_lds(s_, k_)
    a.vm, a.vmdone, a.lg, a.lgdone = sv
    cur[0] = None
    a(f"{lbl_j}:")
    if tim and "es" not in X: tim(a, 4)
    a("s_setprio 2")
    a(f"v_add_u32 v7, s65, v{AL16}")
    spin_wait(a, "Pfh", AFH, PV, SWS, 74, NON)
    a.vmdone = len(a.vm)
    if tim: tim(a, 5)
    HD = X_get(X, "hd", 6)
    free = []
    hslot = {}
    def ldh(s):
        r = hslot[s]
        for k in range(2):
            sreg = soff(s)
            a.vmop(f"buffer_load_dwordx4 v[{r+4*k}:{r+4*k+3}], v{41+2*k}, s[{SWS}:{SWS+3}], {sreg} offen offset:{(s&3)*1024} sc1", ("h", s, k))
    for s in range(HD):
        hslot[s] = 128 + 8 * s; ldh(s)
    nexth = HD
    wslot = {s: wreg(s) for s in REGW}
    def rdw(s):
        r = wslot[s] = free.pop(0)
        for k in range(2):
            a.lgop(f"ds_read_b128 v[{r+4*k}:{r+4*k+3}], v7 offset:{k*9216 + (s-12)*1024}", ("w", s))
    poll_at, chk_at = X_get(X, "pa", 14), X_get(X, "ca", 19)
    ATB = None
    for s in range(22):
        W0, W1 = wslot[s], wslot[s] + 4
        H0, H1 = hslot[s], hslot[s] + 4
        def mf(i, W, H):
            d = ACC2(i)
            c = "0" if s == 0 else f"v[{d}:{d+15}]"
            a(f"v_mfma_f32_32x32x16_bf16 v[{d}:{d+15}], v[{W}:{W+3}], v[{H}:{H+3}], {c}")
        if s in LDSW: a.need(lg=("w", s))
        a.need(vm=[("h", s, 0)]); mf(0, W0, H0); mf(1, W1, H0)
        a.need(vm=[("h", s, 1)]); mf(2, W0, H1); mf(3, W1, H1)
        free += [wslot[s], hslot[s]]
        if s + 2 in LDSW: rdw(s + 2)
        while nexth < 22 and len(free) > (1 if (s + 3 in LDSW) else 0):
            hslot[nexth] = free.pop(0); ldh(nexth); nexth += 1
        if s == poll_at:
            a("s_mov_b64 exec, s[76:77]")
            a.vmop(f"buffer_load_dwordx2 v[{PV}:{PV+1}], v{AF3}, s[{SWS}:{SWS+3}], 0 offen sc1", "poll")
            a("s_mov_b64 exec, -1")
        if s == chk_at:
            ATB = free.pop(0)
            if "nof3" not in X: spin_wait(a, "Pf3", AF3, PV, SWS, 76, NON, "poll")
            a.vmop(f"buffer_load_dwordx4 v[{ATB}:{ATB+3}], v{AAT}, s[{SWS}:{SWS+3}], 0 offen sc1", "at")
            a("s_mov_b32 s64, 65536"); cur[0] = 65536
            a.vmop(f"buffer_load_dwordx4 v[{ATB+4}:{ATB+7}], v{AAT}, s[{SWS}:{SWS+3}], s64 offen sc1", "at")
            a.vmop(f"buffer_load_dwordx2 v[{GV}:{GV+1}], v{AG}, s[{SWS}:{SWS+3}], 0 offen sc1", "g")
    if tim: tim(a, 6)
    for i in (1, 2, 3):
        a(f"v_add_u32 v{3+i}, s{65+i}, v{AL16}")
    for i in (1, 2, 3):
        for q in range(4):
            r = ACC2(i) + 4 * q
            a.lgop(f"ds_write_b128 v7, v[{r}:{r+3}] offset:{(i-1)*4096 + q*1024}", "rw")
    a.need(vm="at")
    a.lgop(f"ds_write_b128 v7, v[{ATB}:{ATB+3}] offset:18432", "sa")
    a.lgop(f"ds_write_b128 v7, v[{ATB+4}:{ATB+7}] offset:19456", "sa")
    a.drain(vm=False, lg=True)
    a("s_barrier")
    XR = 128
    for i in range(3):
        for q in range(4):
            r = XR + 16 * i + 4 * q
            a.lgop(f"ds_read_b128 v[{r}:{r+3}], v{4+i} offset:{q*1024}", ("p", i))
    AV = 176
    for q in range(4):
        a.lgop(f"ds_read_b64_tr_b16 v[{AV+2*q}:{AV+2*q+1}], v{ATR} offset:{q*512}", "a")
    A0 = ACC2(0)
    FE = "fe" in X
    for i in range(3):
        a.need(lg=("p", i))
        if FE:
            for r in range(0, 16, 2):
                a(f"v_pk_add_f32 v[{A0+r}:{A0+r+1}], v[{A0+r}:{A0+r+1}], v[{XR+16*i+r}:{XR+16*i+r+1}]")
        else:
            for r in range(16):
                a(f"v_add_f32 v{A0+r}, v{A0+r}, v{XR+16*i+r}")
    a.need(lg="a", vm="g")
    U = 184
    for q in range(4):
        for k in range(2):
            a(f"v_lshlrev_b32 v{U+4*q+2*k}, 16, v{AV+2*q+k}")
            a(f"v_and_b32 v{U+4*q+2*k+1}, 0xffff0000, v{AV+2*q+k}")
    if FE:
        for r in range(0, 16, 2):
            a(f"v_pk_mul_f32 v[{U+r}:{U+r+1}], v[{U+r}:{U+r+1}], v[{GV}:{GV+1}] op_sel:[0,0] op_sel_hi:[1,0]")
        for r in range(0, 16, 2):
            a(f"v_pk_fma_f32 v[{U+r}:{U+r+1}], v[{A0+r}:{A0+r+1}], v[{GV}:{GV+1}], v[{U+r}:{U+r+1}] op_sel:[0,1,0] op_sel_hi:[1,1,1]")
    else:
        for r in range(16):
            a(f"v_cvt_pk_bf16_f32 v{A0+r}, 0, v{A0+r}")
        for r in range(16):
            a(f"v_mul_f32 v{U+r}, v{GV}, v{U+r}")
        for r in range(16):
            a(f"v_mul_f32 v{A0+r}, v{GV+1}, v{A0+r}")
        for r in range(16):
            a(f"v_cvt_pk_bf16_f32 v{U+r}, 0, v{U+r}")
        for r in range(16):
            a(f"v_cvt_pk_bf16_f32 v{A0+r}, 0, v{A0+r}")
        for r in range(16):
            a(f"v_add_f32 v{U+r}, v{U+r}, v{A0+r}")
    P = 200
    for k in range(8):
        a(f"v_cvt_pk_bf16_f32 v{P+k}, v{U+2*k}, v{U+2*k+1}")
    for pr in range(2):
        n = P + 4 * pr
        a(f"v_permlane32_swap_b32 v{n}, v{n+2}")
        a(f"v_permlane32_swap_b32 v{n+1}, v{n+3}")
        a.vmop(f"buffer_store_dwordx4 v[{n}:{n+3}], v{AOUT}, s[{SO}:{SO+3}], 0 offen offset:{pr*32}", "st")

def X_get(X, key, default):
    for x in X:
        if x.startswith(key + "="): return int(x.split("=")[1])
    return default
```

```python
import sys
sys.path.insert(0, "dev")
sys.path.insert(0, "f")
from gen import *
from kgen import LOG2E, LOG2E_LO, LN2, dpp_sum, dpp_sum2
from pp import spin_wait, nonce_get, X_get, WS_F1, WS_F3

KT_ROW = 1056
KT0 = 1056
KT_CH = 20 * KT_ROW
UB = 42240

def qrole(a, tim=None, X=()):
    SU, SWD, SWS = 32, 36, 48
    DBG, WSP, NON, CNT = 40, 42, 44, 46
    UTST, WFST = 65536, 73728
    GU, GW0 = 240, 248
    NV, PV = 252, 254
    UR, WR = 224, 232
    a("""
    s_load_dwordx16 s[4:19], s[0:1], 0
    s_load_dwordx2 s[20:21], s[0:1], 64
    s_load_dwordx4 s[24:27], s[0:1], 96
    s_load_dwordx4 s[40:43], s[0:1], 120
    s_load_dwordx4 s[52:55], s[0:1], 80
    s_and_b32 s3, s2, 255
    v_lshrrev_b32 v22, 6, v0
    v_and_b32 v1, 63, v0
    s_lshl_b32 s56, s3, 9
    v_readfirstlane_b32 s28, v22
    v_lshlrev_b32 v23, 1, v0
    v_add_u32 v23, s56, v23            ; (id2*256+tid)*2
    v_lshrrev_b32 v24, 7, v0
    v_lshlrev_b32 v24, 1, v24
    s_lshl_b32 s56, s3, 2
    v_add_u32 v24, s56, v24            ; ch*2
    s_and_b32 s29, s28, 1
    """)
    a("""
    s_lshl_b32 s56, s3, 3
    s_lshl_b32 s57, s28, 1
    s_add_u32 s30, s56, s57            ; token0
    s_lshl_b32 s56, s30, 10
    v_lshlrev_b32 v25, 4, v1           ; lane*16
    v_add_u32 v26, s56, v25
    """)
    a("""
    s_lshr_b32 s58, s3, 4              ; tokblk
    s_and_b32 s59, s3, 15              ; chgrp
    s_lshl_b32 s56, s58, 7
    s_add_u32 s56, s56, s28
    s_lshl_b32 s56, s56, 10
    s_lshl_b32 s57, s59, 6
    s_add_u32 s56, s56, s57
    v_lshrrev_b32 v27, 2, v1
    v_lshlrev_b32 v27, 12, v27
    v_and_b32 v28, 3, v1
    v_lshlrev_b32 v28, 4, v28
    v_add3_u32 v27, v27, v28, s56
    """)
    a("""
    s_lshl_b32 s56, s3, 2
    s_add_u32 s56, s56, s28
    s_lshr_b32 s60, s56, 3             ; ks
    s_and_b32 s61, s56, 7              ; cb64
    s_lshl_b32 s56, s60, 14
    s_lshl_b32 s57, s61, 7
    s_add_u32 s56, s56, s57
    v_lshrrev_b32 v28, 3, v1
    v_lshlrev_b32 v28, 10, v28
    v_and_b32 v29, 7, v1
    v_lshlrev_b32 v29, 4, v29
    v_add3_u32 v28, v28, v29, s56
    s_lshl_b32 s62, s28, 11            ; w*2048
    s_waitcnt lgkmcnt(0)
    """)
    for i, p in enumerate((6, 8, 10, 12, 14, 16)):
        a.vmop(f"global_load_ushort v{2+i}, v23, s[{p}:{p+1}]", "in")
    a.vmop("global_load_ushort v8, v24, s[18:19]", "in")
    a.vmop("global_load_ushort v9, v24, s[20:21]", "in")
    srd_from(a, SU, 4, 5, 2048 * 1024)
    srd_from(a, SWD, 24, 25, 1376 * 1024)
    a(f"s_add_u32 m0, s62, {UTST}")
    a("s_mov_b32 s56, 65536")
    a.vmop(f"buffer_load_dwordx4 v27, s[{SU}:{SU+3}], 0 offen lds", "ut")
    a(f"s_add_u32 m0, s62, {UTST + 1024}")
    a("s_nop 0")
    a.vmop(f"buffer_load_dwordx4 v27, s[{SU}:{SU+3}], s56 offen lds", "ut")
    a(f"s_add_u32 m0, s62, {WFST}")
    a("s_mov_b32 s56, 8192")
    a.vmop(f"buffer_load_dwordx4 v28, s[{SWD}:{SWD+3}], 0 offen lds", "wf")
    a(f"s_add_u32 m0, s62, {WFST + 1024}")
    a("s_nop 0")
    a.vmop(f"buffer_load_dwordx4 v28, s[{SWD}:{SWD+3}], s56 offen lds", "wf")
    a.vmop(f"global_load_dwordx4 v[{GU}:{GU+3}], v26, s[4:5]", "g")
    a.vmop(f"global_load_dwordx4 v[{GU+4}:{GU+7}], v26, s[4:5] offset:1024", "g")
    a.vmop(f"global_load_dwordx4 v[{GW0}:{GW0+3}], v25, s[26:27]", "g")
    srd_from(a, SWS, WSP, WSP + 1, WS_END)
    a(f"""
    v_lshrrev_b32 v10, 4, v1           ; g
    v_lshlrev_b32 v11, 3, v10
    v_bfe_u32 v12, v1, 2, 2            ; r
    v_add_u32 v11, v11, v12
    v_sub_u32 v11, 27, v11
    v_lshlrev_b32 v11, 6, v11
    v_and_b32 v13, 3, v1
    v_lshlrev_b32 v13, 3, v13          ; c*8
    s_add_u32 s56, s62, {UTST}
    v_add3_u32 v14, v11, v13, s56
    v_lshrrev_b32 v11, 5, v1
    v_lshlrev_b32 v11, 3, v11
    v_add_u32 v11, v11, v12
    v_lshlrev_b32 v11, 7, v11
    v_and_b32 v15, 1, v10
    v_lshlrev_b32 v15, 5, v15
    v_add3_u32 v11, v11, v15, v13
    s_add_u32 s56, s62, {WFST}
    v_add_u32 v15, s56, v11
    s_lshl_b32 s56, s58, 2
    s_add_u32 s56, s56, s28
    s_lshl_b32 s56, s56, 9
    s_lshl_b32 s57, s59, 5
    s_add_u32 s56, s56, s57
    s_lshl_b32 s56, s56, 6
    s_add_u32 s56, s56, {WS_UT}
    v_and_b32 v16, 15, v1
    v_lshlrev_b32 v16, 6, v16
    v_lshlrev_b32 v17, 4, v10
    v_add3_u32 v16, v16, v17, s56
    s_mul_i32 s56, s61, 172
    s_add_u32 s56, s56, s60
    s_lshl_b32 s56, s56, 10
    s_add_u32 s56, s56, {WS_WF}
    s_cmp_ge_u32 s60, 86
    s_cselect_b32 s64, 0x10000000, s56
    s_add_u32 s65, s64, 88064
    """)
    a(f"""
    s_lshl_b32 s56, s3, 7
    s_lshl_b32 s57, s28, 3
    s_add_u32 s56, s56, s57
    s_add_u32 s56, s56, {WS_F1}
    v_mov_b32 v17, s56
    s_lshr_b32 s56, s3, 4
    s_lshl_b32 s56, s56, 7
    s_add_u32 s56, s56, {WS_F1}
    v_lshrrev_b32 v18, 2, v1
    v_lshlrev_b32 v18, 11, v18
    v_and_b32 v19, 3, v1
    v_lshlrev_b32 v19, 3, v19
    v_add3_u32 v18, v18, v19, s56
    v_mov_b32 v19, 0
    s_mov_b64 s[66:67], -1
    """)
    a(f"""
    s_lshr_b32 s31, s28, 1                    ; cl
    s_lshl_b32 s47, s3, 1
    s_add_u32 s47, s47, s31                   ; ch
    v_lshrrev_b32 v20, 2, v1
    v_sub_u32 v20, 15, v20
    v_lshlrev_b32 v20, 17, v20
    v_and_b32 v21, 3, v1
    v_lshlrev_b32 v21, 4, v21
    s_lshl_b32 s56, s29, 16
    s_lshl_b32 s57, s47, 6
    s_add_u32 s56, s56, s57
    s_add_u32 s56, s56, {WS_UT}
    v_add3_u32 v20, v20, v21, s56
    """)

    L2H = X_get(X, "l2", -99)
    if L2H != -99:
        a("""
        s_lshr_b32 s56, s3, 3                     ; j
        s_cmp_ge_u32 s56, 16
        s_cselect_b32 s52, s54, s52
        s_cselect_b32 s53, s55, s53
        s_mov_b32 s54, 1409024
        s_mov_b32 s55, 0x00020000
        s_and_b32 s57, s56, 15
        s_lshl_b32 s57, s57, 3
        s_add_u32 s57, s57, 96
        v_lshrrev_b32 v10, 5, v0
        v_add_u32 v10, s57, v10
        v_mul_u32_u24 v10, 2752, v10
        v_and_b32 v11, 31, v0
        s_and_b32 s57, s3, 1
        s_mul_i32 s58, s57, 1536
        s_cmp_eq_u32 s57, 0
        s_cselect_b32 s57, 24, 19
        v_lshlrev_b32 v12, 6, v11
        v_add3_u32 v12, v12, v10, s58
        v_cmp_gt_u32 vcc, s57, v11
        v_mov_b32 v10, 0x8000000
        v_cndmask_b32 v12, v10, v12, vcc
        s_bfe_u32 s57, s3, 0x20001                ; x>>1
        s_lshl_b32 s57, s57, 19
        s_lshl_b32 s58, s56, 14                   ; j*16 rows*1024
        s_add_u32 s57, s57, s58
        v_lshrrev_b32 v11, 4, v0
        v_lshlrev_b32 v11, 10, v11
        v_and_b32 v13, 15, v0
        v_cmp_le_u32 vcc, 4, v13
        v_lshlrev_b32 v13, 6, v13
        v_add3_u32 v13, v13, v11, s57
        v_cndmask_b32 v13, v10, v13, vcc
        """)
    def l2pf():
        a.vmop("buffer_load_dword v28, v12, s[52:55], 0 offen", "l2")
        a.vmop(f"buffer_load_dword v28, v13, s[{SU}:{SU+3}], 0 offen", "l2")
        for i in (1, 2, 3):
            a(f"s_mov_b32 s56, {i*128*2752}")
            a.vmop("buffer_load_dword v28, v12, s[52:55], s56 offen", "l2")

    Q = lambda q: (32 + 2 * q, 33 + 2 * q)
    T0 = lambda c: (64 + 2 * c, 65 + 2 * c)
    T1 = lambda c: (96 + 2 * c, 97 + 2 * c)
    T2 = lambda c: (128 + 2 * c, 129 + 2 * c)
    KE = (160, 161)
    E1, E64, E512, E128, E192, E256, E2, E3 = [(162 + 2 * i, 163 + 2 * i) for i in range(8)]
    E4 = Q(1)
    tcnt = [0]
    def cmul(d, x, y):
        t = 178 + 2 * (tcnt[0] % 4); tcnt[0] += 1
        assert x[0] % 2 == 0 and y[0] % 2 == 0 and d[0] % 2 == 0 and x[1] == x[0] + 1 and y[1] == y[0] + 1 and d[1] == d[0] + 1
        if "nopk" in X:
            a(f"v_mul_f32 v{t}, v{x[1]}, v{y[1]}")
            a(f"v_mul_f32 v{t+1}, v{x[1]}, v{y[0]}")
            a(f"v_fma_f32 v{d[0]}, v{x[0]}, v{y[0]}, -v{t}")
            a(f"v_fma_f32 v{d[1]}, v{x[0]}, v{y[1]}, v{t+1}")
            return
        a(f"v_pk_mul_f32 v[{t}:{t+1}], v[{x[0]}:{x[1]}], v[{y[0]}:{y[1]}] op_sel:[1,1] op_sel_hi:[1,0]")
        pend.append(f"v_pk_fma_f32 v[{d[0]}:{d[1]}], v[{x[0]}:{x[1]}], v[{y[0]}:{y[1]}], v[{t}:{t+1}] op_sel:[0,0,0] op_sel_hi:[0,1,1] neg_lo:[0,0,1]")
        a(pend.pop(0))
    pend = []
    PK = lambda g, part: 192 + (g * 2 + part) * 4 if g < 4 else 192 + ((g - 4) * 2 + part) * 4
    a("""
    v_and_b32 v30, 127, v0
    v_lshlrev_b32 v30, 4, v30
    v_lshrrev_b32 v31, 7, v0
    v_lshlrev_b32 v31, 15, v31
    v_add_u32 v30, v30, v31
    v_xor_b32 v31, 64, v30
    """)
    def put_group(g, cols, negim):
        if g >= 4:
            a.need(lg=("tw", g - 4))
        for part in range(2):
            for i in range(4):
                x, y = cols[2 * i][part], cols[2 * i + 1][part]
                n = "-" if (negim and part == 1) else ""
                a(f"v_cvt_pk_bf16_f32 v{PK(g,part)+i}, {n}v{x}, {n}v{y}")
            p = PK(g, part)
            a.lgop(f"ds_write_b128 v{30 + (g & 1)}, v[{p}:{p+3}] offset:{g*4096 + part*2048}", ("tw", g))

    def prep_rd():
        a.need(vm="wf")
        for cg in range(2):
            a.lgop(f"ds_read_b64_tr_b16 v[{UR+4*cg}:{UR+4*cg+1}], v14 offset:{256 + cg*32}", "utr")
            a.lgop(f"ds_read_b64_tr_b16 v[{UR+4*cg+2}:{UR+4*cg+3}], v14 offset:{cg*32}", "utr")
        for h in range(2):
            a.lgop(f"ds_read_b64_tr_b16 v[{WR+4*h}:{WR+4*h+1}], v15 offset:{h*64}", "wtr")
            a.lgop(f"ds_read_b64_tr_b16 v[{WR+4*h+2}:{WR+4*h+3}], v15 offset:{h*64 + 512}", "wtr")
    def prep_st():
        a.need(lg="utr")
        a.vmop(f"buffer_store_dwordx4 v[{UR}:{UR+3}], v16, s[{SWS}:{SWS+3}], 0 offen sc1", "st")
        a.vmop(f"buffer_store_dwordx4 v[{UR+4}:{UR+7}], v16, s[{SWS}:{SWS+3}], 0 offen offset:1024 sc1", "st")
        a.need(lg="wtr")
        a.vmop(f"buffer_store_dwordx4 v[{WR}:{WR+3}], v25, s[{SWS}:{SWS+3}], s64 offen sc1", "st")
        a.vmop(f"buffer_store_dwordx4 v[{WR+4}:{WR+7}], v25, s[{SWS}:{SWS+3}], s65 offen sc1", "st")
        a.vmop(f"global_load_dwordx2 v[{NV}:{NV+1}], v19, s[{DBG}:{DBG+1}] sc1", "non")
    def prep_flag():
        nonce_get(a, "Qn", NV, NON, DBG, 19, "non", cnt=CNT)
        a.need(vm="st")
        a(f"v_mov_b32 v{NV}, s{NON}\nv_mov_b32 v{NV+1}, s{NON+1}\ns_mov_b64 exec, 1")
        a.vmop(f"buffer_store_dwordx2 v[{NV}:{NV+1}], v17, s[{SWS}:{SWS+3}], 0 offen sc1", "f1")
        a("s_mov_b64 exec, -1")

    PR, PS, PFL = X_get(X, "pr", 0), X_get(X, "ps", 1), X_get(X, "pf", 5)
    QP, QM = X_get(X, "qp", 0), X_get(X, "qm", 0)
    QX = X_get(X, "qx", 0)
    PD = X_get(X, "pd", PFL)
    def hook(g):
        if g == PR: prep_rd()
        if g == PS: prep_st()
        if g == L2H: l2pf()
        if g == PFL:
            prep_flag()
            if tim and "qs" in X: tim(a, 1)
            if QX == 1: a("s_waitcnt vmcnt(0)\ns_endpgm")
        if g == PD and QP != QM: a(f"s_setprio {QM}")
    if QP: a(f"s_setprio {QP}")
    if tim and "qs" not in X: tim(a, 1)
    a.need(vm="in")
    if tim and "qs" not in X: tim(a, 2)
    hook(-3)
    DT, LR, REV = 22, 23, 24
    a(f"""
    v_lshlrev_b32 v8, 16, v8
    s_mov_b32 s56, {LOG2E}
    s_mov_b32 s57, {LOG2E_LO}
    s_mov_b32 s63, {LN2}
    v_mul_f32 v186, s56, v8
    v_exp_f32 v187, v186
    v_fma_f32 v188, v8, s56, -v186
    v_fma_f32 v188, v8, s57, v188
    v_mul_f32 v188, s63, v188
    v_fma_f32 v187, v187, v188, v187
    """)
    for i in range(6):
        a(f"v_lshlrev_b32 v{2+i}, 16, v{2+i}")
    a(f"v_cvt_pk_bf16_f32 v{DT}, 0, v187")
    a("v_lshlrev_b32 v9, 16, v9")
    a(f"""
    v_mul_f32 v2, v{DT}, v2
    v_mul_f32 v3, v{DT}, v3
    v_mul_f32 v4, v{DT}, v4
    v_mul_f32 v5, v{DT}, v5
    v_mul_f32 v{LR}, s56, v2
    v_mul_f32 v{REV}, 0.15915494, v3
    """)
    def anchor(E, L, t):
        Lf = {1: None, 4: "4.0", 64: "0x42800000", 512: "0x44000000"}[L]
        if Lf is None:
            a(f"v_exp_f32 v{t}, v{LR}")
            a(f"v_fract_f32 v{t+1}, v{REV}")
        else:
            a(f"v_mul_f32 v{t}, {Lf}, v{LR}")
            a(f"v_mul_f32 v{t+1}, {Lf}, v{REV}")
            a(f"v_exp_f32 v{t}, v{t}")
            a(f"v_fract_f32 v{t+1}, v{t+1}")
    def anchor2(E, t):
        a(f"v_cos_f32 v{E[0]}, v{t+1}")
        a(f"v_sin_f32 v{E[1]}, v{t+1}")
    def anchor3(E, t):
        a(f"v_mul_f32 v{E[0]}, v{t}, v{E[0]}")
        a(f"v_mul_f32 v{E[1]}, v{t}, v{E[1]}")
    hook(-2)
    lst = [(E4, 4, 186), (E64, 64, 188), (E1, 1, 190), (E512, 512, 26)]
    for E, L, t in lst: anchor(E, L, t)
    cmul(T0(0), (6, 7), (4, 5))
    for E, L, t in lst: anchor2(E, t)
    a("s_nop 0")
    for E, L, t in lst: anchor3(E, t)
    a(f"v_mov_b32 v{Q(0)[0]}, 1.0\nv_mov_b32 v{Q(0)[1]}, 0")
    cmul(Q(2), E4, E4)
    cmul(E128, E64, E64)
    cmul(Q(3), Q(2), E4)
    cmul(E2, E1, E1)
    cmul(Q(4), Q(2), Q(2))
    cmul(E192, E128, E64)
    cmul(E256, E128, E128)
    cmul(E3, E2, E1)
    hook(-1)
    for q in range(5, 8): cmul(Q(q), Q(4), Q(q - 4))
    cmul(Q(8), Q(4), Q(4))
    put_group(0, [Q(q) for q in range(8)], True); hook(0)
    for q in range(9, 16): cmul(Q(q), Q(8), Q(q - 8))
    put_group(1, [Q(q) for q in range(8, 16)], True); hook(1)
    cmul(T0(4), T0(0), E1); cmul(T0(8), T0(0), E2); cmul(T0(12), T0(0), E3)
    cmul(T1(8), T0(0), E512)
    for b in range(4):
        for p, E in ((1, E64), (2, E128), (3, E192)):
            cmul(T0(4 * b + p), T0(4 * b), E)
        cmul(T1(9 + b), T1(8 + b), E64) if b < 3 else None
        if b == 1: put_group(2, [T0(c) for c in range(8)], False); hook(2)
    put_group(3, [T0(c) for c in range(8, 16)], False); hook(3)
    chain = [T1(8 + p) for p in range(8)] + [T2(p) for p in range(16)] + [KE]
    nxt = 4
    for c in range(8):
        src = T0(8 + c) if c < 4 else T0(c - 4)
        cmul(T1(c), src, E256)
        if nxt < 8:
            cmul(chain[nxt], chain[nxt - 1], E64); nxt += 1
    put_group(4, [T1(c) for c in range(8)], False); hook(4)
    put_group(5, [T1(c) for c in range(8, 16)], False); hook(5)
    cmul(chain[8], chain[7], E64)
    for p in range(9, 25):
        cmul(chain[p], chain[p - 2], E128)
        if p == 15: put_group(6, [T2(c) for c in range(8)], False); hook(6)
        if p == 23: put_group(7, [T2(c) for c in range(8, 16)], False); hook(7)

    if tim: tim(a, 3)
    if QX == 2: a("s_waitcnt vmcnt(0)\ns_endpgm")
    a.vmop(f"buffer_load_dwordx2 v[{PV}:{PV+1}], v18, s[{SWS}:{SWS+3}], 0 offen sc1", "poll")
    dpp_sum(a, KE[0])
    a("s_nop 0")
    a(f"v_readlane_b32 s68, v{KE[0]}, 63")
    a(f"s_add_u32 s56, s62, {WFST}")
    a("v_mov_b32 v3, s56")
    a("v_mov_b32 v4, s68")
    a.lgop("ds_write_b32 v3, v4", "kp")

    a("""
    v_lshrrev_b32 v2, 4, v1            ; kg
    v_lshlrev_b32 v3, 3, v2
    v_bfe_u32 v4, v1, 2, 2             ; r
    v_add_u32 v3, v3, v4
    v_lshlrev_b32 v3, 4, v3
    v_bfe_u32 v5, v1, 1, 1             ; c>>1
    v_lshlrev_b32 v6, 6, v5
    v_xor_b32 v3, v3, v6
    v_lshlrev_b32 v5, 12, v5
    v_and_b32 v6, 1, v1
    v_lshlrev_b32 v6, 3, v6
    v_add3_u32 v3, v3, v5, v6
    s_lshr_b32 s56, s28, 1
    s_lshl_b32 s57, s56, 15            ; cl*32768
    v_add_u32 v10, s57, v3             ; q1
    v_xor_b32 v11, 64, v10             ; q2
    s_cmp_eq_u32 s29, 0
    s_mov_b32 s69, 24576
    s_cselect_b32 s71, 8192, s69
    s_cselect_b32 s70, 16384, s69
    v_add_u32 v12, s71, v10
    v_add_u32 v13, s71, v11
    v_add_u32 v14, s70, v10
    v_add_u32 v15, s70, v11
    """)
    a("v_mov_b32 v29, v18")
    APOLL = 29
    a(f"""
    s_lshl_b32 s68, s56, 12
    s_add_u32 s68, s68, {UTST}
    v_and_b32 v16, 15, v1              ; col
    v_lshlrev_b32 v17, 3, v2           ; 8g
    v_lshlrev_b32 v18, 5, v16          ; 32col
    v_add3_u32 v18, v18, v17, s68      ; base+32col+8g
    v_bfe_u32 v19, v1, 2, 2
    v_lshlrev_b32 v19, 7, v19          ; b*128
    v_and_b32 v21, 3, v1
    v_lshlrev_b32 v21, 5, v21
    v_add3_u32 v19, v19, v21, v17
    v_add_u32 v19, s68, v19
    v_add_u32 v21, 1024, v18
    s_cmp_eq_u32 s29, 0
    s_cselect_b64 vcc, -1, 0
    v_cndmask_b32 v16, v21, v19, vcc   ; vSA
    v_add_u32 v17, 512, v18
    v_cndmask_b32 v17, v21, v17, vcc   ; vSB
    """)
    QD = X_get(X, "qd", 0)
    def uload(vaddr):
        if tim and "qs" in X: tim(a, 2)
        spin_wait(a, "Qf1", APOLL, PV, SWS, 66, NON, "poll", cnt=CNT)
        if tim and "qs" in X: tim(a, 4)
        a.vmop(f"buffer_load_dwordx4 v[{UR}:{UR+3}], v{vaddr}, s[{SWS}:{SWS+3}], 0 offen sc1", "u")
        a("s_mov_b32 s56, 32768")
        a.vmop(f"buffer_load_dwordx4 v[{UR+4}:{UR+7}], v{vaddr}, s[{SWS}:{SWS+3}], s56 offen sc1", "u")
    if QD: a("v_mov_b32 v28, v20")
    else: uload(20)
    if tim and "qs" not in X: tim(a, 4)
    a("""
    v_cmp_eq_u32 vcc, 0, v1
    s_cmp_eq_u32 s29, 0
    s_cselect_b64 s[70:71], vcc, 0
    v_mov_b32 v21, 0
    v_mov_b32 v22, 0
    v_mov_b32 v23, 0
    v_cndmask_b32 v20, 0, v9, s[70:71]
    """)
    a(f"""
    s_lshr_b32 s56, s28, 1
    s_lshl_b32 s56, s56, 12
    s_add_u32 s56, s56, {WFST}
    v_mov_b32 v24, s56
    """)
    a.drain(vm=False, lg=True)
    a("s_barrier")
    QF, AF_, BF_ = 32, 64, 96
    a.lgop("ds_read_b32 v25, v24", "k2")
    a.lgop("ds_read_b32 v26, v24 offset:2048", "k2")
    for s in range(8):
        for (F, r1, r2, tag) in ((QF, 10, 11, "q"), (AF_, 12, 13, "a"), (BF_, 14, 15, "b")):
            a.lgop(f"ds_read_b64_tr_b16 v[{F+4*s}:{F+4*s+1}], v{r1} offset:{s*512}", (tag, s))
            a.lgop(f"ds_read_b64_tr_b16 v[{F+4*s+2}:{F+4*s+3}], v{r2} offset:{s*512}", (tag, s))
    DA, DB = 128, 132
    a.need(lg="k2")
    a("v_add_f32 v25, v25, v26")
    a(f"s_add_u32 s56, s68, 1536")
    a("v_mov_b32 v27, s56")
    a("v_cvt_pk_bf16_f32 v25, v25, v25")
    for s in range(8):
        a.need(lg=[("q", s), ("a", s)])
        ca = "v[20:23]" if s == 0 else f"v[{DA}:{DA+3}]"
        a(f"v_mfma_f32_16x16x32_bf16 v[{DA}:{DA+3}], v[{QF+4*s}:{QF+4*s+3}], v[{AF_+4*s}:{AF_+4*s+3}], {ca}")
        a.need(lg=("b", s))
        cb = "0" if s == 0 else f"v[{DB}:{DB+3}]"
        a(f"v_mfma_f32_16x16x32_bf16 v[{DB}:{DB+3}], v[{QF+4*s}:{QF+4*s+3}], v[{BF_+4*s}:{BF_+4*s+3}], {cb}")
    a.lgop("ds_write_b16 v27, v25", "sw")
    I_, S_, LLp, LL = 0x03020100, 0x05040302, 0x05040100, 0x01000100
    a(f"""
    v_lshlrev_b32 v2, 4, v1            ; 16*lambda
    v_add_u32 v2, s68, v2
    s_lshl_b32 s56, s29, 8             ; 2p*128
    v_add_u32 v3, s56, v2              ; T0 row A
    v_add_u32 v4, 128, v3              ; T0 row B
    v_add_u32 v5, 512, v2              ; E4
    v_add_u32 v6, 384, v2              ; E2
    v_cmp_gt_u32 vcc, 16, v1
    s_cmp_eq_u32 s29, 1
    s_cselect_b64 s[70:71], vcc, 0
    v_cndmask_b32 v6, v5, v6, s[70:71]
    v_cmp_gt_u32 vcc, 8, v1
    v_cndmask_b32 v6, v6, v3, vcc
    v_cndmask_b32 v7, v5, v4, vcc
    s_cselect_b32 s56, 16, 32          ; thrA
    s_mov_b32 s72, {I_}
    s_mov_b32 s73, {S_}
    s_mov_b32 s74, {LLp}
    s_cselect_b32 s69, s74, {LL}
    s_cselect_b32 s76, s73, s72
    v_mov_b32 v8, s72
    v_mov_b32 v9, s76
    v_cndmask_b32 v9, v9, v8, vcc
    v_mov_b32 v10, s74
    v_cmp_gt_u32 vcc, 32, v1
    v_cndmask_b32 v9, v10, v9, vcc     ; selB
    v_cmp_gt_u32 vcc, s56, v1
    v_cndmask_b32 v11, v10, v8, vcc
    v_mov_b32 v12, s69
    v_cndmask_b32 v12, v12, v8, vcc
    """)
    a(f"v_cvt_pk_bf16_f32 v136, v{DA}, v{DA+1}")
    a(f"v_cvt_pk_bf16_f32 v137, v{DA+2}, v{DA+3}")
    a(f"v_cvt_pk_bf16_f32 v138, v{DB}, v{DB+1}")
    a(f"v_cvt_pk_bf16_f32 v139, v{DB+2}, v{DB+3}")
    a.lgop("ds_write_b64 v16, v[136:137]", "sw")
    a.lgop("ds_write_b64 v17, v[138:139]", "sw")

    if QD == 1: uload(28)
    def gcalc():
        GW = 64
        a.need(vm="g")
        for i in range(4):
            a(f"v_lshlrev_b32 v{GW+2*i}, 16, v{GW0+i}")
            a(f"v_and_b32 v{GW+2*i+1}, 0xffff0000, v{GW0+i}")
        for tk in range(2):
            Xr = 72 + 8 * tk
            for i in range(4):
                a(f"v_lshlrev_b32 v{Xr+2*i}, 16, v{GU+4*tk+i}")
                a(f"v_and_b32 v{Xr+2*i+1}, 0xffff0000, v{GU+4*tk+i}")
            for i in range(8):
                a(f"v_mul_f32 v{Xr+i}, v{Xr+i}, v{GW+i}")
            for i in range(8):
                a(f"v_cvt_pk_bf16_f32 v{Xr+i}, 0, v{Xr+i}")
            for st in (4, 2, 1):
                for i in range(st):
                    a(f"v_add_f32 v{Xr+i}, v{Xr+i}, v{Xr+i+st}")
        dpp_sum2(a, 72, 80)
        a(f"s_mov_b32 s56, {LOG2E | 0x80000000}")
        for tk in range(2):
            a(f"v_cvt_pk_bf16_f32 v{72+8*tk}, 0, v{72+8*tk}")
        for tk in range(2):
            a(f"v_mul_f32 v{72+8*tk}, s56, v{72+8*tk}")
        for tk in range(2):
            a(f"v_exp_f32 v{72+8*tk}, v{72+8*tk}")
        a("s_nop 0")
        for tk in range(2):
            a(f"v_add_f32 v{72+8*tk}, 1.0, v{72+8*tk}")
        for tk in range(2):
            a(f"v_rcp_f32 v{72+8*tk}, v{72+8*tk}")
        a("s_nop 0")
        a("v_cvt_pk_bf16_f32 v88, 0, v72")
        a("v_cvt_pk_bf16_f32 v90, 0, v80")
        a("v_sub_f32 v89, 1.0, v88")
        a("v_sub_f32 v91, 1.0, v90")
        a("v_cvt_pk_bf16_f32 v89, 0, v89")
        a("v_cvt_pk_bf16_f32 v91, 0, v91")
        a("s_lshl_b32 s56, s30, 3")
        a(f"s_add_u32 s56, s56, {WS_G}")
        a("v_mov_b32 v92, s56")
        a("s_lshl_b64 exec, 1, 63")
        a.vmop(f"buffer_store_dwordx4 v[88:91], v92, s[{SWS}:{SWS+3}], 0 offen sc1", "gst")
        a("s_mov_b64 exec, -1")
    gcalc()
    if QD == 2: uload(28)

    cAT, cZ, cT, cB, cW0, cW1, cR0, cR1, cA0, cA1, cU = 232, 233, 234, 235, 236, 237, 238, 239, 240, 241, 242
    ZR = 244
    t0, t1, t2, t3, tj, tg, tl = 248, 249, 250, 251, 243, 252, 253
    assert KT0 == KT_ROW
    a(f"""
    v_lshlrev_b32 v{tl}, 4, v1                ; lane*16
    s_lshl_b32 s56, s47, 12
    s_lshl_b32 s57, s29, 11
    s_add_u32 s56, s56, s57
    s_add_u32 s56, s56, {WS_AT}
    v_add_u32 v{cAT}, s56, v{tl}
    s_lshl_b32 s56, s31, 2
    s_lshl_b32 s57, s29, 1
    s_add_u32 s56, s56, s57
    s_mul_i32 s56, s56, 1280
    s_add_u32 s77, s56, {UB}
    v_add_u32 v{cU}, s77, v{tl}
    v_bfe_u32 v{t0}, v1, 4, 1
    v_mul_u32_u24 v{t0}, 1280, v{t0}
    v_and_b32 v{tj}, 15, v1                   ; i / j
    v_lshlrev_b32 v{t1}, 4, v{tj}
    v_add3_u32 v{cZ}, v{t0}, v{t1}, s77
    v_mov_b32 v{ZR}, 0
    v_mov_b32 v{ZR+1}, 0
    v_mov_b32 v{ZR+2}, 0
    v_mov_b32 v{ZR+3}, 0
    s_mul_i32 s58, s31, {KT_CH}
    s_mul_i32 s57, s29, {2*KT_ROW}
    s_add_u32 s56, s58, s57
    v_add_u32 v{cT}, s56, v{tl}
    v_lshrrev_b32 v{tg}, 4, v1                ; kg / g
    s_lshl_b32 s57, s29, 1
    s_sub_u32 s57, 4, s57
    v_add_u32 v{t0}, s57, v{tj}
    v_mul_u32_u24 v{t0}, {KT_ROW}, v{t0}
    v_lshlrev_b32 v{t1}, 4, v{tg}
    v_add3_u32 v{cA0}, v{t0}, v{t1}, s58
    v_subrev_u32 v{cA1}, {KT_ROW}, v{cA0}
    v_sub_u32 v{t0}, v{tg}, v{tj}
    v_add_u32 v{t0}, 15, v{t0}
    v_lshlrev_b32 v{t0}, 4, v{t0}
    v_add_u32 v{cB}, s77, v{t0}
    v_and_b32 v{t0}, 3, v{tj}
    v_lshlrev_b32 v{t0}, 1, v{t0}
    v_bfe_u32 v{t1}, v{tj}, 2, 1
    v_or_b32 v{t0}, v{t0}, v{t1}
    v_xor_b32 v{t0}, v{t0}, v{tg}
    v_lshlrev_b32 v{t0}, 4, v{t0}
    v_lshlrev_b32 v{t1}, 7, v{tj}
    s_lshl_b32 s56, s28, 13
    v_add3_u32 v{cW0}, v{t0}, v{t1}, s56
    v_xor_b32 v{cW1}, 64, v{cW0}
    v_lshrrev_b32 v{t0}, 2, v1                ; j
    v_and_b32 v{t1}, 3, v{t0}
    v_lshlrev_b32 v{t1}, 1, v{t1}
    v_bfe_u32 v{t2}, v{t0}, 2, 1
    v_or_b32 v{t1}, v{t1}, v{t2}
    v_and_b32 v{t2}, 3, v1
    v_lshlrev_b32 v{t2}, 1, v{t2}
    v_xor_b32 v{t1}, v{t1}, v{t2}
    v_lshlrev_b32 v{t1}, 4, v{t1}
    v_lshlrev_b32 v{t0}, 7, v{t0}
    s_lshl_b32 s56, s31, 14
    s_lshl_b32 s57, s29, 12
    s_add_u32 s56, s56, s57
    v_add3_u32 v{cR0}, v{t0}, v{t1}, s56
    v_xor_b32 v{cR1}, 16, v{cR0}
    """)
    a.drain(vm=False, lg=True)
    a("s_barrier")
    if tim: tim(a, 5)
    XA, XB = 32, 40
    a.lgop(f"ds_read_b128 v[{XA}:{XA+3}], v6", "xa")
    a.lgop(f"ds_read_b32 v{XA+4}, v6 offset:16", "xa")
    a.lgop(f"ds_read_b128 v[{XB}:{XB+3}], v7", "xb")
    a.lgop(f"ds_read_b32 v{XB+4}, v7 offset:16", "xb")
    a.lgop(f"ds_write_b128 v{cZ}, v[{ZR}:{ZR+3}] offset:1024", "z")
    R0, R1 = 46, 52
    OA, OB = R0 + 2, R1 + 2
    T = 64
    for i, R, XX in ((0, R0, XA), (1, R1, XB)):
        a.need(lg="xa" if i == 0 else "xb")
        for j in range(4):
            sel = (12 if j % 2 == 0 else 11) if i == 0 else 9
            a(f"v_perm_b32 v{R+2+j}, v{XX+j+1}, v{XX+j}, v{sel}")
        a("s_nop 1")
        a(f"v_mov_b32_dpp v{R}, v{R+4} wave_shr:1 row_mask:0xf bank_mask:0xf bound_ctrl:1")
        a(f"v_mov_b32_dpp v{R+1}, v{R+5} wave_shr:1 row_mask:0xf bank_mask:0xf bound_ctrl:1")
        tb = T + 12 * i
        def off(m): return (4 * m + 16 + i) * KT_ROW
        a.lgop(f"ds_write_b128 v{cT}, v[{R+2}:{R+5}] offset:{off(0)}", "t")
        for j in range(4):
            a(f"v_alignbit_b32 v{tb+j}, v{R+2+j}, v{R+1+j}, 16")
        a.lgop(f"ds_write_b128 v{cT}, v[{tb}:{tb+3}] offset:{off(-1)}", "t")
        for j in range(4):
            a(f"v_mov_b32 v{tb+4+j}, v{R+1+j}")
        a.lgop(f"ds_write_b128 v{cT}, v[{tb+4}:{tb+7}] offset:{off(-2)}", "t")
        for j in range(4):
            a(f"v_alignbit_b32 v{tb+8+j}, v{R+1+j}, v{R+j}, 16")
        a.lgop(f"ds_write_b128 v{cT}, v[{tb+8}:{tb+11}] offset:{off(-3)}", "t")
        a.lgop(f"ds_write_b128 v{cT}, v[{R}:{R+3}] offset:{off(-4)}", "t")
    a.need(vm="u")
    a.lgop(f"ds_write_b128 v{cU}, v[{UR}:{UR+3}]", "uw")
    a.lgop(f"ds_write_b128 v{cU}, v[{UR+4}:{UR+7}] offset:1280", "uw")
    a.drain(vm=False, lg=True)
    a("s_barrier")
    if tim: tim(a, 6)
    if QX == 3: a("s_waitcnt vmcnt(0)\ns_endpgm")
    prio = X_get(X, "cprio", 1)
    if prio: a(f"s_setprio {prio}")
    D = 4; NB = D + 1
    ACC = lambda eta, z: 32 + (eta * 2 + z) * 4
    AF = lambda e, w: 64 + 64 * e + 4 * w
    BF = lambda b: 192 + 6 * b
    NS = 32
    def rd(s):
        e, st = s >> 4, s & 15
        b = BF(s % NB)
        a.lgop(f"ds_read_b128 v[{AF(e,st)}:{AF(e,st)+3}], v{cA0+e} offset:{64*st}", ("A", s))
        o = st * 64 + e * 1280
        a.lgop(f"ds_read_b128 v[{b}:{b+3}], v{cB} offset:{o}", ("B", s))
        a.lgop(f"ds_read_b64 v[{b+4}:{b+5}], v{cB} offset:{o+16}", ("B", s))
    for s in range(D): rd(s)
    first = set()
    for s in range(NS):
        e, st = s >> 4, s & 15
        v = 12 - st
        b = BF(s % NB)
        a.need(lg=[("A", s), ("B", s)])
        n = 0
        for eta in (3, 2, 1, 0):
            w = 4 * eta - v
            if not (0 <= w <= 15): continue
            for z in (1, 0):
                d = ACC(eta, z)
                c = f"v[{d}:{d+3}]" if (eta, z) in first else "0"
                first.add((eta, z))
                bo = b if z == 1 else b + 2
                a(f"v_mfma_f32_16x16x32_bf16 v[{d}:{d+3}], v[{AF(e,w)}:{AF(e,w)+3}], v[{bo}:{bo+3}], {c}")
                n += 1
                if n == 1 and s + D < NS:
                    rd(s + D)
    a(f"s_setprio {X_get(X, 'ep', 0)}")
    a("s_barrier")
    for eta in (3, 2, 1, 0):
        for z in (1, 0):
            d = ACC(eta, z)
            a.lgop(f"ds_write_b128 v{cW0+z}, v[{d}:{d+3}] offset:{eta*2048}", "rw")
    a.drain(vm=False, lg=True)
    a("s_barrier")
    XR = 64
    for n in range(2):
        for s in range(2):
            for h in range(2):
                r = XR + n * 16 + s * 8 + h * 4
                a.lgop(f"ds_read_b128 v[{r}:{r+3}], v{cR0+h} offset:{s*8192 + n*2048}", ("r", n))
    for n in range(2):
        a.need(lg=("r", n))
        r = XR + n * 16
        for k in range(8):
            a(f"v_add_f32 v{r+k}, v{r+k}, v{r+8+k}")
        for k in range(4):
            a(f"v_cvt_pk_bf16_f32 v{r+8+k}, v{r+2*k}, v{r+2*k+1}")
        a.vmop(f"buffer_store_dwordx4 v[{r+8}:{r+11}], v{cAT}, s[{SWS}:{SWS+3}], 0 offen offset:{n*1024} sc1", "st")
    a.drain(vm=True, lg=False)
    a("s_barrier")
    lbl = a.newlabel("CVdone")
    a(f"s_cmp_lg_u32 s28, 0\ns_cbranch_scc1 {lbl}")
    a(f"s_lshl_b32 s56, s3, 7\ns_add_u32 s56, s56, {WS_F3}")
    a(f"v_mov_b32 v2, s56\nv_mov_b32 v4, s{NON}\nv_mov_b32 v5, s{NON+1}")
    a("s_mov_b64 exec, 1")
    a(f"buffer_store_dwordx2 v[4:5], v2, s[{SWS}:{SWS+3}], 0 offen sc1")
    a("s_mov_b64 exec, -1")
    a(f"{lbl}:")
```

```python
import sys
sys.path.insert(0, "dev")
from gen import *

WS_F3 = 0x588000
WS_FH = 0x590000
WS_F1 = 0x5B0000
SPIN = 0x2000
NON = 42

def spin_wait(a, name, vaddr, vdat, srd, mask_s, non, first_issued_tag=None, cnt=70):
    ok = a.newlabel(name + "ok"); sp = a.newlabel(name + "sp")
    if first_issued_tag is not None:
        a.need(vm=first_issued_tag)
        a(f"s_mov_b64 exec, s[{mask_s}:{mask_s+1}]")
        a(f"v_cmp_ne_u64 vcc, s[{non}:{non+1}], v[{vdat}:{vdat+1}]")
        a("s_mov_b64 exec, -1")
        a(f"s_cbranch_vccz {ok}")
    a(f"s_mov_b32 s{cnt}, {SPIN}")
    a(f"{sp}:")
    a(f"s_mov_b64 exec, s[{mask_s}:{mask_s+1}]")
    a(f"buffer_load_dwordx2 v[{vdat}:{vdat+1}], v{vaddr}, s[{srd}:{srd+3}], 0 offen sc1")
    a(f"s_sub_u32 s{cnt}, s{cnt}, 1")
    a("s_waitcnt vmcnt(0)")
    a(f"v_cmp_ne_u64 vcc, s[{non}:{non+1}], v[{vdat}:{vdat+1}]")
    a("s_mov_b64 exec, -1")
    a(f"s_cbranch_vccz {ok}")
    a(f"s_cmp_lg_u32 s{cnt}, 0")
    a(f"s_cbranch_scc1 {sp}")
    a(f"{ok}:")

def nonce_get(a, name, vdat, non, dbg, vz, first_issued_tag=None, cnt=70):
    ok = a.newlabel(name + "ok"); sp = a.newlabel(name + "sp")
    if first_issued_tag is not None:
        a.need(vm=first_issued_tag)
        a(f"v_readfirstlane_b32 s{non}, v{vdat}")
        a(f"v_readfirstlane_b32 s{non+1}, v{vdat+1}")
        a(f"s_cmp_lg_u32 s{non}, 0")
        a(f"s_cbranch_scc1 {ok}")
    a(f"s_mov_b32 s{cnt}, {SPIN}")
    a(f"{sp}:")
    a(f"global_load_dwordx2 v[{vdat}:{vdat+1}], v{vz}, s[{dbg}:{dbg+1}] sc1")
    a(f"s_sub_u32 s{cnt}, s{cnt}, 1")
    a("s_waitcnt vmcnt(0)")
    a(f"v_readfirstlane_b32 s{non}, v{vdat}")
    a(f"v_readfirstlane_b32 s{non+1}, v{vdat+1}")
    a(f"s_cmp_lg_u32 s{non}, 0")
    a(f"s_cbranch_scc1 {ok}")
    a(f"s_cmp_lg_u32 s{cnt}, 0")
    a(f"s_cbranch_scc1 {sp}")
    a(f"{ok}:")

def prole(a, tim=None, X=()):
    ACC = lambda mat, j: 64 + (2 * j + mat) * 16
    WF = lambda mat, j: 160 + (2 * j + mat) * 4
    XF = lambda b, s: 184 + b * 16 + s * 4
    SX, SW, SH, SWS, SO = 12, 16, 20, 48, 52
    DBG, OUT = 46, 44
    XBASE = 49152
    AW0, AH0, AW1, AH1 = 40, 41, 42, 43
    AF3, AAT, AG, AST, ATR, AOUT, AL16, AFH, AF1, AFHP, VZ = 44, 45, 46, 47, 48, 49, 50, 51, 52, 58, 59
    PV, GV, AT0 = 54, 56, 60
    lbl_idle = a.newlabel("Pidle")
    PST = "pst" in X
    tim0 = tim
    if tim and PST:
        mp = {1: 4, 2: 5, 3: 6}
        tim = lambda aa, k: tim0(aa, mp[k]) if k in mp else None
    a("""
    s_load_dwordx2 s[4:5], s[0:1], 0
    s_load_dwordx2 s[6:7], s[0:1], 80
    s_load_dwordx2 s[8:9], s[0:1], 88
    s_load_dwordx4 s[44:47], s[0:1], 112
    s_load_dwordx2 s[10:11], s[0:1], 128
    s_and_b32 s30, s2, 7
    s_lshr_b32 s31, s2, 3
    s_lshr_b32 s26, s30, 1
    s_lshl_b32 s26, s26, 2
    s_and_b32 s32, s31, 3
    s_add_u32 s26, s26, s32
    s_and_b32 s25, s30, 1
    s_lshl_b32 s25, s25, 3
    s_lshr_b32 s32, s31, 2
    s_add_u32 s25, s25, s32
    v_lshrrev_b32 v12, 6, v0
    v_and_b32 v13, 63, v0
    s_mov_b32 s29, 0
    v_readfirstlane_b32 s24, v12
    """)
    lb = a.newlabel("M2")
    a(f"s_lshr_b32 s32, s31, 2\ns_cmp_lg_u32 s32, 7\ns_cbranch_scc1 {lb}")
    a(f"s_bfe_u32 s29, s31, 0x10001")
    a(f"s_and_b32 s32, s30, 1\ns_lshl_b32 s32, s32, 1\ns_add_u32 s26, s26, s32\ns_mov_b32 s25, 7")
    a(f"{lb}:")
    a("s_and_b32 s30, s24, 1\ns_mul_i32 s30, s30, 192")
    a("s_mul_i32 s31, s25, 192")
    a("s_mov_b32 s33, 2752\ns_mov_b32 s34, 0xaaab")
    a("s_cmp_eq_u32 s25, 14\ns_cselect_b32 s37, 64, 0x10000\nv_mov_b32 v17, 0x8000000")
    for k in range(3):
        a(f"v_add_u32 v14, s30, v13")
        if k: a(f"v_add_u32 v14, {64*k}, v14")
        a("v_mul_lo_u32 v15, v14, s34\nv_lshrrev_b32 v15, 19, v15")
        a("v_mul_u32_u24 v16, 12, v15\nv_sub_u32 v16, v14, v16\nv_lshlrev_b32 v16, 4, v16")
        a("v_mul_lo_u32 v15, v15, s33\nv_add_u32 v15, v15, v16")
        a(f"v_add_u32 v{6+k}, s31, v15")
        if k: a(f"v_subrev_u32 v{6+k}, {1024*k}, v{6+k}")
        a(f"v_cmp_le_u32 vcc, s37, v16\nv_cndmask_b32 v{6+k}, v{6+k}, v17, vcc")
    a("s_lshl_b32 s30, s26, 7\ns_lshl_b32 s31, s24, 5\ns_add_u32 s30, s30, s31\ns_lshl_b32 s30, s30, 10")
    a("""
    v_lshrrev_b32 v14, 3, v13
    v_lshlrev_b32 v14, 10, v14
    v_add_u32 v14, s30, v14
    v_lshrrev_b32 v15, 4, v13
    v_and_b32 v16, 7, v13
    v_xor_b32 v17, v16, v15
    v_lshlrev_b32 v17, 4, v17
    v_add_u32 v9, v14, v17
    v_or_b32 v15, 4, v15
    v_xor_b32 v17, v16, v15
    v_lshlrev_b32 v17, 4, v17
    v_add_u32 v10, v14, v17
    v_add_u32 v10, 7168, v10
    """)
    a("s_mul_i32 s35, s24, 3072")
    a(f"s_lshl_b32 s36, s24, 12\ns_add_u32 s36, s36, {XBASE}")
    a("s_memrealtime s[42:43]")
    a("s_waitcnt lgkmcnt(0)")
    if tim0 and PST: tim0(a, 1)
    srd_from(a, SX, 4, 5, 2048 * 1024)
    a("s_cmp_ge_u32 s24, 2\ns_cselect_b32 s6, s8, s6\ns_cselect_b32 s7, s9, s7")
    srd_from(a, SW, 6, 7, 512 * 2752)

    ROT = X_get(X, "rot", 0)
    if ROT:
        if ROT == 1: a("s_lshl_b32 s71, s26, 1\ns_add_u32 s71, s71, s25\ns_and_b32 s71, s71, 7")
        if ROT == 2: a("s_add_u32 s71, s26, s25\ns_and_b32 s71, s71, 3\ns_lshl_b32 s71, s71, 1")
        if ROT == 3: a("s_and_b32 s71, s26, 3\ns_lshl_b32 s71, s71, 1")
        if ROT == 4: a("s_and_b32 s71, s25, 7")
        a("s_lshl_b32 s94, s71, 1")
    def dma_w(u, k):
        if k == 0:
            a(f"s_add_u32 m0, s35, {(u % 4) * 12288}")
            if ROT:
                a(f"s_add_u32 s27, s94, {u}\ns_and_b32 s27, s27, 15\ns_mul_i32 s27, s27, 88064")
            else:
                a(f"s_mov_b32 s27, {u * 88064}")
        a.vmop(f"buffer_load_dwordx4 v{6+k}, s[{SW}:{SW+3}], s27 offen offset:{1024*k} lds", ("W", u))
    def dma_x(c, k):
        if k == 0:
            a(f"s_add_u32 m0, s36, {(c & 1) * 16384}")
            if ROT:
                a(f"s_add_u32 s28, s71, {c}\ns_and_b32 s28, s28, 7\ns_lshl_b32 s28, s28, 7")
            else:
                a(f"s_mov_b32 s28, {c * 128}")
        if k == 2:
            if ROT: a("s_add_u32 s28, s28, 14336")
            else: a(f"s_mov_b32 s28, {c * 128 + 14336}")
            a("s_nop 0")
        a.vmop(f"buffer_load_dwordx4 v{9+(k&1)}, s[{SX}:{SX+3}], s28 offen offset:{1024*k} lds", ("X", c))
    def rd_w(S, jj):
        u, sp = S >> 1, S & 1
        mat, j = jj & 1, jj >> 1
        base = (u % 4) * 12288 + mat * 6144 + 16 * sp * 192 + j * 64
        r = WF(mat, j)
        a.lgop(f"ds_read_b64_tr_b16 v[{r}:{r+1}], v1 offset:{base}", ("w", S, jj))
        a.lgop(f"ds_read_b64_tr_b16 v[{r+2}:{r+3}], v1 offset:{base + 4*192}", ("w", S, jj))
    def rd_x(c, s):
        r = XF(c & 1, s)
        a.lgop(f"ds_read_b128 v[{r}:{r+3}], v{2+s} offset:{(c & 1) * 16384}", ("x", c, s))

    lbl_nold = a.newlabel("Pnold")
    a(f"s_cmp_lg_u32 s29, 0\ns_cbranch_scc1 {lbl_nold}")
    PS2 = "pst2" in X
    if tim0 and PS2:
        tim = lambda aa, k: None
        tim0(a, 1)
    for k in range(4): dma_x(0, k)
    if tim0 and PS2: tim0(a, 2)
    for k in range(3): dma_w(0, k)
    if tim0 and PS2: tim0(a, 3)
    for k in range(3): dma_w(1, k)
    if tim0 and PS2: tim0(a, 4)
    for k in range(4): dma_x(1, k)
    if tim0 and PS2: tim0(a, 5)
    for k in range(3): dma_w(2, k)
    if tim0 and PS2: tim0(a, 6)
    a(f"{lbl_nold}:")
    if tim0 and PST: tim0(a, 2)
    lbl_nn = a.newlabel("Pnn")
    if "en" in X: a(f"s_branch {lbl_nn}")
    a(f"s_cmp_lg_u32 s2, 240\ns_cbranch_scc1 {lbl_nn}")
    a(f"s_cmp_lg_u32 s24, 0\ns_cbranch_scc1 {lbl_nn}")
    a(f"s_or_b32 s42, s42, 1\nv_mov_b32 v14, s42\nv_mov_b32 v15, s43\nv_mov_b32 v16, 0\ns_mov_b64 exec, 1")
    a(f"global_store_dwordx2 v16, v[14:15], s[{DBG}:{DBG+1}] sc1")
    a("s_mov_b64 exec, -1")
    a(f"{lbl_nn}:")
    srd_from(a, SH, 10, 11, H_SIZE, WS_H)
    srd_from(a, SWS, 10, 11, WS_END)
    srd_from(a, SO, OUT, OUT + 1, 2048 * 1024)
    a("""
    v_lshrrev_b32 v14, 5, v13
    v_lshlrev_b32 v14, 3, v14
    v_bfe_u32 v15, v13, 2, 2
    v_add_u32 v14, v14, v15
    v_mul_u32_u24 v14, 192, v14
    v_bfe_u32 v15, v13, 4, 1
    v_lshlrev_b32 v15, 5, v15
    v_and_b32 v16, 3, v13
    v_lshlrev_b32 v16, 3, v16
    v_add3_u32 v1, v14, v15, v16
    """)
    a("""
    v_and_b32 v14, 31, v13
    v_bfe_u32 v15, v13, 1, 3
    v_lshrrev_b32 v16, 5, v13
    v_xor_b32 v15, v15, v16
    v_lshlrev_b32 v14, 7, v14
    """)
    a(f"s_lshl_b32 s30, s24, 12\ns_add_u32 s30, s30, {XBASE}\nv_add_u32 v14, s30, v14")
    for s in range(4):
        a(f"v_xor_b32 v16, {2*s}, v15\nv_lshlrev_b32 v16, 4, v16\nv_add_u32 v{2+s}, v14, v16")
    a("s_lshl_b32 s30, s26, 2\ns_add_u32 s30, s30, s24\ns_mul_i32 s31, s30, 86\ns_mul_i32 s32, s25, 6\ns_add_u32 s31, s31, s32\ns_lshl_b32 s31, s31, 10")
    a(f"v_lshlrev_b32 v{AL16}, 4, v13\nv_add_u32 v11, s31, v{AL16}")
    a(f"s_lshl_b32 s30, s30, 4\ns_add_u32 s30, s30, s25\ns_lshl_b32 s30, s30, 7\ns_add_u32 s30, s30, {WS_FH}\nv_mov_b32 v{AFHP}, s30\nv_mov_b32 v{VZ}, 0")

    if tim0 and PST: tim0(a, 3)
    a("""
    s_and_b32 s30, s2, 7
    s_lshr_b32 s31, s2, 3
    s_lshl_b32 s56, s30, 3
    s_and_b32 s57, s31, 3
    s_lshl_b32 s57, s57, 1
    s_add_u32 s38, s56, s57                   ; tb0
    s_lshr_b32 s39, s31, 2                    ; group
    s_lshl_b32 s40, s39, 1                    ; cb0
    s_mul_i32 s56, s24, 22
    s_cmp_eq_u32 s24, 3
    s_cselect_b32 s57, 1, 0
    s_sub_u32 s41, s56, s57                   ; ks0
    s_and_b32 s57, s24, 1
    s_lshr_b32 s58, s24, 1
    s_add_u32 s60, s40, s57
    s_add_u32 s61, s38, s58
    s_xor_b32 s62, s60, 1
    s_xor_b32 s63, s61, 1
    """)
    for (dst, blk, base) in ((AW0, 60, WS_WF), (AH0, 61, WS_H), (AW1, 62, WS_WF), (AH1, 63, WS_H)):
        a(f"s_mul_i32 s57, s{blk}, 86\ns_add_u32 s57, s57, s41\ns_lshl_b32 s57, s57, 10")
        if base: a(f"s_add_u32 s57, s57, {base}")
        a(f"v_add_u32 v{dst}, s57, v{AL16}")
    a(f"s_mov_b32 s59, {5*4096}\ns_cmp_ge_u32 s24, 2\ns_cselect_b32 s59, 0x10000000, s59")
    a(f"""
    v_add_u32 v14, s41, v13
    v_lshlrev_b32 v14, 3, v14
    v_add_u32 v14, s39, v14
    v_lshrrev_b32 v15, 2, v14
    v_lshlrev_b32 v15, 7, v15
    v_and_b32 v14, 3, v14
    v_lshlrev_b32 v14, 3, v14
    s_mov_b32 s56, {WS_F1}
    v_add3_u32 v{AF1}, v14, v15, s56
    s_cmp_ge_u32 s24, 2
    s_mov_b32 s72, 0x3fffff
    s_cselect_b32 s72, 0x1fffff, s72
    s_mov_b32 s73, 0
    """)
    a(f"""
    s_lshr_b32 s56, s24, 1
    s_mul_i32 s56, s56, 7
    s_and_b32 s57, s24, 1
    s_mul_i32 s58, s57, 3
    s_add_u32 s56, s56, s58                   ; ct0
    s_cmp_eq_u32 s57, 1
    s_mov_b32 s74, 0xff
    s_cselect_b32 s74, 0x3ff, s74
    s_mov_b32 s75, 0
    s_lshl_b32 s57, s38, 4
    s_add_u32 s56, s56, s57
    s_lshl_b32 s56, s56, 7
    s_add_u32 s56, s56, {WS_FH}
    v_and_b32 v14, 1, v13
    v_lshlrev_b32 v14, 11, v14
    v_lshrrev_b32 v15, 1, v13
    v_lshlrev_b32 v15, 7, v15
    v_add3_u32 v{AFH}, v14, v15, s56
    """)
    a(f"""
    s_lshl_b32 s56, s39, 5
    s_lshl_b32 s57, s38, 2
    s_sub_u32 s57, s57, 32
    v_cmp_gt_u32 vcc, 32, v13
    v_mov_b32 v14, s57
    v_mov_b32 v15, s56
    v_cndmask_b32 v14, v14, v15, vcc
    v_add_u32 v14, v14, v13
    v_lshlrev_b32 v14, 7, v14
    v_add_u32 v{AF3}, {WS_F3}, v14
    s_mov_b32 s76, -1
    s_mov_b32 s77, 0xff
    """)
    a(f"""
    s_lshl_b32 s56, s60, 17
    s_lshl_b32 s57, s61, 6
    s_add_u32 s56, s56, s57
    s_add_u32 s56, s56, {WS_AT}
    v_lshrrev_b32 v14, 2, v13
    v_lshlrev_b32 v14, 12, v14
    v_and_b32 v15, 3, v13
    v_lshlrev_b32 v16, 4, v15
    v_add3_u32 v{AAT}, v14, v16, s56
    v_and_b32 v17, 31, v13                    ; token in tile
    s_lshl_b32 s56, s61, 8
    s_add_u32 s56, s56, {WS_G}
    v_lshlrev_b32 v14, 3, v17
    v_add_u32 v{AG}, s56, v14
    """)
    G2_ST = 49152
    if "wp" in X:
        a("s_mul_i32 s65, s24, 20480\ns_add_u32 s56, s65, 18432")
    else:
        a(f"s_lshl_b32 s56, s24, 11\ns_add_u32 s56, s56, {G2_ST}")
    a(f"""
    v_add_u32 v{AST}, s56, v{AL16}
    v_lshrrev_b32 v14, 5, v13
    v_lshlrev_b32 v14, 2, v14
    v_bfe_u32 v16, v13, 2, 2
    v_add_u32 v14, v14, v16
    v_lshlrev_b32 v14, 6, v14
    v_bfe_u32 v16, v13, 4, 1
    v_lshlrev_b32 v16, 5, v16
    v_lshlrev_b32 v15, 3, v15
    v_add3_u32 v14, v14, v16, v15
    v_add_u32 v{ATR}, s56, v14
    s_lshl_b32 s56, s61, 15
    s_lshl_b32 s57, s60, 6
    s_add_u32 s56, s56, s57
    v_lshlrev_b32 v14, 10, v17
    v_lshrrev_b32 v15, 5, v13
    v_lshlrev_b32 v15, 4, v15
    v_add3_u32 v{AOUT}, v14, v15, s56
    """)
    for i in (1, 2, 3):
        a(f"s_xor_b32 s56, s24, {i}\ns_mul_i32 s56, s56, {20480 if 'wp' in X else 12288}\ns_add_u32 s{65+i}, s56, {(i-1)*4096}")
    a("s_mul_i32 s69, s24, 12288")
    a(f"s_cmp_lg_u32 s29, 0\ns_cbranch_scc1 {lbl_idle}")

    if tim and "es" not in X: tim(a, 1)
    a.need(vm=[("W", 0), ("X", 0)])
    a("s_barrier")
    if tim and "es" not in X: tim(a, 2)
    for s in range(4): rd_x(0, s)
    for jj in range(6): rd_w(0, jj)
    a("s_setprio 2")
    WP = "wp" in X
    NU, FU = X_get(X, "nu", 9), X_get(X, "fu", 11 if WP else 12)
    REGW = list(range(12)) + [21]
    LDSW = list(range(12, 21))
    def wreg(s):
        i = REGW.index(s)
        if i < 5: return 216 + 8 * i
        if i < 8: return 16 + 8 * (i - 5)
        return 176 + 8 * (i - 8)
    cur = [None]
    def soff(s):
        so = (s >> 2) * 4096
        if s == 21: return "s59"
        if so == 0: return "0"
        if cur[0] != so:
            a(f"s_mov_b32 s64, {so}"); cur[0] = so
        return "s64"
    def ldw(s, k):
        r = wreg(s) + 4 * k
        sreg = soff(s)
        a.vmop(f"buffer_load_dwordx4 v[{r}:{r+3}], v{40+2*k}, s[{SWS}:{SWS+3}], {sreg} offen offset:{(s&3)*1024} sc1", ("w2", s, k))
    m0cur = [None]
    def ldw_lds(s, k):
        sreg = soff(s)
        m = k * 9216 + ((s >> 2) - 3) * 4096
        if m0cur[0] != m:
            a(f"s_add_u32 m0, s65, {m}"); m0cur[0] = m
        a.vmop(f"buffer_load_dwordx4 v{40+2*k}, s[{SWS}:{SWS+3}], {sreg} offen offset:{(s&3)*1024} sc1 lds", ("w2", s, k))
    early = [(s_, k_) for s_ in REGW[:8] for k_ in range(2)]
    W0U = X_get(X, "w0u", 13)
    for u in range(16):
        c, hb = u >> 1, u & 1
        for sp in range(2):
            S = 2 * u + sp
            sx = S & 3
            for jj in range(6):
                mat, j = jj & 1, jj >> 1
                lg = [("w", S, jj)]
                if jj == 0: lg.append(("x", c, sx))
                a.need(lg=lg)
                d = ACC(mat, j)
                src_c = "0" if S == 0 else f"v[{d}:{d+15}]"
                a(f"v_mfma_f32_32x32x16_bf16 v[{d}:{d+15}], v[{WF(mat,j)}:{WF(mat,j)+3}], v[{XF(c&1,sx)}:{XF(c&1,sx)+3}], {src_c}")
                if sp == 1 and jj == 0 and u < 15:
                    a.need(vm=("W", u + 1))
                    a("s_barrier")
                if S + 1 < 32: rd_w(S + 1, jj)
                if sp == 0 and jj in (1, 3, 5) and u + 3 < 16:
                    dma_w(u + 3, jj >> 1)
                if hb == 0 and sp == 1 and jj in (1, 2, 3, 4) and c + 2 < 8:
                    if jj == 1:
                        a.need(lg=("x", c, 3))
                    dma_x(c + 2, jj - 1)
                if hb == 1 and sp == 0 and jj in (0, 2, 4) and c + 1 < 8:
                    if jj == 0: a.need(vm=("X", c + 1))
                    if jj == 0: rd_x(c + 1, 0); rd_x(c + 1, 1)
                    if jj == 2: rd_x(c + 1, 2)
                    if jj == 4: rd_x(c + 1, 3)
                if u == NU and sp == 1 and jj == 5:
                    a.vmop(f"global_load_dwordx2 v[{PV}:{PV+1}], v{VZ}, s[{DBG}:{DBG+1}] sc1", "non")
                if u == NU + 2 and sp == 1 and jj == 5:
                    nonce_get(a, "Pn", PV, NON, DBG, VZ, "non")
                if u == FU and sp == 1 and jj == 5:
                    a("s_mov_b64 exec, s[72:73]")
                    a.vmop(f"buffer_load_dwordx2 v[{PV}:{PV+1}], v{AF1}, s[{SWS}:{SWS+3}], 0 offen sc1", "f1")
                    a("s_mov_b64 exec, -1")
                if WP:
                    if u == W0U - 1 and sp == 1 and jj == 5:
                        spin_wait(a, "Pf1", AF1, PV, SWS, 72, NON, "f1")
                    if u >= W0U and jj in (1, 3, 5) and early:
                        ldw(*early.pop(0))
    if tim: tim(a, 3)
    if not WP: spin_wait(a, "Pf1", AF1, PV, SWS, 72, NON, "f1")
    if WP:
        while early: ldw(*early.pop(0))
        a("s_barrier")
        if tim and "es" in X: tim(a, 1)
        lds_list = [(s_, k_) for k_ in range(2) for s_ in LDSW]
        for _ in range(X_get(X, "d0", 0)): ldw_lds(*lds_list.pop(0))
    lbl_done = a.newlabel("G1done")
    a("s_nop 7\ns_nop 3")
    for j in range(3):
        if j == 1:
            a(f"s_cmp_eq_u32 s25, 14\ns_cbranch_scc1 {lbl_done}")
        g, up = ACC(0, j), ACC(1, j)
        T = 160 if WP else 16
        for r in range(16):
            a(f"v_max_f32 v{g+r}, 0, v{g+r}")
        if "fe" in X:
            for r in range(16):
                a(f"v_mul_f32 v{g+r}, v{g+r}, v{up+r}")
        else:
            for r in range(16):
                a(f"v_cvt_pk_bf16_f32 v{g+r}, 0, v{g+r}")
                a(f"v_cvt_pk_bf16_f32 v{up+r}, 0, v{up+r}")
            for r in range(16):
                a(f"v_mul_f32 v{g+r}, v{g+r}, v{up+r}")
        for r in range(8):
            a(f"v_cvt_pk_bf16_f32 v{T+8*j+r}, v{g+2*r}, v{g+2*r+1}")
        for p in range(2):
            n = T + 8 * j + 4 * p
            a("s_nop 0")
            a(f"v_permlane32_swap_b32 v{n}, v{n+2}")
            a(f"v_permlane32_swap_b32 v{n+1}, v{n+3}")
            a("s_nop 0")
            off = (2 * j + p) * 1024
            so = "0"
            if off > 4095:
                a(f"s_mov_b32 s30, {off}"); so = "s30"; off = 0
            a.vmop(f"buffer_store_dwordx4 v[{n}:{n+3}], v11, s[{SH}:{SH+3}], {so} offen offset:{off} sc1", ("st",))
        for _ in range(X_get(X, "pad", 0)): a("s_nop 15")
        if WP and j == 0:
            for _ in range(min(X_get(X, "d1", 0), len(lds_list))): ldw_lds(*lds_list.pop(0))
    a(f"{lbl_done}:")
    if tim and "es" in X: tim(a, 2)
    if WP:
        gemm2_wp(a, tim, X, locals())
        return

    PF = 8
    ACC2 = lambda i: 64 + 16 * i
    FR = lambda b, k: 128 + (b * 4 + k) * 4
    cur = [None]
    def ld(s, k):
        so = (s >> 2) * 4096
        if s == 21:
            sreg = "s59"
        elif so == 0:
            sreg = "0"
        else:
            if cur[0] != so:
                a(f"s_mov_b32 s64, {so}"); cur[0] = so
            sreg = "s64"
        r = FR(s % PF, k)
        a.vmop(f"buffer_load_dwordx4 v[{r}:{r+3}], v{40+k}, s[{SWS}:{SWS+3}], {sreg} offen offset:{(s&3)*1024} sc1", ("f", s, k))
    lbl_j = a.newlabel("Pjoin")
    for s in range(PF):
        ld(s, 0); ld(s, 2)
    a(f"s_waitcnt vmcnt({2*PF})")
    a(f"v_mov_b32 v{PV}, s{NON}\nv_mov_b32 v{PV+1}, s{NON+1}\ns_mov_b64 exec, 1")
    a.vmop(f"buffer_store_dwordx2 v[{PV}:{PV+1}], v{AFHP}, s[{SWS}:{SWS+3}], 0 offen sc1", "fh")
    a("s_mov_b64 exec, -1")
    a(f"s_branch {lbl_j}")
    a(f"{lbl_idle}:")
    sv = (list(a.vm), a.vmdone, list(a.lg), a.lgdone)
    nonce_get(a, "Pi", PV, NON, DBG, VZ)
    spin_wait(a, "Pi1", AF1, PV, SWS, 72, NON)
    cur[0] = None
    for s in range(PF):
        ld(s, 0); ld(s, 2)
    a.vm, a.vmdone, a.lg, a.lgdone = sv
    cur[0] = None
    a(f"{lbl_j}:")
    if tim: tim(a, 4)
    a("s_setprio 2")
    spin_wait(a, "Pfh", AFH, PV, SWS, 74, NON)
    a.vmdone = len(a.vm)
    if tim: tim(a, 5)
    for s in range(PF):
        ld(s, 1); ld(s, 3)
    poll_at, chk_at = X_get(X, "pa", 14), X_get(X, "ca", 19)
    ATB = 16
    for s in range(22):
        b = s % PF
        W0, H0, W1, H1 = (FR(b, k) for k in range(4))
        nxt = s + PF < 22
        def mf(i, W, H):
            d = ACC2(i)
            c = "0" if s == 0 else f"v[{d}:{d+15}]"
            a(f"v_mfma_f32_32x32x16_bf16 v[{d}:{d+15}], v[{W}:{W+3}], v[{H}:{H+3}], {c}")
        if s < PF:
            a.need(vm=[("f", s, 1)]); mf(0, W0, H0); mf(1, W1, H0)
            a.need(vm=[("f", s, 3)]); mf(2, W0, H1)
            mf(3, W1, H1)
            if nxt:
                for k in (1, 3, 0, 2): ld(s + PF, k)
        else:
            a.need(vm=[("f", s, 0), ("f", s, 1), ("f", s, 2), ("f", s, 3)])
            mf(0, W0, H0)
            mf(1, W1, H0)
            mf(2, W0, H1)
            mf(3, W1, H1)
            if nxt:
                for k in (1, 3, 0, 2): ld(s + PF, k)
        if s == poll_at:
            a("s_mov_b64 exec, s[76:77]")
            a.vmop(f"buffer_load_dwordx2 v[{PV}:{PV+1}], v{AF3}, s[{SWS}:{SWS+3}], 0 offen sc1", "poll")
            a("s_mov_b64 exec, -1")
        if s == chk_at:
            if "nof3" not in X: spin_wait(a, "Pf3", AF3, PV, SWS, 76, NON, "poll")
            a.vmop(f"buffer_load_dwordx4 v[{ATB}:{ATB+3}], v{AAT}, s[{SWS}:{SWS+3}], 0 offen sc1", "at")
            a("s_mov_b32 s64, 65536"); cur[0] = 65536
            a.vmop(f"buffer_load_dwordx4 v[{ATB+4}:{ATB+7}], v{AAT}, s[{SWS}:{SWS+3}], s64 offen sc1", "at")
            a.vmop(f"buffer_load_dwordx2 v[{GV}:{GV+1}], v{AG}, s[{SWS}:{SWS+3}], 0 offen sc1", "g")
    if tim: tim(a, 6)
    for i in (1, 2, 3):
        a(f"v_add_u32 v{3+i}, s{65+i}, v{AL16}")
    a(f"v_add_u32 v7, s69, v{AL16}")
    for i in (1, 2, 3):
        for q in range(4):
            r = ACC2(i) + 4 * q
            a.lgop(f"ds_write_b128 v{3+i}, v[{r}:{r+3}] offset:{q*1024}", "rw")
    a.need(vm="at")
    a.lgop(f"ds_write_b128 v{AST}, v[{ATB}:{ATB+3}]", "sa")
    a.lgop(f"ds_write_b128 v{AST}, v[{ATB+4}:{ATB+7}] offset:1024", "sa")
    a.drain(vm=False, lg=True)
    a("s_barrier")
    XR = 128
    for i in range(3):
        for q in range(4):
            r = XR + 16 * i + 4 * q
            a.lgop(f"ds_read_b128 v[{r}:{r+3}], v7 offset:{i*4096 + q*1024}", ("p", i))
    AV = 176
    for q in range(4):
        a.lgop(f"ds_read_b64_tr_b16 v[{AV+2*q}:{AV+2*q+1}], v{ATR} offset:{q*512}", "a")
    A0 = ACC2(0)
    for i in range(3):
        a.need(lg=("p", i))
        for r in range(16):
            a(f"v_add_f32 v{A0+r}, v{A0+r}, v{XR+16*i+r}")
    a.need(lg="a", vm="g")
    U = 184
    for q in range(4):
        for k in range(2):
            a(f"v_lshlrev_b32 v{U+4*q+2*k}, 16, v{AV+2*q+k}")
            a(f"v_and_b32 v{U+4*q+2*k+1}, 0xffff0000, v{AV+2*q+k}")
    for r in range(16):
        a(f"v_cvt_pk_bf16_f32 v{A0+r}, 0, v{A0+r}")
    for r in range(16):
        a(f"v_mul_f32 v{U+r}, v{GV}, v{U+r}")
    for r in range(16):
        a(f"v_mul_f32 v{A0+r}, v{GV+1}, v{A0+r}")
    for r in range(16):
        a(f"v_cvt_pk_bf16_f32 v{U+r}, 0, v{U+r}")
    for r in range(16):
        a(f"v_cvt_pk_bf16_f32 v{A0+r}, 0, v{A0+r}")
    for r in range(16):
        a(f"v_add_f32 v{U+r}, v{U+r}, v{A0+r}")
    P = 200
    for k in range(8):
        a(f"v_cvt_pk_bf16_f32 v{P+k}, v{U+2*k}, v{U+2*k+1}")
    for pr in range(2):
        n = P + 4 * pr
        a(f"v_permlane32_swap_b32 v{n}, v{n+2}")
        a(f"v_permlane32_swap_b32 v{n+1}, v{n+3}")
        a.vmop(f"buffer_store_dwordx4 v[{n}:{n+3}], v{AOUT}, s[{SO}:{SO+3}], 0 offen offset:{pr*32}", "st")

def gemm2_wp(a, tim, X, L):
    g = L
    SWS, SO, NON_, PV, GV = g["SWS"], g["SO"], NON, g["PV"], g["GV"]
    AFHP, AF1, AFH, AF3, AAT, AG, AL16, ATR, AOUT, VZ, DBG = (g[k] for k in "AFHP AF1 AFH AF3 AAT AG AL16 ATR AOUT VZ DBG".split())
    REGW, LDSW, wreg, ldw, ldw_lds, soff, cur, m0cur, lbl_idle = (g[k] for k in "REGW LDSW wreg ldw ldw_lds soff cur m0cur lbl_idle".split())
    ACC2 = lambda i: 64 + 16 * i
    lbl_j = a.newlabel("Pjoin")
    cur[0] = None
    late = [(ldw, s_, k_) for s_ in REGW[8:] for k_ in range(2)] + [(ldw_lds, s_, k_) for (s_, k_) in g["lds_list"]]
    K1 = min(X_get(X, "k1", 14), len(late))
    for f_, s_, k_ in late[:K1]: f_(s_, k_)
    a(f"s_waitcnt vmcnt({K1})")
    if tim and "es" in X: tim(a, 4)
    a(f"v_mov_b32 v{PV}, s{NON}\nv_mov_b32 v{PV+1}, s{NON+1}\ns_mov_b64 exec, 1")
    a.vmop(f"buffer_store_dwordx2 v[{PV}:{PV+1}], v{AFHP}, s[{SWS}:{SWS+3}], 0 offen sc1", "fh")
    a("s_mov_b64 exec, -1")
    for f_, s_, k_ in late[K1:]: f_(s_, k_)
    a(f"s_branch {lbl_j}")
    a(f"{lbl_idle}:")
    sv = (list(a.vm), a.vmdone, list(a.lg), a.lgdone)
    nonce_get(a, "Pi", PV, NON, DBG, VZ)
    spin_wait(a, "Pi1", AF1, PV, SWS, 72, NON)
    cur[0] = None; m0cur[0] = None
    for s_ in REGW:
        for k_ in range(2): ldw(s_, k_)
    for k_ in range(2):
        for s_ in LDSW: ldw_lds(s_, k_)
    a.vm, a.vmdone, a.lg, a.lgdone = sv
    cur[0] = None
    a(f"{lbl_j}:")
    if tim and "es" not in X: tim(a, 4)
    a("s_setprio 2")
    a(f"v_add_u32 v7, s65, v{AL16}")
    spin_wait(a, "Pfh", AFH, PV, SWS, 74, NON)
    a.vmdone = len(a.vm)
    if tim: tim(a, 5)
    HD = X_get(X, "hd", 6)
    free = []
    hslot = {}
    def ldh(s):
        r = hslot[s]
        for k in range(2):
            sreg = soff(s)
            a.vmop(f"buffer_load_dwordx4 v[{r+4*k}:{r+4*k+3}], v{41+2*k}, s[{SWS}:{SWS+3}], {sreg} offen offset:{(s&3)*1024} sc1", ("h", s, k))
    for s in range(HD):
        hslot[s] = 128 + 8 * s; ldh(s)
    nexth = HD
    wslot = {s: wreg(s) for s in REGW}
    def rdw(s):
        r = wslot[s] = free.pop(0)
        for k in range(2):
            a.lgop(f"ds_read_b128 v[{r+4*k}:{r+4*k+3}], v7 offset:{k*9216 + (s-12)*1024}", ("w", s))
    poll_at, chk_at = X_get(X, "pa", 14), X_get(X, "ca", 19)
    ATB = None
    for s in range(22):
        W0, W1 = wslot[s], wslot[s] + 4
        H0, H1 = hslot[s], hslot[s] + 4
        def mf(i, W, H):
            d = ACC2(i)
            c = "0" if s == 0 else f"v[{d}:{d+15}]"
            a(f"v_mfma_f32_32x32x16_bf16 v[{d}:{d+15}], v[{W}:{W+3}], v[{H}:{H+3}], {c}")
        if s in LDSW: a.need(lg=("w", s))
        a.need(vm=[("h", s, 0)]); mf(0, W0, H0); mf(1, W1, H0)
        a.need(vm=[("h", s, 1)]); mf(2, W0, H1); mf(3, W1, H1)
        free += [wslot[s], hslot[s]]
        if s + 2 in LDSW: rdw(s + 2)
        while nexth < 22 and len(free) > (1 if (s + 3 in LDSW) else 0):
            hslot[nexth] = free.pop(0); ldh(nexth); nexth += 1
        if s == poll_at:
            a("s_mov_b64 exec, s[76:77]")
            a.vmop(f"buffer_load_dwordx2 v[{PV}:{PV+1}], v{AF3}, s[{SWS}:{SWS+3}], 0 offen sc1", "poll")
            a("s_mov_b64 exec, -1")
        if s == chk_at:
            ATB = free.pop(0)
            if "nof3" not in X: spin_wait(a, "Pf3", AF3, PV, SWS, 76, NON, "poll")
            a.vmop(f"buffer_load_dwordx4 v[{ATB}:{ATB+3}], v{AAT}, s[{SWS}:{SWS+3}], 0 offen sc1", "at")
            a("s_mov_b32 s64, 65536"); cur[0] = 65536
            a.vmop(f"buffer_load_dwordx4 v[{ATB+4}:{ATB+7}], v{AAT}, s[{SWS}:{SWS+3}], s64 offen sc1", "at")
            a.vmop(f"buffer_load_dwordx2 v[{GV}:{GV+1}], v{AG}, s[{SWS}:{SWS+3}], 0 offen sc1", "g")
    if tim: tim(a, 6)
    for i in (1, 2, 3):
        a(f"v_add_u32 v{3+i}, s{65+i}, v{AL16}")
    for i in (1, 2, 3):
        for q in range(4):
            r = ACC2(i) + 4 * q
            a.lgop(f"ds_write_b128 v7, v[{r}:{r+3}] offset:{(i-1)*4096 + q*1024}", "rw")
    a.need(vm="at")
    a.lgop(f"ds_write_b128 v7, v[{ATB}:{ATB+3}] offset:18432", "sa")
    a.lgop(f"ds_write_b128 v7, v[{ATB+4}:{ATB+7}] offset:19456", "sa")
    a.drain(vm=False, lg=True)
    a("s_barrier")
    XR = 128
    for i in range(3):
        for q in range(4):
            r = XR + 16 * i + 4 * q
            a.lgop(f"ds_read_b128 v[{r}:{r+3}], v{4+i} offset:{q*1024}", ("p", i))
    AV = 176
    for q in range(4):
        a.lgop(f"ds_read_b64_tr_b16 v[{AV+2*q}:{AV+2*q+1}], v{ATR} offset:{q*512}", "a")
    A0 = ACC2(0)
    FE = "fe" in X
    for i in range(3):
        a.need(lg=("p", i))
        if FE:
            for r in range(0, 16, 2):
                a(f"v_pk_add_f32 v[{A0+r}:{A0+r+1}], v[{A0+r}:{A0+r+1}], v[{XR+16*i+r}:{XR+16*i+r+1}]")
        else:
            for r in range(16):
                a(f"v_add_f32 v{A0+r}, v{A0+r}, v{XR+16*i+r}")
    a.need(lg="a", vm="g")
    U = 184
    for q in range(4):
        for k in range(2):
            a(f"v_lshlrev_b32 v{U+4*q+2*k}, 16, v{AV+2*q+k}")
            a(f"v_and_b32 v{U+4*q+2*k+1}, 0xffff0000, v{AV+2*q+k}")
    if FE:
        for r in range(0, 16, 2):
            a(f"v_pk_mul_f32 v[{U+r}:{U+r+1}], v[{U+r}:{U+r+1}], v[{GV}:{GV+1}] op_sel:[0,0] op_sel_hi:[1,0]")
        for r in range(0, 16, 2):
            a(f"v_pk_fma_f32 v[{U+r}:{U+r+1}], v[{A0+r}:{A0+r+1}], v[{GV}:{GV+1}], v[{U+r}:{U+r+1}] op_sel:[0,1,0] op_sel_hi:[1,1,1]")
    else:
        for r in range(16):
            a(f"v_cvt_pk_bf16_f32 v{A0+r}, 0, v{A0+r}")
        for r in range(16):
            a(f"v_mul_f32 v{U+r}, v{GV}, v{U+r}")
        for r in range(16):
            a(f"v_mul_f32 v{A0+r}, v{GV+1}, v{A0+r}")
        for r in range(16):
            a(f"v_cvt_pk_bf16_f32 v{U+r}, 0, v{U+r}")
        for r in range(16):
            a(f"v_cvt_pk_bf16_f32 v{A0+r}, 0, v{A0+r}")
        for r in range(16):
            a(f"v_add_f32 v{U+r}, v{U+r}, v{A0+r}")
    P = 200
    for k in range(8):
        a(f"v_cvt_pk_bf16_f32 v{P+k}, v{U+2*k}, v{U+2*k+1}")
    for pr in range(2):
        n = P + 4 * pr
        a(f"v_permlane32_swap_b32 v{n}, v{n+2}")
        a(f"v_permlane32_swap_b32 v{n+1}, v{n+3}")
        a.vmop(f"buffer_store_dwordx4 v[{n}:{n+3}], v{AOUT}, s[{SO}:{SO+3}], 0 offen offset:{pr*32}", "st")

def X_get(X, key, default):
    for x in X:
        if x.startswith(key + "="): return int(x.split("=")[1])
    return default
```

```python
import sys
sys.path.insert(0, "dev")
from gen import *

WS_F3 = 0x588000
WS_FH = 0x590000
WS_F1 = 0x5B0000
SPIN = 0x2000
NON = 42

def spin_wait(a, name, vaddr, vdat, srd, mask_s, non, first_issued_tag=None, cnt=70):
    ok = a.newlabel(name + "ok"); sp = a.newlabel(name + "sp")
    if first_issued_tag is not None:
        a.need(vm=first_issued_tag)
        a(f"s_mov_b64 exec, s[{mask_s}:{mask_s+1}]")
        a(f"v_cmp_ne_u64 vcc, s[{non}:{non+1}], v[{vdat}:{vdat+1}]")
        a("s_mov_b64 exec, -1")
        a(f"s_cbranch_vccz {ok}")
    a(f"s_mov_b32 s{cnt}, {SPIN}")
    a(f"{sp}:")
    a(f"s_mov_b64 exec, s[{mask_s}:{mask_s+1}]")
    a(f"buffer_load_dwordx2 v[{vdat}:{vdat+1}], v{vaddr}, s[{srd}:{srd+3}], 0 offen sc1")
    a(f"s_sub_u32 s{cnt}, s{cnt}, 1")
    a("s_waitcnt vmcnt(0)")
    a(f"v_cmp_ne_u64 vcc, s[{non}:{non+1}], v[{vdat}:{vdat+1}]")
    a("s_mov_b64 exec, -1")
    a(f"s_cbranch_vccz {ok}")
    a(f"s_cmp_lg_u32 s{cnt}, 0")
    a(f"s_cbranch_scc1 {sp}")
    a(f"{ok}:")

def nonce_get(a, name, vdat, non, dbg, vz, first_issued_tag=None, cnt=70):
    ok = a.newlabel(name + "ok"); sp = a.newlabel(name + "sp")
    if first_issued_tag is not None:
        a.need(vm=first_issued_tag)
        a(f"v_readfirstlane_b32 s{non}, v{vdat}")
        a(f"v_readfirstlane_b32 s{non+1}, v{vdat+1}")
        a(f"s_cmp_lg_u32 s{non}, 0")
        a(f"s_cbranch_scc1 {ok}")
    a(f"s_mov_b32 s{cnt}, {SPIN}")
    a(f"{sp}:")
    a(f"global_load_dwordx2 v[{vdat}:{vdat+1}], v{vz}, s[{dbg}:{dbg+1}] sc1")
    a(f"s_sub_u32 s{cnt}, s{cnt}, 1")
    a("s_waitcnt vmcnt(0)")
    a(f"v_readfirstlane_b32 s{non}, v{vdat}")
    a(f"v_readfirstlane_b32 s{non+1}, v{vdat+1}")
    a(f"s_cmp_lg_u32 s{non}, 0")
    a(f"s_cbranch_scc1 {ok}")
    a(f"s_cmp_lg_u32 s{cnt}, 0")
    a(f"s_cbranch_scc1 {sp}")
    a(f"{ok}:")

def prole(a, tim=None, X=()):
    ACC = lambda mat, j: 64 + (2 * j + mat) * 16
    WF = lambda mat, j: 160 + (2 * j + mat) * 4
    XF = lambda b, s: 184 + b * 16 + s * 4
    SX, SW, SH, SWS, SO = 12, 16, 20, 48, 52
    DBG, OUT = 46, 44
    XBASE = 49152
    AW0, AH0, AW1, AH1 = 40, 41, 42, 43
    AF3, AAT, AG, AST, ATR, AOUT, AL16, AFH, AF1, AFHP, VZ = 44, 45, 46, 47, 48, 49, 50, 51, 52, 58, 59
    PV, GV, AT0 = 54, 56, 60
    lbl_idle = a.newlabel("Pidle")
    PST = "pst" in X
    tim0 = tim
    if tim and PST:
        mp = {1: 4, 2: 5, 3: 6}
        tim = lambda aa, k: tim0(aa, mp[k]) if k in mp else None
    if X_get(X, "p0", 0): a(f"s_setprio {X_get(X, 'p0', 0)}")
    a("""
    s_load_dwordx2 s[4:5], s[0:1], 0
    s_load_dwordx2 s[6:7], s[0:1], 80
    s_load_dwordx2 s[8:9], s[0:1], 88
    s_load_dwordx4 s[44:47], s[0:1], 112
    s_load_dwordx2 s[10:11], s[0:1], 128
    s_and_b32 s30, s2, 7
    s_lshr_b32 s31, s2, 3
    s_lshr_b32 s26, s30, 1
    s_lshl_b32 s26, s26, 2
    s_and_b32 s32, s31, 3
    s_add_u32 s26, s26, s32
    s_and_b32 s25, s30, 1
    s_lshl_b32 s25, s25, 3
    s_lshr_b32 s32, s31, 2
    s_add_u32 s25, s25, s32
    v_lshrrev_b32 v12, 6, v0
    v_and_b32 v13, 63, v0
    s_mov_b32 s29, 0
    v_readfirstlane_b32 s24, v12
    """)
    lb = a.newlabel("M2")
    a(f"s_lshr_b32 s32, s31, 2\ns_cmp_lg_u32 s32, 7\ns_cbranch_scc1 {lb}")
    a(f"s_bfe_u32 s29, s31, 0x10001")
    a(f"s_and_b32 s32, s30, 1\ns_lshl_b32 s32, s32, 1\ns_add_u32 s26, s26, s32\ns_mov_b32 s25, 7")
    a(f"{lb}:")
    if "sm" in X:
        a("s_lshl_b32 s26, s30, 1\ns_and_b32 s32, s31, 1\ns_add_u32 s26, s26, s32\ns_lshr_b32 s25, s31, 1")
        a("s_cmp_eq_u32 s25, 15\ns_cselect_b32 s29, 1, 0\ns_min_u32 s25, s25, 14")
    a("s_and_b32 s30, s24, 1\ns_mul_i32 s30, s30, 192")
    a("s_mul_i32 s31, s25, 192")
    XA = X_get(X, "xa", 0)
    if XA & 1: a("s_mov_b32 s31, 0")
    a("s_mov_b32 s33, 2752\ns_mov_b32 s34, 0xaaab")
    a("s_cmp_eq_u32 s25, 14\ns_cselect_b32 s37, 64, 0x10000\nv_mov_b32 v17, 0x8000000")
    for k in range(3):
        a(f"v_add_u32 v14, s30, v13")
        if k: a(f"v_add_u32 v14, {64*k}, v14")
        a("v_mul_lo_u32 v15, v14, s34\nv_lshrrev_b32 v15, 19, v15")
        a("v_mul_u32_u24 v16, 12, v15\nv_sub_u32 v16, v14, v16\nv_lshlrev_b32 v16, 4, v16")
        a("v_mul_lo_u32 v15, v15, s33\nv_add_u32 v15, v15, v16")
        a(f"v_add_u32 v{6+k}, s31, v15")
        if k: a(f"v_subrev_u32 v{6+k}, {1024*k}, v{6+k}")
        a(f"v_cmp_le_u32 vcc, s37, v16\nv_cndmask_b32 v{6+k}, v{6+k}, v17, vcc")
    a("s_lshl_b32 s30, s26, 7\ns_lshl_b32 s31, s24, 5\ns_add_u32 s30, s30, s31\ns_lshl_b32 s30, s30, 10")
    if XA & 2: a("s_lshl_b32 s30, s24, 15")
    a("""
    v_lshrrev_b32 v14, 3, v13
    v_lshlrev_b32 v14, 10, v14
    v_add_u32 v14, s30, v14
    v_lshrrev_b32 v15, 4, v13
    v_and_b32 v16, 7, v13
    v_xor_b32 v17, v16, v15
    v_lshlrev_b32 v17, 4, v17
    v_add_u32 v9, v14, v17
    v_or_b32 v15, 4, v15
    v_xor_b32 v17, v16, v15
    v_lshlrev_b32 v17, 4, v17
    v_add_u32 v10, v14, v17
    v_add_u32 v10, 7168, v10
    """)
    a("s_mul_i32 s35, s24, 3072")
    a(f"s_lshl_b32 s36, s24, 12\ns_add_u32 s36, s36, {XBASE}")
    a("s_memrealtime s[42:43]")
    a("s_waitcnt lgkmcnt(0)")
    if tim0 and PST: tim0(a, 1)
    srd_from(a, SX, 4, 5, 2048 * 1024)
    a("s_cmp_ge_u32 s24, 2\ns_cselect_b32 s6, s8, s6\ns_cselect_b32 s7, s9, s7")
    srd_from(a, SW, 6, 7, 512 * 2752)

    ROT = X_get(X, "rot", 0)
    if ROT:
        if ROT == 1: a("s_lshl_b32 s71, s26, 1\ns_add_u32 s71, s71, s25\ns_and_b32 s71, s71, 7")
        if ROT == 2: a("s_add_u32 s71, s26, s25\ns_and_b32 s71, s71, 3\ns_lshl_b32 s71, s71, 1")
        if ROT == 3: a("s_and_b32 s71, s26, 3\ns_lshl_b32 s71, s71, 1")
        if ROT == 4: a("s_and_b32 s71, s25, 7")
        a("s_lshl_b32 s94, s71, 1")
    skipped = set()
    CM = {0: "", 1: " sc1", 2: " nt", 3: " sc0", 4: " sc0 sc1", 5: " sc1 nt"}
    WL = CM[X_get(X, "wl", 0)]; XL = CM[X_get(X, "xl", 0)]
    skl = set()
    def needvm(tags):
        tags = [t for t in (tags if isinstance(tags, list) else [tags]) if t not in skipped]
        if tags: a.need(vm=tags)
    def dma_w(u, k):
        if "nw" in X and u >= 3:
            skipped.add(("W", u)); return
        if k == 0:
            a(f"s_add_u32 m0, s35, {(u % 4) * 12288}")
            if ROT:
                a(f"s_add_u32 s27, s94, {u}\ns_and_b32 s27, s27, 15\ns_mul_i32 s27, s27, 88064")
            else:
                a(f"s_mov_b32 s27, {u * 88064}")
        if "vw" in X and u >= 3:
            r = 216 + ((u % 3) * 3 + k) * 4
            a.vmop(f"buffer_load_dwordx4 v[{r}:{r+3}], v{6+k}, s[{SW}:{SW+3}], s27 offen offset:{1024*k}", ("W", u))
            return
        a.vmop(f"buffer_load_dwordx4 v{6+k}, s[{SW}:{SW+3}], s27 offen offset:{1024*k}{WL} lds", ("W", u))
    def dma_x(c, k):
        if "nx" in X and c >= 2:
            skipped.add(("X", c)); return
        if k == 0:
            a(f"s_add_u32 m0, s36, {(c & 1) * 16384}")
            if ROT:
                a(f"s_add_u32 s28, s71, {c}\ns_and_b32 s28, s28, 7\ns_lshl_b32 s28, s28, 7")
            else:
                a(f"s_mov_b32 s28, {c * 128}")
        if k == 2:
            if ROT: a("s_add_u32 s28, s28, 14336")
            else: a(f"s_mov_b32 s28, {c * 128 + 14336}")
            a("s_nop 0")
        if "vx" in X and c >= 2:
            r = 16 + k * 4
            a.vmop(f"buffer_load_dwordx4 v[{r}:{r+3}], v{9+(k&1)}, s[{SX}:{SX+3}], s28 offen offset:{1024*k}", ("X", c))
            return
        a.vmop(f"buffer_load_dwordx4 v{9+(k&1)}, s[{SX}:{SX+3}], s28 offen offset:{1024*k}{XL} lds", ("X", c))
    def rd_w(S, jj):
        u, sp = S >> 1, S & 1
        mat, j = jj & 1, jj >> 1
        base = (u % 4) * 12288 + mat * 6144 + 16 * sp * 192 + j * 64
        r = WF(mat, j)
        if S >= 2 and jj >= 6 - X_get(X, "hr", 0):
            a.lg.append(("w", S, jj)); a.lg.pop(); skl.add(("w", S, jj)); return
        a.lgop(f"ds_read_b64_tr_b16 v[{r}:{r+1}], v1 offset:{base}", ("w", S, jj))
        a.lgop(f"ds_read_b64_tr_b16 v[{r+2}:{r+3}], v1 offset:{base + 4*192}", ("w", S, jj))
    def rd_x(c, s):
        r = XF(c & 1, s)
        a.lgop(f"ds_read_b128 v[{r}:{r+3}], v{2+s} offset:{(c & 1) * 16384}", ("x", c, s))

    lbl_nold = a.newlabel("Pnold")
    a(f"s_cmp_lg_u32 s29, 0\ns_cbranch_scc1 {lbl_nold}")
    PS2 = "pst2" in X
    if tim0 and PS2:
        tim = lambda aa, k: None
        tim0(a, 1)
    for k in range(4): dma_x(0, k)
    if tim0 and PS2: tim0(a, 2)
    for k in range(3): dma_w(0, k)
    if tim0 and PS2: tim0(a, 3)
    for k in range(3): dma_w(1, k)
    if tim0 and PS2: tim0(a, 4)
    for k in range(4): dma_x(1, k)
    if tim0 and PS2: tim0(a, 5)
    for k in range(3): dma_w(2, k)
    if tim0 and PS2: tim0(a, 6)
    a(f"{lbl_nold}:")
    if tim0 and PST: tim0(a, 2)
    lbl_nn = a.newlabel("Pnn")
    if "en" in X: a(f"s_branch {lbl_nn}")
    a(f"s_cmp_lg_u32 s2, 240\ns_cbranch_scc1 {lbl_nn}")
    a(f"s_cmp_lg_u32 s24, 0\ns_cbranch_scc1 {lbl_nn}")
    a(f"s_or_b32 s42, s42, 1\nv_mov_b32 v14, s42\nv_mov_b32 v15, s43\nv_mov_b32 v16, 0\ns_mov_b64 exec, 1")
    a(f"global_store_dwordx2 v16, v[14:15], s[{DBG}:{DBG+1}] sc1")
    a("s_mov_b64 exec, -1")
    a(f"{lbl_nn}:")
    srd_from(a, SH, 10, 11, H_SIZE, WS_H)
    srd_from(a, SWS, 10, 11, WS_END)
    srd_from(a, SO, OUT, OUT + 1, 2048 * 1024)
    a("""
    v_lshrrev_b32 v14, 5, v13
    v_lshlrev_b32 v14, 3, v14
    v_bfe_u32 v15, v13, 2, 2
    v_add_u32 v14, v14, v15
    v_mul_u32_u24 v14, 192, v14
    v_bfe_u32 v15, v13, 4, 1
    v_lshlrev_b32 v15, 5, v15
    v_and_b32 v16, 3, v13
    v_lshlrev_b32 v16, 3, v16
    v_add3_u32 v1, v14, v15, v16
    """)
    a("""
    v_and_b32 v14, 31, v13
    v_bfe_u32 v15, v13, 1, 3
    v_lshrrev_b32 v16, 5, v13
    v_xor_b32 v15, v15, v16
    v_lshlrev_b32 v14, 7, v14
    """)
    a(f"s_lshl_b32 s30, s24, 12\ns_add_u32 s30, s30, {XBASE}\nv_add_u32 v14, s30, v14")
    for s in range(4):
        a(f"v_xor_b32 v16, {2*s}, v15\nv_lshlrev_b32 v16, 4, v16\nv_add_u32 v{2+s}, v14, v16")
    a("s_lshl_b32 s30, s26, 2\ns_add_u32 s30, s30, s24\ns_mul_i32 s31, s30, 86\ns_mul_i32 s32, s25, 6\ns_add_u32 s31, s31, s32\ns_lshl_b32 s31, s31, 10")
    a(f"v_lshlrev_b32 v{AL16}, 4, v13\nv_add_u32 v11, s31, v{AL16}")
    a(f"s_lshl_b32 s30, s30, 4\ns_add_u32 s30, s30, s25\ns_lshl_b32 s30, s30, 7\ns_add_u32 s30, s30, {WS_FH}\nv_mov_b32 v{AFHP}, s30\nv_mov_b32 v{VZ}, 0")

    if tim0 and PST: tim0(a, 3)
    a("""
    s_and_b32 s30, s2, 7
    s_lshr_b32 s31, s2, 3
    s_lshl_b32 s56, s30, 3
    s_and_b32 s57, s31, 3
    s_lshl_b32 s57, s57, 1
    s_add_u32 s38, s56, s57                   ; tb0
    s_lshr_b32 s39, s31, 2                    ; group
    s_lshl_b32 s40, s39, 1                    ; cb0
    s_mul_i32 s56, s24, 22
    s_cmp_eq_u32 s24, 3
    s_cselect_b32 s57, 1, 0
    s_sub_u32 s41, s56, s57                   ; ks0
    s_and_b32 s57, s24, 1
    s_lshr_b32 s58, s24, 1
    s_add_u32 s60, s40, s57
    s_add_u32 s61, s38, s58
    s_xor_b32 s62, s60, 1
    s_xor_b32 s63, s61, 1
    """)
    for (dst, blk, base) in ((AW0, 60, WS_WF), (AH0, 61, WS_H), (AW1, 62, WS_WF), (AH1, 63, WS_H)):
        a(f"s_mul_i32 s57, s{blk}, 86\ns_add_u32 s57, s57, s41\ns_lshl_b32 s57, s57, 10")
        if base: a(f"s_add_u32 s57, s57, {base}")
        a(f"v_add_u32 v{dst}, s57, v{AL16}")
    a(f"s_mov_b32 s59, {5*4096}\ns_cmp_ge_u32 s24, 2\ns_cselect_b32 s59, 0x10000000, s59")
    a(f"""
    v_add_u32 v14, s41, v13
    v_lshlrev_b32 v14, 3, v14
    v_add_u32 v14, s39, v14
    v_lshrrev_b32 v15, 2, v14
    v_lshlrev_b32 v15, 7, v15
    v_and_b32 v14, 3, v14
    v_lshlrev_b32 v14, 3, v14
    s_mov_b32 s56, {WS_F1}
    v_add3_u32 v{AF1}, v14, v15, s56
    s_cmp_ge_u32 s24, 2
    s_mov_b32 s72, 0x3fffff
    s_cselect_b32 s72, 0x1fffff, s72
    s_mov_b32 s73, 0
    """)
    a(f"""
    s_lshr_b32 s56, s24, 1
    s_mul_i32 s56, s56, 7
    s_and_b32 s57, s24, 1
    s_mul_i32 s58, s57, 3
    s_add_u32 s56, s56, s58                   ; ct0
    s_cmp_eq_u32 s57, 1
    s_mov_b32 s74, 0xff
    s_cselect_b32 s74, 0x3ff, s74
    s_mov_b32 s75, 0
    s_lshl_b32 s57, s38, 4
    s_add_u32 s56, s56, s57
    s_lshl_b32 s56, s56, 7
    s_add_u32 s56, s56, {WS_FH}
    v_and_b32 v14, 1, v13
    v_lshlrev_b32 v14, 11, v14
    v_lshrrev_b32 v15, 1, v13
    v_lshlrev_b32 v15, 7, v15
    v_add3_u32 v{AFH}, v14, v15, s56
    """)
    a(f"""
    s_lshl_b32 s56, s39, 5
    s_lshl_b32 s57, s38, 2
    s_sub_u32 s57, s57, 32
    v_cmp_gt_u32 vcc, 32, v13
    v_mov_b32 v14, s57
    v_mov_b32 v15, s56
    v_cndmask_b32 v14, v14, v15, vcc
    v_add_u32 v14, v14, v13
    v_lshlrev_b32 v14, 7, v14
    v_add_u32 v{AF3}, {WS_F3}, v14
    s_mov_b32 s76, -1
    s_mov_b32 s77, 0xff
    """)
    a(f"""
    s_lshl_b32 s56, s60, 17
    s_lshl_b32 s57, s61, 6
    s_add_u32 s56, s56, s57
    s_add_u32 s56, s56, {WS_AT}
    v_lshrrev_b32 v14, 2, v13
    v_lshlrev_b32 v14, 12, v14
    v_and_b32 v15, 3, v13
    v_lshlrev_b32 v16, 4, v15
    v_add3_u32 v{AAT}, v14, v16, s56
    v_and_b32 v17, 31, v13                    ; token in tile
    s_lshl_b32 s56, s61, 8
    s_add_u32 s56, s56, {WS_G}
    v_lshlrev_b32 v14, 3, v17
    v_add_u32 v{AG}, s56, v14
    """)
    G2_ST = 49152
    if "wp" in X:
        a("s_mul_i32 s65, s24, 20480\ns_add_u32 s56, s65, 18432")
    else:
        a(f"s_lshl_b32 s56, s24, 11\ns_add_u32 s56, s56, {G2_ST}")
    a(f"""
    v_add_u32 v{AST}, s56, v{AL16}
    v_lshrrev_b32 v14, 5, v13
    v_lshlrev_b32 v14, 2, v14
    v_bfe_u32 v16, v13, 2, 2
    v_add_u32 v14, v14, v16
    v_lshlrev_b32 v14, 6, v14
    v_bfe_u32 v16, v13, 4, 1
    v_lshlrev_b32 v16, 5, v16
    v_lshlrev_b32 v15, 3, v15
    v_add3_u32 v14, v14, v16, v15
    v_add_u32 v{ATR}, s56, v14
    s_lshl_b32 s56, s61, 15
    s_lshl_b32 s57, s60, 6
    s_add_u32 s56, s56, s57
    v_lshlrev_b32 v14, 10, v17
    v_lshrrev_b32 v15, 5, v13
    v_lshlrev_b32 v15, 4, v15
    v_add3_u32 v{AOUT}, v14, v15, s56
    """)
    for i in (1, 2, 3):
        a(f"s_xor_b32 s56, s24, {i}\ns_mul_i32 s56, s56, {20480 if 'wp' in X else 12288}\ns_add_u32 s{65+i}, s56, {(i-1)*4096}")
    a("s_mul_i32 s69, s24, 12288")
    a(f"s_cmp_lg_u32 s29, 0\ns_cbranch_scc1 {lbl_idle}")

    if tim and "es" not in X: tim(a, 1)
    a.need(vm=[("W", 0), ("X", 0)])
    a("s_barrier")
    if tim and "es" not in X: tim(a, 2)
    for s in range(4): rd_x(0, s)
    for jj in range(6): rd_w(0, jj)
    a("s_setprio 2")
    WP = "wp" in X
    NU, FU = X_get(X, "nu", 9), X_get(X, "fu", 11 if WP else 12)
    REGW = list(range(12)) + [21]
    LDSW = list(range(12, 21))
    def wreg(s):
        i = REGW.index(s)
        if i < 5: return 216 + 8 * i
        if i < 8: return 16 + 8 * (i - 5)
        return 176 + 8 * (i - 8)
    cur = [None]
    def soff(s):
        so = (s >> 2) * 4096
        if s == 21: return "s59"
        if so == 0: return "0"
        if cur[0] != so:
            a(f"s_mov_b32 s64, {so}"); cur[0] = so
        return "s64"
    def ldw(s, k):
        r = wreg(s) + 4 * k
        sreg = soff(s)
        a.vmop(f"buffer_load_dwordx4 v[{r}:{r+3}], v{40+2*k}, s[{SWS}:{SWS+3}], {sreg} offen offset:{(s&3)*1024} sc1", ("w2", s, k))
    m0cur = [None]
    def ldw_lds(s, k):
        sreg = soff(s)
        m = k * 9216 + ((s >> 2) - 3) * 4096
        if m0cur[0] != m:
            a(f"s_add_u32 m0, s65, {m}"); m0cur[0] = m
        a.vmop(f"buffer_load_dwordx4 v{40+2*k}, s[{SWS}:{SWS+3}], {sreg} offen offset:{(s&3)*1024} sc1 lds", ("w2", s, k))
    early = [(s_, k_) for s_ in REGW[:8] for k_ in range(2)]
    W0U = X_get(X, "w0u", 13)
    for u in range(16):
        c, hb = u >> 1, u & 1
        for sp in range(2):
            S = 2 * u + sp
            sx = S & 3
            for jj in range(6):
                mat, j = jj & 1, jj >> 1
                lg = [("w", S, jj)]
                if jj == 0: lg.append(("x", c, sx))
                lg = [t_ for t_ in lg if t_ not in skl]
                if lg: a.need(lg=lg)
                d = ACC(mat, j)
                src_c = "0" if S == 0 else f"v[{d}:{d+15}]"
                a(f"v_mfma_f32_32x32x16_bf16 v[{d}:{d+15}], v[{WF(mat,j)}:{WF(mat,j)+3}], v[{XF(c&1,sx)}:{XF(c&1,sx)+3}], {src_c}")
                if sp == 1 and jj == 0 and u < 15:
                    XW = X_get(X, "xw", 0)
                    if u + 1 - XW >= 0: needvm(("W", u + 1 - XW))
                    a("s_barrier")
                if S + 1 < 32: rd_w(S + 1, jj)
                if sp == 0 and jj in (1, 3, 5) and u + 3 < 16:
                    dma_w(u + 3, jj >> 1)
                if hb == 0 and sp == 1 and jj in (1, 2, 3, 4) and c + 2 < 8:
                    if jj == 1:
                        a.need(lg=("x", c, 3))
                    dma_x(c + 2, jj - 1)
                if hb == 1 and sp == 0 and jj in (0, 2, 4) and c + 1 < 8:
                    if jj == 0 and (X_get(X, "xw", 0) < 2 or c < 1): needvm(("X", c + 1))
                    if jj == 0: rd_x(c + 1, 0); rd_x(c + 1, 1)
                    if jj == 2: rd_x(c + 1, 2)
                    if jj == 4: rd_x(c + 1, 3)
                if u == NU and sp == 1 and jj == 5:
                    a.vmop(f"global_load_dwordx2 v[{PV}:{PV+1}], v{VZ}, s[{DBG}:{DBG+1}] sc1", "non")
                if u == NU + 2 and sp == 1 and jj == 5:
                    nonce_get(a, "Pn", PV, NON, DBG, VZ, "non")
                if u == FU and sp == 1 and jj == 5:
                    a("s_mov_b64 exec, s[72:73]")
                    a.vmop(f"buffer_load_dwordx2 v[{PV}:{PV+1}], v{AF1}, s[{SWS}:{SWS+3}], 0 offen sc1", "f1")
                    a("s_mov_b64 exec, -1")
                if WP:
                    if u == W0U - 1 and sp == 1 and jj == 5:
                        spin_wait(a, "Pf1", AF1, PV, SWS, 72, NON, "f1")
                    if u >= W0U and jj in (1, 3, 5) and early:
                        ldw(*early.pop(0))
    if tim: tim(a, 3)
    if X_get(X, "p3p", 2) != 2: a(f"s_setprio {X_get(X, 'p3p', 2)}")
    if not WP: spin_wait(a, "Pf1", AF1, PV, SWS, 72, NON, "f1")
    if WP:
        while early: ldw(*early.pop(0))
        a("s_barrier")
        if tim and "es" in X: tim(a, 1)
        lds_list = [(s_, k_) for k_ in range(2) for s_ in LDSW]
        for _ in range(X_get(X, "d0", 0)): ldw_lds(*lds_list.pop(0))
    lbl_done = a.newlabel("G1done")
    HSC = "" if "sx" in X else " sc1"
    a("s_nop 7\ns_nop 3")
    for j in range(3):
        if j == 1:
            a(f"s_cmp_eq_u32 s25, 14\ns_cbranch_scc1 {lbl_done}")
        g, up = ACC(0, j), ACC(1, j)
        T = 160 if WP else 16
        for r in range(16):
            a(f"v_max_f32 v{g+r}, 0, v{g+r}")
        if "fe" in X:
            for r in range(16):
                a(f"v_mul_f32 v{g+r}, v{g+r}, v{up+r}")
        else:
            for r in range(16):
                a(f"v_cvt_pk_bf16_f32 v{g+r}, 0, v{g+r}")
                a(f"v_cvt_pk_bf16_f32 v{up+r}, 0, v{up+r}")
            for r in range(16):
                a(f"v_mul_f32 v{g+r}, v{g+r}, v{up+r}")
        for r in range(8):
            a(f"v_cvt_pk_bf16_f32 v{T+8*j+r}, v{g+2*r}, v{g+2*r+1}")
        for p in range(2):
            n = T + 8 * j + 4 * p
            a("s_nop 0")
            a(f"v_permlane32_swap_b32 v{n}, v{n+2}")
            a(f"v_permlane32_swap_b32 v{n+1}, v{n+3}")
            a("s_nop 0")
            off = (2 * j + p) * 1024
            so = "0"
            if off > 4095:
                a(f"s_mov_b32 s30, {off}"); so = "s30"; off = 0
            a.vmop(f"buffer_store_dwordx4 v[{n}:{n+3}], v11, s[{SH}:{SH+3}], {so} offen offset:{off}{HSC}", ("st",))
        for _ in range(X_get(X, "pad", 0)): a("s_nop 15")
        if WP and j == 0:
            for _ in range(min(X_get(X, "d1", 0), len(lds_list))): ldw_lds(*lds_list.pop(0))
    a(f"{lbl_done}:")
    if tim and "es" in X: tim(a, 2)
    if WP:
        gemm2_wp(a, tim, X, locals())
        return

    PF = 8
    ACC2 = lambda i: 64 + 16 * i
    FR = lambda b, k: 128 + (b * 4 + k) * 4
    cur = [None]
    def ld(s, k):
        so = (s >> 2) * 4096
        if s == 21:
            sreg = "s59"
        elif so == 0:
            sreg = "0"
        else:
            if cur[0] != so:
                a(f"s_mov_b32 s64, {so}"); cur[0] = so
            sreg = "s64"
        r = FR(s % PF, k)
        a.vmop(f"buffer_load_dwordx4 v[{r}:{r+3}], v{40+k}, s[{SWS}:{SWS+3}], {sreg} offen offset:{(s&3)*1024} sc1", ("f", s, k))
    lbl_j = a.newlabel("Pjoin")
    for s in range(PF):
        ld(s, 0); ld(s, 2)
    a(f"s_waitcnt vmcnt({2*PF})")
    a(f"v_mov_b32 v{PV}, s{NON}\nv_mov_b32 v{PV+1}, s{NON+1}\ns_mov_b64 exec, 1")
    a.vmop(f"buffer_store_dwordx2 v[{PV}:{PV+1}], v{AFHP}, s[{SWS}:{SWS+3}], 0 offen sc1", "fh")
    a("s_mov_b64 exec, -1")
    a(f"s_branch {lbl_j}")
    a(f"{lbl_idle}:")
    sv = (list(a.vm), a.vmdone, list(a.lg), a.lgdone)
    nonce_get(a, "Pi", PV, NON, DBG, VZ)
    spin_wait(a, "Pi1", AF1, PV, SWS, 72, NON)
    cur[0] = None
    for s in range(PF):
        ld(s, 0); ld(s, 2)
    a.vm, a.vmdone, a.lg, a.lgdone = sv
    cur[0] = None
    a(f"{lbl_j}:")
    if tim: tim(a, 4)
    a("s_setprio 2")
    spin_wait(a, "Pfh", AFH, PV, SWS, 74, NON)
    a.vmdone = len(a.vm)
    if tim: tim(a, 5)
    for s in range(PF):
        ld(s, 1); ld(s, 3)
    poll_at, chk_at = X_get(X, "pa", 14), X_get(X, "ca", 19)
    ATB = 16
    for s in range(22):
        b = s % PF
        W0, H0, W1, H1 = (FR(b, k) for k in range(4))
        nxt = s + PF < 22
        def mf(i, W, H):
            d = ACC2(i)
            c = "0" if s == 0 else f"v[{d}:{d+15}]"
            a(f"v_mfma_f32_32x32x16_bf16 v[{d}:{d+15}], v[{W}:{W+3}], v[{H}:{H+3}], {c}")
        if s < PF:
            a.need(vm=[("f", s, 1)]); mf(0, W0, H0); mf(1, W1, H0)
            a.need(vm=[("f", s, 3)]); mf(2, W0, H1)
            mf(3, W1, H1)
            if nxt:
                for k in (1, 3, 0, 2): ld(s + PF, k)
        else:
            a.need(vm=[("f", s, 0), ("f", s, 1), ("f", s, 2), ("f", s, 3)])
            mf(0, W0, H0)
            mf(1, W1, H0)
            mf(2, W0, H1)
            mf(3, W1, H1)
            if nxt:
                for k in (1, 3, 0, 2): ld(s + PF, k)
        if s == poll_at:
            a("s_mov_b64 exec, s[76:77]")
            a.vmop(f"buffer_load_dwordx2 v[{PV}:{PV+1}], v{AF3}, s[{SWS}:{SWS+3}], 0 offen sc1", "poll")
            a("s_mov_b64 exec, -1")
        if s == chk_at:
            if "nof3" not in X: spin_wait(a, "Pf3", AF3, PV, SWS, 76, NON, "poll")
            a.vmop(f"buffer_load_dwordx4 v[{ATB}:{ATB+3}], v{AAT}, s[{SWS}:{SWS+3}], 0 offen sc1", "at")
            a("s_mov_b32 s64, 65536"); cur[0] = 65536
            a.vmop(f"buffer_load_dwordx4 v[{ATB+4}:{ATB+7}], v{AAT}, s[{SWS}:{SWS+3}], s64 offen sc1", "at")
            a.vmop(f"buffer_load_dwordx2 v[{GV}:{GV+1}], v{AG}, s[{SWS}:{SWS+3}], 0 offen sc1", "g")
    if tim: tim(a, 6)
    for i in (1, 2, 3):
        a(f"v_add_u32 v{3+i}, s{65+i}, v{AL16}")
    a(f"v_add_u32 v7, s69, v{AL16}")
    for i in (1, 2, 3):
        for q in range(4):
            r = ACC2(i) + 4 * q
            a.lgop(f"ds_write_b128 v{3+i}, v[{r}:{r+3}] offset:{q*1024}", "rw")
    a.need(vm="at")
    a.lgop(f"ds_write_b128 v{AST}, v[{ATB}:{ATB+3}]", "sa")
    a.lgop(f"ds_write_b128 v{AST}, v[{ATB+4}:{ATB+7}] offset:1024", "sa")
    a.drain(vm=False, lg=True)
    a("s_barrier")
    XR = 128
    for i in range(3):
        for q in range(4):
            r = XR + 16 * i + 4 * q
            a.lgop(f"ds_read_b128 v[{r}:{r+3}], v7 offset:{i*4096 + q*1024}", ("p", i))
    AV = 176
    for q in range(4):
        a.lgop(f"ds_read_b64_tr_b16 v[{AV+2*q}:{AV+2*q+1}], v{ATR} offset:{q*512}", "a")
    A0 = ACC2(0)
    for i in range(3):
        a.need(lg=("p", i))
        for r in range(16):
            a(f"v_add_f32 v{A0+r}, v{A0+r}, v{XR+16*i+r}")
    a.need(lg="a", vm="g")
    U = 184
    for q in range(4):
        for k in range(2):
            a(f"v_lshlrev_b32 v{U+4*q+2*k}, 16, v{AV+2*q+k}")
            a(f"v_and_b32 v{U+4*q+2*k+1}, 0xffff0000, v{AV+2*q+k}")
    for r in range(16):
        a(f"v_cvt_pk_bf16_f32 v{A0+r}, 0, v{A0+r}")
    for r in range(16):
        a(f"v_mul_f32 v{U+r}, v{GV}, v{U+r}")
    for r in range(16):
        a(f"v_mul_f32 v{A0+r}, v{GV+1}, v{A0+r}")
    for r in range(16):
        a(f"v_cvt_pk_bf16_f32 v{U+r}, 0, v{U+r}")
    for r in range(16):
        a(f"v_cvt_pk_bf16_f32 v{A0+r}, 0, v{A0+r}")
    for r in range(16):
        a(f"v_add_f32 v{U+r}, v{U+r}, v{A0+r}")
    P = 200
    for k in range(8):
        a(f"v_cvt_pk_bf16_f32 v{P+k}, v{U+2*k}, v{U+2*k+1}")
    for pr in range(2):
        n = P + 4 * pr
        a(f"v_permlane32_swap_b32 v{n}, v{n+2}")
        a(f"v_permlane32_swap_b32 v{n+1}, v{n+3}")
        a.vmop(f"buffer_store_dwordx4 v[{n}:{n+3}], v{AOUT}, s[{SO}:{SO+3}], 0 offen offset:{pr*32}", "st")

def gemm2_wp(a, tim, X, L):
    g = L
    SWS, SO, NON_, PV, GV = g["SWS"], g["SO"], NON, g["PV"], g["GV"]
    AFHP, AF1, AFH, AF3, AAT, AG, AL16, ATR, AOUT, VZ, DBG = (g[k] for k in "AFHP AF1 AFH AF3 AAT AG AL16 ATR AOUT VZ DBG".split())
    REGW, LDSW, wreg, ldw, ldw_lds, soff, cur, m0cur, lbl_idle = (g[k] for k in "REGW LDSW wreg ldw ldw_lds soff cur m0cur lbl_idle".split())
    ACC2 = lambda i: 64 + 16 * i
    lbl_j = a.newlabel("Pjoin")
    cur[0] = None
    late = [(ldw, s_, k_) for s_ in REGW[8:] for k_ in range(2)] + [(ldw_lds, s_, k_) for (s_, k_) in g["lds_list"]]
    K1 = min(X_get(X, "k1", 14), len(late))
    for f_, s_, k_ in late[:K1]: f_(s_, k_)
    a(f"s_waitcnt vmcnt({K1})")
    if tim and "es" in X: tim(a, 4)
    a(f"v_mov_b32 v{PV}, s{NON}\nv_mov_b32 v{PV+1}, s{NON+1}\ns_mov_b64 exec, 1")
    a.vmop(f"buffer_store_dwordx2 v[{PV}:{PV+1}], v{AFHP}, s[{SWS}:{SWS+3}], 0 offen{'' if 'sx' in X else ' sc1'}", "fh")
    a("s_mov_b64 exec, -1")
    for f_, s_, k_ in late[K1:]: f_(s_, k_)
    a(f"s_branch {lbl_j}")
    a(f"{lbl_idle}:")
    sv = (list(a.vm), a.vmdone, list(a.lg), a.lgdone)
    nonce_get(a, "Pi", PV, NON, DBG, VZ)
    spin_wait(a, "Pi1", AF1, PV, SWS, 72, NON)
    cur[0] = None; m0cur[0] = None
    for s_ in REGW:
        for k_ in range(2): ldw(s_, k_)
    for k_ in range(2):
        for s_ in LDSW: ldw_lds(s_, k_)
    a.vm, a.vmdone, a.lg, a.lgdone = sv
    cur[0] = None
    a(f"{lbl_j}:")
    if tim and "es" not in X: tim(a, 4)
    a(f"s_setprio {X_get(X, 'g2p', 2)}")
    a(f"v_add_u32 v7, s65, v{AL16}")
    spin_wait(a, "Pfh", AFH, PV, SWS, 74, NON)
    a.vmdone = len(a.vm)
    if tim: tim(a, 5)
    HD = X_get(X, "hd", 6)
    free = []
    hslot = {}
    def ldh(s):
        r = hslot[s]
        for k in range(2):
            sreg = soff(s)
            a.vmop(f"buffer_load_dwordx4 v[{r+4*k}:{r+4*k+3}], v{41+2*k}, s[{SWS}:{SWS+3}], {sreg} offen offset:{(s&3)*1024} sc1", ("h", s, k))
    for s in range(HD):
        hslot[s] = 128 + 8 * s; ldh(s)
    nexth = HD
    wslot = {s: wreg(s) for s in REGW}
    def rdw(s):
        r = wslot[s] = free.pop(0)
        for k in range(2):
            a.lgop(f"ds_read_b128 v[{r+4*k}:{r+4*k+3}], v7 offset:{k*9216 + (s-12)*1024}", ("w", s))
    poll_at, chk_at = X_get(X, "pa", 14), X_get(X, "ca", 19)
    ATB = None
    for s in range(22):
        W0, W1 = wslot[s], wslot[s] + 4
        H0, H1 = hslot[s], hslot[s] + 4
        def mf(i, W, H):
            d = ACC2(i)
            c = "0" if s == 0 else f"v[{d}:{d+15}]"
            a(f"v_mfma_f32_32x32x16_bf16 v[{d}:{d+15}], v[{W}:{W+3}], v[{H}:{H+3}], {c}")
        if s in LDSW: a.need(lg=("w", s))
        a.need(vm=[("h", s, 0)]); mf(0, W0, H0); mf(1, W1, H0)
        a.need(vm=[("h", s, 1)]); mf(2, W0, H1); mf(3, W1, H1)
        free += [wslot[s], hslot[s]]
        if s + 2 in LDSW: rdw(s + 2)
        while nexth < 22 and len(free) > (1 if (s + 3 in LDSW) else 0):
            hslot[nexth] = free.pop(0); ldh(nexth); nexth += 1
        if s == poll_at:
            a("s_mov_b64 exec, s[76:77]")
            a.vmop(f"buffer_load_dwordx2 v[{PV}:{PV+1}], v{AF3}, s[{SWS}:{SWS+3}], 0 offen sc1", "poll")
            a("s_mov_b64 exec, -1")
        if s == chk_at:
            ATB = free.pop(0)
            if "nof3" not in X: spin_wait(a, "Pf3", AF3, PV, SWS, 76, NON, "poll")
            a.vmop(f"buffer_load_dwordx4 v[{ATB}:{ATB+3}], v{AAT}, s[{SWS}:{SWS+3}], 0 offen sc1", "at")
            a("s_mov_b32 s64, 65536"); cur[0] = 65536
            a.vmop(f"buffer_load_dwordx4 v[{ATB+4}:{ATB+7}], v{AAT}, s[{SWS}:{SWS+3}], s64 offen sc1", "at")
            a.vmop(f"buffer_load_dwordx2 v[{GV}:{GV+1}], v{AG}, s[{SWS}:{SWS+3}], 0 offen sc1", "g")
    if tim: tim(a, 6)
    for i in (1, 2, 3):
        a(f"v_add_u32 v{3+i}, s{65+i}, v{AL16}")
    for i in (1, 2, 3):
        for q in range(4):
            r = ACC2(i) + 4 * q
            a.lgop(f"ds_write_b128 v7, v[{r}:{r+3}] offset:{(i-1)*4096 + q*1024}", "rw")
    a.need(vm="at")
    a.lgop(f"ds_write_b128 v7, v[{ATB}:{ATB+3}] offset:18432", "sa")
    a.lgop(f"ds_write_b128 v7, v[{ATB+4}:{ATB+7}] offset:19456", "sa")
    a.drain(vm=False, lg=True)
    a("s_barrier")
    XR = 128
    for i in range(3):
        for q in range(4):
            r = XR + 16 * i + 4 * q
            a.lgop(f"ds_read_b128 v[{r}:{r+3}], v{4+i} offset:{q*1024}", ("p", i))
    AV = 176
    for q in range(4):
        a.lgop(f"ds_read_b64_tr_b16 v[{AV+2*q}:{AV+2*q+1}], v{ATR} offset:{q*512}", "a")
    A0 = ACC2(0)
    FE = "fe" in X
    for i in range(3):
        a.need(lg=("p", i))
        if FE:
            for r in range(0, 16, 2):
                a(f"v_pk_add_f32 v[{A0+r}:{A0+r+1}], v[{A0+r}:{A0+r+1}], v[{XR+16*i+r}:{XR+16*i+r+1}]")
        else:
            for r in range(16):
                a(f"v_add_f32 v{A0+r}, v{A0+r}, v{XR+16*i+r}")
    a.need(lg="a", vm="g")
    U = 184
    for q in range(4):
        for k in range(2):
            a(f"v_lshlrev_b32 v{U+4*q+2*k}, 16, v{AV+2*q+k}")
            a(f"v_and_b32 v{U+4*q+2*k+1}, 0xffff0000, v{AV+2*q+k}")
    if FE:
        for r in range(0, 16, 2):
            a(f"v_pk_mul_f32 v[{U+r}:{U+r+1}], v[{U+r}:{U+r+1}], v[{GV}:{GV+1}] op_sel:[0,0] op_sel_hi:[1,0]")
        for r in range(0, 16, 2):
            a(f"v_pk_fma_f32 v[{U+r}:{U+r+1}], v[{A0+r}:{A0+r+1}], v[{GV}:{GV+1}], v[{U+r}:{U+r+1}] op_sel:[0,1,0] op_sel_hi:[1,1,1]")
    else:
        for r in range(16):
            a(f"v_cvt_pk_bf16_f32 v{A0+r}, 0, v{A0+r}")
        for r in range(16):
            a(f"v_mul_f32 v{U+r}, v{GV}, v{U+r}")
        for r in range(16):
            a(f"v_mul_f32 v{A0+r}, v{GV+1}, v{A0+r}")
        for r in range(16):
            a(f"v_cvt_pk_bf16_f32 v{U+r}, 0, v{U+r}")
        for r in range(16):
            a(f"v_cvt_pk_bf16_f32 v{A0+r}, 0, v{A0+r}")
        for r in range(16):
            a(f"v_add_f32 v{U+r}, v{U+r}, v{A0+r}")
    P = 200
    for k in range(8):
        a(f"v_cvt_pk_bf16_f32 v{P+k}, v{U+2*k}, v{U+2*k+1}")
    for pr in range(2):
        n = P + 4 * pr
        a(f"v_permlane32_swap_b32 v{n}, v{n+2}")
        a(f"v_permlane32_swap_b32 v{n+1}, v{n+3}")
        a.vmop(f"buffer_store_dwordx4 v[{n}:{n+3}], v{AOUT}, s[{SO}:{SO+3}], 0 offen offset:{pr*32}", "st")

def X_get(X, key, default):
    for x in X:
        if x.startswith(key + "="): return int(x.split("=")[1])
    return default
```

```python
from gen import *
TIM_WS = 0x1000000
class Tim:
    TB = 78
    def __init__(self, launch, rt=True, hw=False):
        self.launch = launch; self.rt = rt; self.hw = hw
    def __call__(self, a, k):
        op = "s_memrealtime" if self.rt else "s_memtime"
        a(f"{op} s[{self.TB+2*k}:{self.TB+2*k+1}]")
    def final(self, a, k, ws_lo, ws_hi, idreg="s2"):
        self(a, k)
        a("s_waitcnt lgkmcnt(0)")
        if self.hw:
            a(f"s_getreg_b32 s{self.TB+2}, hwreg(HW_REG_HW_ID)\ns_getreg_b32 s96, hwreg(HW_REG_XCC_ID)\ns_and_b32 s{self.TB+2}, s{self.TB+2}, 0xffff\ns_lshl_b32 s96, s96, 24\ns_or_b32 s{self.TB+2}, s{self.TB+2}, s96")
        a(f"s_add_u32 s96, s{ws_lo}, {TIM_WS + self.launch * 0x20000}")
        a(f"s_addc_u32 s97, s{ws_hi}, 0")
        a("s_mov_b32 s98, 0x20000\ns_mov_b32 s99, 0x00020000")
        a("s_mov_b64 exec, -1")
        a(f"v_lshrrev_b32 v240, 6, v0\nv_lshlrev_b32 v240, 5, v240\ns_lshl_b32 s75, {idreg}, 7\nv_add_u32 v240, s75, v240")
        for i in range(8):
            a(f"v_mov_b32 v{242+i}, s{self.TB+2*i}")
        a("s_mov_b64 exec, 1")
        a("buffer_store_dwordx4 v[242:245], v240, s[96:99], 0 offen")
        a("buffer_store_dwordx4 v[246:249], v240, s[96:99], 0 offen offset:16")
        a("s_mov_b64 exec, -1")
```

```python
import sys
sys.path.insert(0, "dev")
sys.path.insert(0, "f")
from gen import *
from kgen import LOG2E, LOG2E_LO, LN2, dpp_sum, dpp_sum2
from pp import spin_wait, nonce_get, X_get, WS_F1, WS_F3

KT_ROW = 1056
KT0 = 1056
KT_CH = 20 * KT_ROW
UB = 42240

def qrole(a, tim=None, X=()):
    SU, SWD, SWS = 32, 36, 48
    DBG, WSP, NON, CNT = 40, 42, 44, 46
    UTST, WFST = 65536, 73728
    GU, GW0 = 240, 248
    NV, PV = 252, 254
    UR, WR = 224, 232
    a("""
    s_load_dwordx16 s[4:19], s[0:1], 0
    s_load_dwordx2 s[20:21], s[0:1], 64
    s_load_dwordx4 s[24:27], s[0:1], 96
    s_load_dwordx4 s[40:43], s[0:1], 120
    s_load_dwordx4 s[52:55], s[0:1], 80
    s_and_b32 s3, s2, 255
    """)
    GD = "gd" in X
    if "gx" in X:
        a("s_and_b32 s56, s3, 7\ns_lshl_b32 s56, s56, 5\ns_lshr_b32 s3, s3, 3\ns_or_b32 s3, s3, s56")
    a("""
    v_lshrrev_b32 v22, 6, v0
    v_and_b32 v1, 63, v0
    s_lshl_b32 s56, s3, 9
    v_readfirstlane_b32 s28, v22
    v_lshlrev_b32 v23, 1, v0
    v_add_u32 v23, s56, v23            ; (id2*256+tid)*2
    v_lshrrev_b32 v24, 7, v0
    v_lshlrev_b32 v24, 1, v24
    s_lshl_b32 s56, s3, 2
    v_add_u32 v24, s56, v24            ; ch*2
    s_and_b32 s29, s28, 1
    """)
    a("""
    s_lshl_b32 s56, s3, 3
    s_lshl_b32 s57, s28, 1
    s_add_u32 s30, s56, s57            ; token0
    s_lshl_b32 s56, s30, 10
    v_lshlrev_b32 v25, 4, v1           ; lane*16
    v_add_u32 v26, s56, v25
    """)
    a("""
    s_lshr_b32 s58, s3, 4              ; tokblk
    s_and_b32 s59, s3, 15              ; chgrp
    s_lshl_b32 s56, s58, 7
    s_add_u32 s56, s56, s28
    s_lshl_b32 s56, s56, 10
    s_lshl_b32 s57, s59, 6
    s_add_u32 s56, s56, s57
    v_lshrrev_b32 v27, 2, v1
    v_lshlrev_b32 v27, 12, v27
    v_and_b32 v28, 3, v1
    v_lshlrev_b32 v28, 4, v28
    v_add3_u32 v27, v27, v28, s56
    """)
    a("""
    s_lshl_b32 s56, s3, 2
    s_add_u32 s56, s56, s28
    s_lshr_b32 s60, s56, 3             ; ks
    s_and_b32 s61, s56, 7              ; cb64
    s_lshl_b32 s56, s60, 14
    s_lshl_b32 s57, s61, 7
    s_add_u32 s56, s56, s57
    v_lshrrev_b32 v28, 3, v1
    v_lshlrev_b32 v28, 10, v28
    v_and_b32 v29, 7, v1
    v_lshlrev_b32 v29, 4, v29
    v_add3_u32 v28, v28, v29, s56
    s_lshl_b32 s62, s28, 11            ; w*2048
    s_waitcnt lgkmcnt(0)
    """)
    for i, p in enumerate((6, 8, 10, 12, 14, 16)):
        a.vmop(f"global_load_ushort v{2+i}, v23, s[{p}:{p+1}]", "in")
    a.vmop("global_load_ushort v8, v24, s[18:19]", "in")
    a.vmop("global_load_ushort v9, v24, s[20:21]", "in")
    srd_from(a, SU, 4, 5, 2048 * 1024)
    srd_from(a, SWD, 24, 25, 1376 * 1024)
    def gather():
        a("s_add_u32 s56, s28, 2016\ns_lshl_b32 s56, s56, 10\ns_lshl_b32 s57, s3, 2\ns_add_u32 s56, s56, s57")
        a("v_lshlrev_b32 v20, 15, v1\nv_sub_u32 v20, s56, v20")
        for k in range(8):
            if k < 7:
                a(f"s_mov_b32 s56, {(7-k)*4096}")
                a.vmop(f"buffer_load_dword v{UR+k}, v20, s[{SU}:{SU+3}], s56 offen", "u")
            else:
                a.vmop(f"buffer_load_dword v{UR+k}, v20, s[{SU}:{SU+3}], 0 offen", "u")
    GP = X_get(X, "gp", 1)
    if GD and GP == 0: gather()
    if not GD:
        a(f"s_add_u32 m0, s62, {UTST}")
        a("s_mov_b32 s56, 65536")
        a.vmop(f"buffer_load_dwordx4 v27, s[{SU}:{SU+3}], 0 offen lds", "ut")
        a(f"s_add_u32 m0, s62, {UTST + 1024}")
        a("s_nop 0")
        a.vmop(f"buffer_load_dwordx4 v27, s[{SU}:{SU+3}], s56 offen lds", "ut")
    a(f"s_add_u32 m0, s62, {WFST}")
    a("s_mov_b32 s56, 8192")
    a.vmop(f"buffer_load_dwordx4 v28, s[{SWD}:{SWD+3}], 0 offen lds", "wf")
    a(f"s_add_u32 m0, s62, {WFST + 1024}")
    a("s_nop 0")
    a.vmop(f"buffer_load_dwordx4 v28, s[{SWD}:{SWD+3}], s56 offen lds", "wf")
    a.vmop(f"global_load_dwordx4 v[{GU}:{GU+3}], v26, s[4:5]", "g")
    a.vmop(f"global_load_dwordx4 v[{GU+4}:{GU+7}], v26, s[4:5] offset:1024", "g")
    a.vmop(f"global_load_dwordx4 v[{GW0}:{GW0+3}], v25, s[26:27]", "g")
    if GD and GP == 1: gather()
    srd_from(a, SWS, WSP, WSP + 1, WS_END)
    a(f"""
    v_lshrrev_b32 v10, 4, v1           ; g
    v_lshlrev_b32 v11, 3, v10
    v_bfe_u32 v12, v1, 2, 2            ; r
    v_add_u32 v11, v11, v12
    v_sub_u32 v11, 27, v11
    v_lshlrev_b32 v11, 6, v11
    v_and_b32 v13, 3, v1
    v_lshlrev_b32 v13, 3, v13          ; c*8
    s_add_u32 s56, s62, {UTST}
    v_add3_u32 v14, v11, v13, s56
    v_lshrrev_b32 v11, 5, v1
    v_lshlrev_b32 v11, 3, v11
    v_add_u32 v11, v11, v12
    v_lshlrev_b32 v11, 7, v11
    v_and_b32 v15, 1, v10
    v_lshlrev_b32 v15, 5, v15
    v_add3_u32 v11, v11, v15, v13
    s_add_u32 s56, s62, {WFST}
    v_add_u32 v15, s56, v11
    s_lshl_b32 s56, s58, 2
    s_add_u32 s56, s56, s28
    s_lshl_b32 s56, s56, 9
    s_lshl_b32 s57, s59, 5
    s_add_u32 s56, s56, s57
    s_lshl_b32 s56, s56, 6
    s_add_u32 s56, s56, {WS_UT}
    v_and_b32 v16, 15, v1
    v_lshlrev_b32 v16, 6, v16
    v_lshlrev_b32 v17, 4, v10
    v_add3_u32 v16, v16, v17, s56
    s_mul_i32 s56, s61, 172
    s_add_u32 s56, s56, s60
    s_lshl_b32 s56, s56, 10
    s_add_u32 s56, s56, {WS_WF}
    s_cmp_ge_u32 s60, 86
    s_cselect_b32 s64, 0x10000000, s56
    s_add_u32 s65, s64, 88064
    """)
    a(f"""
    s_lshl_b32 s56, s3, 7
    s_lshl_b32 s57, s28, 3
    s_add_u32 s56, s56, s57
    s_add_u32 s56, s56, {WS_F1}
    v_mov_b32 v17, s56
    s_lshr_b32 s56, s3, 4
    s_lshl_b32 s56, s56, 7
    s_add_u32 s56, s56, {WS_F1}
    v_lshrrev_b32 v18, 2, v1
    v_lshlrev_b32 v18, 11, v18
    v_and_b32 v19, 3, v1
    v_lshlrev_b32 v19, 3, v19
    v_add3_u32 v18, v18, v19, s56
    v_mov_b32 v19, 0
    s_mov_b64 s[66:67], -1
    """)
    a(f"""
    s_lshr_b32 s31, s28, 1                    ; cl
    s_lshl_b32 s47, s3, 1
    s_add_u32 s47, s47, s31                   ; ch
    """)
    if not GD: a(f"""
    v_lshrrev_b32 v20, 2, v1
    v_sub_u32 v20, 15, v20
    v_lshlrev_b32 v20, 17, v20
    v_and_b32 v21, 3, v1
    v_lshlrev_b32 v21, 4, v21
    s_lshl_b32 s56, s29, 16
    s_lshl_b32 s57, s47, 6
    s_add_u32 s56, s56, s57
    s_add_u32 s56, s56, {WS_UT}
    v_add3_u32 v20, v20, v21, s56
    """)

    L2H = X_get(X, "l2", -99)
    if L2H != -99:
        a("""
        s_lshr_b32 s56, s3, 3                     ; j
        s_cmp_ge_u32 s56, 16
        s_cselect_b32 s52, s54, s52
        s_cselect_b32 s53, s55, s53
        s_mov_b32 s54, 1409024
        s_mov_b32 s55, 0x00020000
        s_and_b32 s57, s56, 15
        s_lshl_b32 s57, s57, 3
        s_add_u32 s57, s57, 96
        v_lshrrev_b32 v10, 5, v0
        v_add_u32 v10, s57, v10
        v_mul_u32_u24 v10, 2752, v10
        v_and_b32 v11, 31, v0
        s_and_b32 s57, s3, 1
        s_mul_i32 s58, s57, 1536
        s_cmp_eq_u32 s57, 0
        s_cselect_b32 s57, 24, 19
        v_lshlrev_b32 v12, 6, v11
        v_add3_u32 v12, v12, v10, s58
        v_cmp_gt_u32 vcc, s57, v11
        v_mov_b32 v10, 0x8000000
        v_cndmask_b32 v12, v10, v12, vcc
        s_bfe_u32 s57, s3, 0x20001                ; x>>1
        s_lshl_b32 s57, s57, 19
        s_lshl_b32 s58, s56, 14                   ; j*16 rows*1024
        s_add_u32 s57, s57, s58
        v_lshrrev_b32 v11, 4, v0
        v_lshlrev_b32 v11, 10, v11
        v_and_b32 v13, 15, v0
        v_cmp_le_u32 vcc, 4, v13
        v_lshlrev_b32 v13, 6, v13
        v_add3_u32 v13, v13, v11, s57
        v_cndmask_b32 v13, v10, v13, vcc
        """)
    def l2pf():
        a.vmop("buffer_load_dword v28, v12, s[52:55], 0 offen", "l2")
        a.vmop(f"buffer_load_dword v28, v13, s[{SU}:{SU+3}], 0 offen", "l2")
        for i in (1, 2, 3):
            a(f"s_mov_b32 s56, {i*128*2752}")
            a.vmop("buffer_load_dword v28, v12, s[52:55], s56 offen", "l2")

    Q = lambda q: (32 + 2 * q, 33 + 2 * q)
    T0 = lambda c: (64 + 2 * c, 65 + 2 * c)
    T1 = lambda c: (96 + 2 * c, 97 + 2 * c)
    T2 = lambda c: (128 + 2 * c, 129 + 2 * c)
    KE = (160, 161)
    E1, E64, E512, E128, E192, E256, E2, E3 = [(162 + 2 * i, 163 + 2 * i) for i in range(8)]
    E4 = Q(1)
    tcnt = [0]
    def cmul(d, x, y):
        t = 178 + 2 * (tcnt[0] % 4); tcnt[0] += 1
        assert x[0] % 2 == 0 and y[0] % 2 == 0 and d[0] % 2 == 0 and x[1] == x[0] + 1 and y[1] == y[0] + 1 and d[1] == d[0] + 1
        if "nopk" in X:
            a(f"v_mul_f32 v{t}, v{x[1]}, v{y[1]}")
            a(f"v_mul_f32 v{t+1}, v{x[1]}, v{y[0]}")
            a(f"v_fma_f32 v{d[0]}, v{x[0]}, v{y[0]}, -v{t}")
            a(f"v_fma_f32 v{d[1]}, v{x[0]}, v{y[1]}, v{t+1}")
            return
        a(f"v_pk_mul_f32 v[{t}:{t+1}], v[{x[0]}:{x[1]}], v[{y[0]}:{y[1]}] op_sel:[1,1] op_sel_hi:[1,0]")
        pend.append(f"v_pk_fma_f32 v[{d[0]}:{d[1]}], v[{x[0]}:{x[1]}], v[{y[0]}:{y[1]}], v[{t}:{t+1}] op_sel:[0,0,0] op_sel_hi:[0,1,1] neg_lo:[0,0,1]")
        a(pend.pop(0))
    pend = []
    PK = lambda g, part: 192 + (g * 2 + part) * 4 if g < 4 else 192 + ((g - 4) * 2 + part) * 4
    a("""
    v_and_b32 v30, 127, v0
    v_lshlrev_b32 v30, 4, v30
    v_lshrrev_b32 v31, 7, v0
    v_lshlrev_b32 v31, 15, v31
    v_add_u32 v30, v30, v31
    v_xor_b32 v31, 64, v30
    """)
    def put_group(g, cols, negim):
        if g >= 4:
            a.need(lg=("tw", g - 4))
        for part in range(2):
            for i in range(4):
                x, y = cols[2 * i][part], cols[2 * i + 1][part]
                n = "-" if (negim and part == 1) else ""
                a(f"v_cvt_pk_bf16_f32 v{PK(g,part)+i}, {n}v{x}, {n}v{y}")
            p = PK(g, part)
            a.lgop(f"ds_write_b128 v{30 + (g & 1)}, v[{p}:{p+3}] offset:{g*4096 + part*2048}", ("tw", g))

    def prep_rd():
        a.need(vm="wf")
        for cg in range(0 if GD else 2):
            a.lgop(f"ds_read_b64_tr_b16 v[{UR+4*cg}:{UR+4*cg+1}], v14 offset:{256 + cg*32}", "utr")
            a.lgop(f"ds_read_b64_tr_b16 v[{UR+4*cg+2}:{UR+4*cg+3}], v14 offset:{cg*32}", "utr")
        for h in range(2):
            a.lgop(f"ds_read_b64_tr_b16 v[{WR+4*h}:{WR+4*h+1}], v15 offset:{h*64}", "wtr")
            a.lgop(f"ds_read_b64_tr_b16 v[{WR+4*h+2}:{WR+4*h+3}], v15 offset:{h*64 + 512}", "wtr")
    def prep_st():
        if not GD:
            a.need(lg="utr")
            a.vmop(f"buffer_store_dwordx4 v[{UR}:{UR+3}], v16, s[{SWS}:{SWS+3}], 0 offen sc1", "st")
            a.vmop(f"buffer_store_dwordx4 v[{UR+4}:{UR+7}], v16, s[{SWS}:{SWS+3}], 0 offen offset:1024 sc1", "st")
        a.need(lg="wtr")
        a.vmop(f"buffer_store_dwordx4 v[{WR}:{WR+3}], v25, s[{SWS}:{SWS+3}], s64 offen sc1", "st")
        a.vmop(f"buffer_store_dwordx4 v[{WR+4}:{WR+7}], v25, s[{SWS}:{SWS+3}], s65 offen sc1", "st")
        a.vmop(f"global_load_dwordx2 v[{NV}:{NV+1}], v19, s[{DBG}:{DBG+1}] sc1", "non")
    def prep_flag(va=17, vz=19):
        nonce_get(a, "Qn", NV, NON, DBG, vz, "non", cnt=CNT)
        a.need(vm="st")
        a(f"v_mov_b32 v{NV}, s{NON}\nv_mov_b32 v{NV+1}, s{NON+1}\ns_mov_b64 exec, 1")
        a.vmop(f"buffer_store_dwordx2 v[{NV}:{NV+1}], v{va}, s[{SWS}:{SWS+3}], 0 offen sc1", "f1")
        a("s_mov_b64 exec, -1")

    PR, PS, PFL = X_get(X, "pr", 0), X_get(X, "ps", 1), X_get(X, "pf", 5)
    QP, QM = X_get(X, "qp", 0), X_get(X, "qm", 0)
    QX = X_get(X, "qx", 0)
    PD = X_get(X, "pd", PFL)
    def hook(g):
        if g == PR: prep_rd()
        if g == PS: prep_st()
        if GD and GP == 2 and g == PS: gather()
        if g == L2H: l2pf()
        if g == PFL:
            prep_flag()
            if GD and GP == 3: gather()
            if tim and "qs" in X: tim(a, 1)
            if QX == 1: a("s_waitcnt vmcnt(0)\ns_endpgm")
        if g == PD and QP != QM: a(f"s_setprio {QM}")
    if QP: a(f"s_setprio {QP}")
    if tim and "qs" not in X: tim(a, 1)
    a.need(vm="in")
    if tim and "qs" not in X: tim(a, 2)
    hook(-3)
    DT, LR, REV = 22, 23, 24
    a(f"""
    v_lshlrev_b32 v8, 16, v8
    s_mov_b32 s56, {LOG2E}
    s_mov_b32 s57, {LOG2E_LO}
    s_mov_b32 s63, {LN2}
    v_mul_f32 v186, s56, v8
    v_exp_f32 v187, v186
    v_fma_f32 v188, v8, s56, -v186
    v_fma_f32 v188, v8, s57, v188
    v_mul_f32 v188, s63, v188
    v_fma_f32 v187, v187, v188, v187
    """)
    for i in range(6):
        a(f"v_lshlrev_b32 v{2+i}, 16, v{2+i}")
    a(f"v_cvt_pk_bf16_f32 v{DT}, 0, v187")
    a("v_lshlrev_b32 v9, 16, v9")
    a(f"""
    v_mul_f32 v2, v{DT}, v2
    v_mul_f32 v3, v{DT}, v3
    v_mul_f32 v4, v{DT}, v4
    v_mul_f32 v5, v{DT}, v5
    v_mul_f32 v{LR}, s56, v2
    v_mul_f32 v{REV}, 0.15915494, v3
    """)
    def anchor(E, L, t):
        Lf = {1: None, 4: "4.0", 64: "0x42800000", 512: "0x44000000"}[L]
        if Lf is None:
            a(f"v_exp_f32 v{t}, v{LR}")
            a(f"v_fract_f32 v{t+1}, v{REV}")
        else:
            a(f"v_mul_f32 v{t}, {Lf}, v{LR}")
            a(f"v_mul_f32 v{t+1}, {Lf}, v{REV}")
            a(f"v_exp_f32 v{t}, v{t}")
            a(f"v_fract_f32 v{t+1}, v{t+1}")
    def anchor2(E, t):
        a(f"v_cos_f32 v{E[0]}, v{t+1}")
        a(f"v_sin_f32 v{E[1]}, v{t+1}")
    def anchor3(E, t):
        a(f"v_mul_f32 v{E[0]}, v{t}, v{E[0]}")
        a(f"v_mul_f32 v{E[1]}, v{t}, v{E[1]}")
    hook(-2)
    lst = [(E4, 4, 186), (E64, 64, 188), (E1, 1, 190), (E512, 512, 26)]
    for E, L, t in lst: anchor(E, L, t)
    cmul(T0(0), (6, 7), (4, 5))
    for E, L, t in lst: anchor2(E, t)
    a("s_nop 0")
    for E, L, t in lst: anchor3(E, t)
    a(f"v_mov_b32 v{Q(0)[0]}, 1.0\nv_mov_b32 v{Q(0)[1]}, 0")
    cmul(Q(2), E4, E4)
    cmul(E128, E64, E64)
    cmul(Q(3), Q(2), E4)
    cmul(E2, E1, E1)
    cmul(Q(4), Q(2), Q(2))
    cmul(E192, E128, E64)
    cmul(E256, E128, E128)
    cmul(E3, E2, E1)
    hook(-1)
    for q in range(5, 8): cmul(Q(q), Q(4), Q(q - 4))
    cmul(Q(8), Q(4), Q(4))
    put_group(0, [Q(q) for q in range(8)], True); hook(0)
    for q in range(9, 16): cmul(Q(q), Q(8), Q(q - 8))
    put_group(1, [Q(q) for q in range(8, 16)], True); hook(1)
    cmul(T0(4), T0(0), E1); cmul(T0(8), T0(0), E2); cmul(T0(12), T0(0), E3)
    cmul(T1(8), T0(0), E512)
    for b in range(4):
        for p, E in ((1, E64), (2, E128), (3, E192)):
            cmul(T0(4 * b + p), T0(4 * b), E)
        cmul(T1(9 + b), T1(8 + b), E64) if b < 3 else None
        if b == 1: put_group(2, [T0(c) for c in range(8)], False); hook(2)
    put_group(3, [T0(c) for c in range(8, 16)], False); hook(3)
    chain = [T1(8 + p) for p in range(8)] + [T2(p) for p in range(16)] + [KE]
    nxt = 4
    for c in range(8):
        src = T0(8 + c) if c < 4 else T0(c - 4)
        cmul(T1(c), src, E256)
        if nxt < 8:
            cmul(chain[nxt], chain[nxt - 1], E64); nxt += 1
    put_group(4, [T1(c) for c in range(8)], False); hook(4)
    put_group(5, [T1(c) for c in range(8, 16)], False); hook(5)
    cmul(chain[8], chain[7], E64)
    for p in range(9, 25):
        cmul(chain[p], chain[p - 2], E128)
        if p == 15: put_group(6, [T2(c) for c in range(8)], False); hook(6)
        if p == 23: put_group(7, [T2(c) for c in range(8, 16)], False); hook(7)

    if tim: tim(a, 3)
    if QX == 2: a("s_waitcnt vmcnt(0)\ns_endpgm")
    if not GD: a.vmop(f"buffer_load_dwordx2 v[{PV}:{PV+1}], v18, s[{SWS}:{SWS+3}], 0 offen sc1", "poll")
    dpp_sum(a, KE[0])
    a("s_nop 0")
    a(f"v_readlane_b32 s68, v{KE[0]}, 63")
    a(f"s_add_u32 s56, s62, {WFST}")
    a("v_mov_b32 v3, s56")
    a("v_mov_b32 v4, s68")
    a.lgop("ds_write_b32 v3, v4", "kp")

    a("""
    v_lshrrev_b32 v2, 4, v1            ; kg
    v_lshlrev_b32 v3, 3, v2
    v_bfe_u32 v4, v1, 2, 2             ; r
    v_add_u32 v3, v3, v4
    v_lshlrev_b32 v3, 4, v3
    v_bfe_u32 v5, v1, 1, 1             ; c>>1
    v_lshlrev_b32 v6, 6, v5
    v_xor_b32 v3, v3, v6
    v_lshlrev_b32 v5, 12, v5
    v_and_b32 v6, 1, v1
    v_lshlrev_b32 v6, 3, v6
    v_add3_u32 v3, v3, v5, v6
    s_lshr_b32 s56, s28, 1
    s_lshl_b32 s57, s56, 15            ; cl*32768
    v_add_u32 v10, s57, v3             ; q1
    v_xor_b32 v11, 64, v10             ; q2
    s_cmp_eq_u32 s29, 0
    s_mov_b32 s69, 24576
    s_cselect_b32 s71, 8192, s69
    s_cselect_b32 s70, 16384, s69
    v_add_u32 v12, s71, v10
    v_add_u32 v13, s71, v11
    v_add_u32 v14, s70, v10
    v_add_u32 v15, s70, v11
    """)
    a("v_mov_b32 v29, v17\nv_mov_b32 v28, 0" if GD else "v_mov_b32 v29, v18")
    APOLL = 29
    a(f"""
    s_lshl_b32 s68, s56, 12
    s_add_u32 s68, s68, {UTST}
    v_and_b32 v16, 15, v1              ; col
    v_lshlrev_b32 v17, 3, v2           ; 8g
    v_lshlrev_b32 v18, 5, v16          ; 32col
    v_add3_u32 v18, v18, v17, s68      ; base+32col+8g
    v_bfe_u32 v19, v1, 2, 2
    v_lshlrev_b32 v19, 7, v19          ; b*128
    v_and_b32 v21, 3, v1
    v_lshlrev_b32 v21, 5, v21
    v_add3_u32 v19, v19, v21, v17
    v_add_u32 v19, s68, v19
    v_add_u32 v21, 1024, v18
    s_cmp_eq_u32 s29, 0
    s_cselect_b64 vcc, -1, 0
    v_cndmask_b32 v16, v21, v19, vcc   ; vSA
    v_add_u32 v17, 512, v18
    v_cndmask_b32 v17, v21, v17, vcc   ; vSB
    """)
    QD = X_get(X, "qd", 0)
    def uload(vaddr):
        if tim and "qs" in X: tim(a, 2)
        spin_wait(a, "Qf1", APOLL, PV, SWS, 66, NON, "poll", cnt=CNT)
        if tim and "qs" in X: tim(a, 4)
        a.vmop(f"buffer_load_dwordx4 v[{UR}:{UR+3}], v{vaddr}, s[{SWS}:{SWS+3}], 0 offen sc1", "u")
        a("s_mov_b32 s56, 32768")
        a.vmop(f"buffer_load_dwordx4 v[{UR+4}:{UR+7}], v{vaddr}, s[{SWS}:{SWS+3}], s56 offen sc1", "u")
    if GD: QD = -1
    elif QD: a("v_mov_b32 v28, v20")
    else: uload(20)
    if tim and "qs" not in X: tim(a, 4)
    a("""
    v_cmp_eq_u32 vcc, 0, v1
    s_cmp_eq_u32 s29, 0
    s_cselect_b64 s[70:71], vcc, 0
    v_mov_b32 v21, 0
    v_mov_b32 v22, 0
    v_mov_b32 v23, 0
    v_cndmask_b32 v20, 0, v9, s[70:71]
    """)
    a(f"""
    s_lshr_b32 s56, s28, 1
    s_lshl_b32 s56, s56, 12
    s_add_u32 s56, s56, {WFST}
    v_mov_b32 v24, s56
    """)
    a.drain(vm=False, lg=True)
    a("s_barrier")
    QF, AF_, BF_ = 32, 64, 96
    a.lgop("ds_read_b32 v25, v24", "k2")
    a.lgop("ds_read_b32 v26, v24 offset:2048", "k2")
    for s in range(8):
        for (F, r1, r2, tag) in ((QF, 10, 11, "q"), (AF_, 12, 13, "a"), (BF_, 14, 15, "b")):
            a.lgop(f"ds_read_b64_tr_b16 v[{F+4*s}:{F+4*s+1}], v{r1} offset:{s*512}", (tag, s))
            a.lgop(f"ds_read_b64_tr_b16 v[{F+4*s+2}:{F+4*s+3}], v{r2} offset:{s*512}", (tag, s))
    DA, DB = 128, 132
    a.need(lg="k2")
    a("v_add_f32 v25, v25, v26")
    a(f"s_add_u32 s56, s68, 1536")
    a("v_mov_b32 v27, s56")
    a("v_cvt_pk_bf16_f32 v25, v25, v25")
    for s in range(8):
        a.need(lg=[("q", s), ("a", s)])
        ca = "v[20:23]" if s == 0 else f"v[{DA}:{DA+3}]"
        a(f"v_mfma_f32_16x16x32_bf16 v[{DA}:{DA+3}], v[{QF+4*s}:{QF+4*s+3}], v[{AF_+4*s}:{AF_+4*s+3}], {ca}")
        a.need(lg=("b", s))
        cb = "0" if s == 0 else f"v[{DB}:{DB+3}]"
        a(f"v_mfma_f32_16x16x32_bf16 v[{DB}:{DB+3}], v[{QF+4*s}:{QF+4*s+3}], v[{BF_+4*s}:{BF_+4*s+3}], {cb}")
    a.lgop("ds_write_b16 v27, v25", "sw")
    I_, S_, LLp, LL = 0x03020100, 0x05040302, 0x05040100, 0x01000100
    a(f"""
    v_lshlrev_b32 v2, 4, v1            ; 16*lambda
    v_add_u32 v2, s68, v2
    s_lshl_b32 s56, s29, 8             ; 2p*128
    v_add_u32 v3, s56, v2              ; T0 row A
    v_add_u32 v4, 128, v3              ; T0 row B
    v_add_u32 v5, 512, v2              ; E4
    v_add_u32 v6, 384, v2              ; E2
    v_cmp_gt_u32 vcc, 16, v1
    s_cmp_eq_u32 s29, 1
    s_cselect_b64 s[70:71], vcc, 0
    v_cndmask_b32 v6, v5, v6, s[70:71]
    v_cmp_gt_u32 vcc, 8, v1
    v_cndmask_b32 v6, v6, v3, vcc
    v_cndmask_b32 v7, v5, v4, vcc
    s_cselect_b32 s56, 16, 32          ; thrA
    s_mov_b32 s72, {I_}
    s_mov_b32 s73, {S_}
    s_mov_b32 s74, {LLp}
    s_cselect_b32 s69, s74, {LL}
    s_cselect_b32 s76, s73, s72
    v_mov_b32 v8, s72
    v_mov_b32 v9, s76
    v_cndmask_b32 v9, v9, v8, vcc
    v_mov_b32 v10, s74
    v_cmp_gt_u32 vcc, 32, v1
    v_cndmask_b32 v9, v10, v9, vcc     ; selB
    v_cmp_gt_u32 vcc, s56, v1
    v_cndmask_b32 v11, v10, v8, vcc
    v_mov_b32 v12, s69
    v_cndmask_b32 v12, v12, v8, vcc
    """)
    a(f"v_cvt_pk_bf16_f32 v136, v{DA}, v{DA+1}")
    a(f"v_cvt_pk_bf16_f32 v137, v{DA+2}, v{DA+3}")
    a(f"v_cvt_pk_bf16_f32 v138, v{DB}, v{DB+1}")
    a(f"v_cvt_pk_bf16_f32 v139, v{DB+2}, v{DB+3}")
    a.lgop("ds_write_b64 v16, v[136:137]", "sw")
    a.lgop("ds_write_b64 v17, v[138:139]", "sw")

    if QD == 1: uload(28)
    if PFL == 98: prep_flag(29, 28)
    def gcalc():
        GW = 64
        a.need(vm="g")
        for i in range(4):
            a(f"v_lshlrev_b32 v{GW+2*i}, 16, v{GW0+i}")
            a(f"v_and_b32 v{GW+2*i+1}, 0xffff0000, v{GW0+i}")
        for tk in range(2):
            Xr = 72 + 8 * tk
            for i in range(4):
                a(f"v_lshlrev_b32 v{Xr+2*i}, 16, v{GU+4*tk+i}")
                a(f"v_and_b32 v{Xr+2*i+1}, 0xffff0000, v{GU+4*tk+i}")
            for i in range(8):
                a(f"v_mul_f32 v{Xr+i}, v{Xr+i}, v{GW+i}")
            for i in range(8):
                a(f"v_cvt_pk_bf16_f32 v{Xr+i}, 0, v{Xr+i}")
            for st in (4, 2, 1):
                for i in range(st):
                    a(f"v_add_f32 v{Xr+i}, v{Xr+i}, v{Xr+i+st}")
        dpp_sum2(a, 72, 80)
        a(f"s_mov_b32 s56, {LOG2E | 0x80000000}")
        for tk in range(2):
            a(f"v_cvt_pk_bf16_f32 v{72+8*tk}, 0, v{72+8*tk}")
        for tk in range(2):
            a(f"v_mul_f32 v{72+8*tk}, s56, v{72+8*tk}")
        for tk in range(2):
            a(f"v_exp_f32 v{72+8*tk}, v{72+8*tk}")
        a("s_nop 0")
        for tk in range(2):
            a(f"v_add_f32 v{72+8*tk}, 1.0, v{72+8*tk}")
        for tk in range(2):
            a(f"v_rcp_f32 v{72+8*tk}, v{72+8*tk}")
        a("s_nop 0")
        a("v_cvt_pk_bf16_f32 v88, 0, v72")
        a("v_cvt_pk_bf16_f32 v90, 0, v80")
        a("v_sub_f32 v89, 1.0, v88")
        a("v_sub_f32 v91, 1.0, v90")
        a("v_cvt_pk_bf16_f32 v89, 0, v89")
        a("v_cvt_pk_bf16_f32 v91, 0, v91")
        a("s_lshl_b32 s56, s30, 3")
        a(f"s_add_u32 s56, s56, {WS_G}")
        a("v_mov_b32 v92, s56")
        a("s_lshl_b64 exec, 1, 63")
        a.vmop(f"buffer_store_dwordx4 v[88:91], v92, s[{SWS}:{SWS+3}], 0 offen sc1", "gst")
        a("s_mov_b64 exec, -1")
    gcalc()
    if QD == 2: uload(28)

    cAT, cZ, cT, cB, cW0, cW1, cR0, cR1, cA0, cA1, cU = 232, 233, 234, 235, 236, 237, 238, 239, 240, 241, 242
    ZR = 244
    t0, t1, t2, t3, tj, tg, tl = 248, 249, 250, 251, 243, 252, 253
    assert KT0 == KT_ROW
    a(f"""
    v_lshlrev_b32 v{tl}, 4, v1                ; lane*16
    s_lshl_b32 s56, s47, 12
    s_lshl_b32 s57, s29, 11
    s_add_u32 s56, s56, s57
    s_add_u32 s56, s56, {WS_AT}
    v_add_u32 v{cAT}, s56, v{tl}
    s_lshl_b32 s56, s31, 2
    s_lshl_b32 s57, s29, 1
    s_add_u32 s56, s56, s57
    s_mul_i32 s56, s56, 1280
    s_add_u32 s77, s56, {UB}
    """)
    if GD: a(f"s_mul_i32 s57, s28, 1280\ns_add_u32 s57, s57, {UB}\nv_add_u32 v{cU}, s57, v{tl}")
    else: a(f"v_add_u32 v{cU}, s77, v{tl}")
    a(f"""
    v_bfe_u32 v{t0}, v1, 4, 1
    v_mul_u32_u24 v{t0}, 1280, v{t0}
    v_and_b32 v{tj}, 15, v1                   ; i / j
    v_lshlrev_b32 v{t1}, 4, v{tj}
    v_add3_u32 v{cZ}, v{t0}, v{t1}, s77
    v_mov_b32 v{ZR}, 0
    v_mov_b32 v{ZR+1}, 0
    v_mov_b32 v{ZR+2}, 0
    v_mov_b32 v{ZR+3}, 0
    s_mul_i32 s58, s31, {KT_CH}
    s_mul_i32 s57, s29, {2*KT_ROW}
    s_add_u32 s56, s58, s57
    v_add_u32 v{cT}, s56, v{tl}
    v_lshrrev_b32 v{tg}, 4, v1                ; kg / g
    s_lshl_b32 s57, s29, 1
    s_sub_u32 s57, 4, s57
    v_add_u32 v{t0}, s57, v{tj}
    v_mul_u32_u24 v{t0}, {KT_ROW}, v{t0}
    v_lshlrev_b32 v{t1}, 4, v{tg}
    v_add3_u32 v{cA0}, v{t0}, v{t1}, s58
    v_subrev_u32 v{cA1}, {KT_ROW}, v{cA0}
    v_sub_u32 v{t0}, v{tg}, v{tj}
    v_add_u32 v{t0}, 15, v{t0}
    v_lshlrev_b32 v{t0}, 4, v{t0}
    v_add_u32 v{cB}, s77, v{t0}
    v_and_b32 v{t0}, 3, v{tj}
    v_lshlrev_b32 v{t0}, 1, v{t0}
    v_bfe_u32 v{t1}, v{tj}, 2, 1
    v_or_b32 v{t0}, v{t0}, v{t1}
    v_xor_b32 v{t0}, v{t0}, v{tg}
    v_lshlrev_b32 v{t0}, 4, v{t0}
    v_lshlrev_b32 v{t1}, 7, v{tj}
    s_lshl_b32 s56, s28, 13
    v_add3_u32 v{cW0}, v{t0}, v{t1}, s56
    v_xor_b32 v{cW1}, 64, v{cW0}
    v_lshrrev_b32 v{t0}, 2, v1                ; j
    v_and_b32 v{t1}, 3, v{t0}
    v_lshlrev_b32 v{t1}, 1, v{t1}
    v_bfe_u32 v{t2}, v{t0}, 2, 1
    v_or_b32 v{t1}, v{t1}, v{t2}
    v_and_b32 v{t2}, 3, v1
    v_lshlrev_b32 v{t2}, 1, v{t2}
    v_xor_b32 v{t1}, v{t1}, v{t2}
    v_lshlrev_b32 v{t1}, 4, v{t1}
    v_lshlrev_b32 v{t0}, 7, v{t0}
    s_lshl_b32 s56, s31, 14
    s_lshl_b32 s57, s29, 12
    s_add_u32 s56, s56, s57
    v_add3_u32 v{cR0}, v{t0}, v{t1}, s56
    v_xor_b32 v{cR1}, 16, v{cR0}
    """)
    a.drain(vm=False, lg=True)
    a("s_barrier")
    if tim: tim(a, 5)
    XA, XB = 32, 40
    a.lgop(f"ds_read_b128 v[{XA}:{XA+3}], v6", "xa")
    a.lgop(f"ds_read_b32 v{XA+4}, v6 offset:16", "xa")
    a.lgop(f"ds_read_b128 v[{XB}:{XB+3}], v7", "xb")
    a.lgop(f"ds_read_b32 v{XB+4}, v7 offset:16", "xb")
    a.lgop(f"ds_write_b128 v{cZ}, v[{ZR}:{ZR+3}] offset:1024", "z")
    R0, R1 = 46, 52
    OA, OB = R0 + 2, R1 + 2
    T = 64
    for i, R, XX in ((0, R0, XA), (1, R1, XB)):
        a.need(lg="xa" if i == 0 else "xb")
        for j in range(4):
            sel = (12 if j % 2 == 0 else 11) if i == 0 else 9
            a(f"v_perm_b32 v{R+2+j}, v{XX+j+1}, v{XX+j}, v{sel}")
        a("s_nop 1")
        a(f"v_mov_b32_dpp v{R}, v{R+4} wave_shr:1 row_mask:0xf bank_mask:0xf bound_ctrl:1")
        a(f"v_mov_b32_dpp v{R+1}, v{R+5} wave_shr:1 row_mask:0xf bank_mask:0xf bound_ctrl:1")
        tb = T + 12 * i
        def off(m): return (4 * m + 16 + i) * KT_ROW
        a.lgop(f"ds_write_b128 v{cT}, v[{R+2}:{R+5}] offset:{off(0)}", "t")
        for j in range(4):
            a(f"v_alignbit_b32 v{tb+j}, v{R+2+j}, v{R+1+j}, 16")
        a.lgop(f"ds_write_b128 v{cT}, v[{tb}:{tb+3}] offset:{off(-1)}", "t")
        for j in range(4):
            a(f"v_mov_b32 v{tb+4+j}, v{R+1+j}")
        a.lgop(f"ds_write_b128 v{cT}, v[{tb+4}:{tb+7}] offset:{off(-2)}", "t")
        for j in range(4):
            a(f"v_alignbit_b32 v{tb+8+j}, v{R+1+j}, v{R+j}, 16")
        a.lgop(f"ds_write_b128 v{cT}, v[{tb+8}:{tb+11}] offset:{off(-3)}", "t")
        a.lgop(f"ds_write_b128 v{cT}, v[{R}:{R+3}] offset:{off(-4)}", "t")
    a.need(vm="u")
    if GD:
        a("s_mov_b32 s56, 0x05040100\ns_mov_b32 s57, 0x07060302")
        for j in range(4):
            a(f"v_perm_b32 v{96+j}, v{UR+2*j+1}, v{UR+2*j}, s56")
        a.lgop(f"ds_write_b128 v{cU}, v[96:99]", "uw")
        for j in range(4):
            a(f"v_perm_b32 v{100+j}, v{UR+2*j+1}, v{UR+2*j}, s57")
        a.lgop(f"ds_write_b128 v{cU}, v[100:103] offset:5120", "uw")
        if PFL == 99: prep_flag(29, 28)
    else:
        a.lgop(f"ds_write_b128 v{cU}, v[{UR}:{UR+3}]", "uw")
        a.lgop(f"ds_write_b128 v{cU}, v[{UR+4}:{UR+7}] offset:1280", "uw")
    a.drain(vm=False, lg=True)
    a("s_barrier")
    if tim: tim(a, 6)
    if QX == 3: a("s_waitcnt vmcnt(0)\ns_endpgm")
    prio = X_get(X, "cprio", 1)
    if prio: a(f"s_setprio {prio}")
    D = 4; NB = D + 1
    ACC = lambda eta, z: 32 + (eta * 2 + z) * 4
    AF = lambda e, w: 64 + 64 * e + 4 * w
    BF = lambda b: 192 + 6 * b
    NS = 32
    def rd(s):
        e, st = s >> 4, s & 15
        b = BF(s % NB)
        a.lgop(f"ds_read_b128 v[{AF(e,st)}:{AF(e,st)+3}], v{cA0+e} offset:{64*st}", ("A", s))
        o = st * 64 + e * 1280
        a.lgop(f"ds_read_b128 v[{b}:{b+3}], v{cB} offset:{o}", ("B", s))
        a.lgop(f"ds_read_b64 v[{b+4}:{b+5}], v{cB} offset:{o+16}", ("B", s))
    for s in range(D): rd(s)
    first = set()
    for s in range(NS):
        e, st = s >> 4, s & 15
        v = 12 - st
        b = BF(s % NB)
        a.need(lg=[("A", s), ("B", s)])
        n = 0
        for eta in (3, 2, 1, 0):
            w = 4 * eta - v
            if not (0 <= w <= 15): continue
            for z in (1, 0):
                d = ACC(eta, z)
                c = f"v[{d}:{d+3}]" if (eta, z) in first else "0"
                first.add((eta, z))
                bo = b if z == 1 else b + 2
                a(f"v_mfma_f32_16x16x32_bf16 v[{d}:{d+3}], v[{AF(e,w)}:{AF(e,w)+3}], v[{bo}:{bo+3}], {c}")
                n += 1
                if n == 1 and s + D < NS:
                    rd(s + D)
    a(f"s_setprio {X_get(X, 'ep', 0)}")
    a("s_barrier")
    for eta in (3, 2, 1, 0):
        for z in (1, 0):
            d = ACC(eta, z)
            a.lgop(f"ds_write_b128 v{cW0+z}, v[{d}:{d+3}] offset:{eta*2048}", "rw")
    a.drain(vm=False, lg=True)
    a("s_barrier")
    XR = 64
    for n in range(2):
        for s in range(2):
            for h in range(2):
                r = XR + n * 16 + s * 8 + h * 4
                a.lgop(f"ds_read_b128 v[{r}:{r+3}], v{cR0+h} offset:{s*8192 + n*2048}", ("r", n))
    for n in range(2):
        a.need(lg=("r", n))
        r = XR + n * 16
        for k in range(8):
            a(f"v_add_f32 v{r+k}, v{r+k}, v{r+8+k}")
        for k in range(4):
            a(f"v_cvt_pk_bf16_f32 v{r+8+k}, v{r+2*k}, v{r+2*k+1}")
        a.vmop(f"buffer_store_dwordx4 v[{r+8}:{r+11}], v{cAT}, s[{SWS}:{SWS+3}], 0 offen offset:{n*1024} sc1", "st")
    a.drain(vm=True, lg=False)
    a("s_barrier")
    lbl = a.newlabel("CVdone")
    a(f"s_cmp_lg_u32 s28, 0\ns_cbranch_scc1 {lbl}")
    a(f"s_lshl_b32 s56, s3, 7\ns_add_u32 s56, s56, {WS_F3}")
    a(f"v_mov_b32 v2, s56\nv_mov_b32 v4, s{NON}\nv_mov_b32 v5, s{NON+1}")
    a("s_mov_b64 exec, 1")
    a(f"buffer_store_dwordx2 v[4:5], v2, s[{SWS}:{SWS+3}], 0 offen sc1")
    a("s_mov_b64 exec, -1")
    a(f"{lbl}:")
```

```python
import sys
sys.path.insert(0, "dev")
from gen import *

WS_F3 = 0x588000
WS_FH = 0x590000
WS_F1 = 0x5B0000
SPIN = 0x2000
NON = 42

def spin_wait(a, name, vaddr, vdat, srd, mask_s, non, first_issued_tag=None, cnt=70):
    ok = a.newlabel(name + "ok"); sp = a.newlabel(name + "sp")
    if first_issued_tag is not None:
        a.need(vm=first_issued_tag)
        a(f"s_mov_b64 exec, s[{mask_s}:{mask_s+1}]")
        a(f"v_cmp_ne_u64 vcc, s[{non}:{non+1}], v[{vdat}:{vdat+1}]")
        a("s_mov_b64 exec, -1")
        a(f"s_cbranch_vccz {ok}")
    a(f"s_mov_b32 s{cnt}, {SPIN}")
    a(f"{sp}:")
    a(f"s_mov_b64 exec, s[{mask_s}:{mask_s+1}]")
    a(f"buffer_load_dwordx2 v[{vdat}:{vdat+1}], v{vaddr}, s[{srd}:{srd+3}], 0 offen sc1")
    a(f"s_sub_u32 s{cnt}, s{cnt}, 1")
    a("s_waitcnt vmcnt(0)")
    a(f"v_cmp_ne_u64 vcc, s[{non}:{non+1}], v[{vdat}:{vdat+1}]")
    a("s_mov_b64 exec, -1")
    a(f"s_cbranch_vccz {ok}")
    a(f"s_cmp_lg_u32 s{cnt}, 0")
    a(f"s_cbranch_scc1 {sp}")
    a(f"{ok}:")

def nonce_get(a, name, vdat, non, dbg, vz, first_issued_tag=None, cnt=70):
    ok = a.newlabel(name + "ok"); sp = a.newlabel(name + "sp")
    if first_issued_tag is not None:
        a.need(vm=first_issued_tag)
        a(f"v_readfirstlane_b32 s{non}, v{vdat}")
        a(f"v_readfirstlane_b32 s{non+1}, v{vdat+1}")
        a(f"s_cmp_lg_u32 s{non}, 0")
        a(f"s_cbranch_scc1 {ok}")
    a(f"s_mov_b32 s{cnt}, {SPIN}")
    a(f"{sp}:")
    a(f"global_load_dwordx2 v[{vdat}:{vdat+1}], v{vz}, s[{dbg}:{dbg+1}] sc1")
    a(f"s_sub_u32 s{cnt}, s{cnt}, 1")
    a("s_waitcnt vmcnt(0)")
    a(f"v_readfirstlane_b32 s{non}, v{vdat}")
    a(f"v_readfirstlane_b32 s{non+1}, v{vdat+1}")
    a(f"s_cmp_lg_u32 s{non}, 0")
    a(f"s_cbranch_scc1 {ok}")
    a(f"s_cmp_lg_u32 s{cnt}, 0")
    a(f"s_cbranch_scc1 {sp}")
    a(f"{ok}:")

def prole(a, tim=None, X=()):
    ACC = lambda mat, j: 64 + (2 * j + mat) * 16
    WF = lambda mat, j: 160 + (2 * j + mat) * 4
    XF = lambda b, s: 184 + b * 16 + s * 4
    SX, SW, SH, SWS, SO = 12, 16, 20, 48, 52
    DBG, OUT = 46, 44
    XBASE = 49152
    AW0, AH0, AW1, AH1 = 40, 41, 42, 43
    AF3, AAT, AG, AST, ATR, AOUT, AL16, AFH, AF1, AFHP, VZ = 44, 45, 46, 47, 48, 49, 50, 51, 52, 58, 59
    PV, GV, AT0 = 54, 56, 60
    lbl_idle = a.newlabel("Pidle")
    PST = "pst" in X
    tim0 = tim
    if tim and PST:
        mp = {1: 4, 2: 5, 3: 6}
        tim = lambda aa, k: tim0(aa, mp[k]) if k in mp else None
    if X_get(X, "p0", 0): a(f"s_setprio {X_get(X, 'p0', 0)}")
    a("""
    s_load_dwordx2 s[4:5], s[0:1], 0
    s_load_dwordx2 s[6:7], s[0:1], 80
    s_load_dwordx2 s[8:9], s[0:1], 88
    s_load_dwordx4 s[44:47], s[0:1], 112
    s_load_dwordx2 s[10:11], s[0:1], 128
    s_and_b32 s30, s2, 7
    s_lshr_b32 s31, s2, 3
    s_lshr_b32 s26, s30, 1
    s_lshl_b32 s26, s26, 2
    s_and_b32 s32, s31, 3
    s_add_u32 s26, s26, s32
    s_and_b32 s25, s30, 1
    s_lshl_b32 s25, s25, 3
    s_lshr_b32 s32, s31, 2
    s_add_u32 s25, s25, s32
    v_lshrrev_b32 v12, 6, v0
    v_and_b32 v13, 63, v0
    s_mov_b32 s29, 0
    v_readfirstlane_b32 s24, v12
    """)
    lb = a.newlabel("M2")
    a(f"s_lshr_b32 s32, s31, 2\ns_cmp_lg_u32 s32, 7\ns_cbranch_scc1 {lb}")
    a(f"s_bfe_u32 s29, s31, 0x10001")
    a(f"s_and_b32 s32, s30, 1\ns_lshl_b32 s32, s32, 1\ns_add_u32 s26, s26, s32\ns_mov_b32 s25, 7")
    a(f"{lb}:")
    if "sm" in X:
        a("s_lshl_b32 s26, s30, 1\ns_and_b32 s32, s31, 1\ns_add_u32 s26, s26, s32\ns_lshr_b32 s25, s31, 1")
        a("s_cmp_eq_u32 s25, 15\ns_cselect_b32 s29, 1, 0\ns_min_u32 s25, s25, 14")
    if "m84" in X:
        a("s_lshr_b32 s26, s30, 2\ns_lshl_b32 s26, s26, 3\ns_and_b32 s32, s31, 7\ns_add_u32 s26, s26, s32")
        a("s_and_b32 s25, s30, 3\ns_lshl_b32 s25, s25, 2\ns_lshr_b32 s32, s31, 3\ns_add_u32 s25, s25, s32")
        a("s_cmp_eq_u32 s25, 15\ns_cselect_b32 s29, 1, 0\ns_min_u32 s25, s25, 14")
    a("s_and_b32 s30, s24, 1\ns_mul_i32 s30, s30, 192")
    a("s_mul_i32 s31, s25, 192")
    XA = X_get(X, "xa", 0)
    if XA & 1: a("s_mov_b32 s31, 0")
    a("s_mov_b32 s33, 2752\ns_mov_b32 s34, 0xaaab")
    a("s_cmp_eq_u32 s25, 14\ns_cselect_b32 s37, 64, 0x10000\nv_mov_b32 v17, 0x8000000")
    for k in range(3):
        a(f"v_add_u32 v14, s30, v13")
        if k: a(f"v_add_u32 v14, {64*k}, v14")
        a("v_mul_lo_u32 v15, v14, s34\nv_lshrrev_b32 v15, 19, v15")
        a("v_mul_u32_u24 v16, 12, v15\nv_sub_u32 v16, v14, v16\nv_lshlrev_b32 v16, 4, v16")
        a("v_mul_lo_u32 v15, v15, s33\nv_add_u32 v15, v15, v16")
        a(f"v_add_u32 v{6+k}, s31, v15")
        if k: a(f"v_subrev_u32 v{6+k}, {1024*k}, v{6+k}")
        a(f"v_cmp_le_u32 vcc, s37, v16\nv_cndmask_b32 v{6+k}, v{6+k}, v17, vcc")
    a("s_lshl_b32 s30, s26, 7\ns_lshl_b32 s31, s24, 5\ns_add_u32 s30, s30, s31\ns_lshl_b32 s30, s30, 10")
    if XA & 2: a("s_lshl_b32 s30, s24, 15")
    a("""
    v_lshrrev_b32 v14, 3, v13
    v_lshlrev_b32 v14, 10, v14
    v_add_u32 v14, s30, v14
    v_lshrrev_b32 v15, 4, v13
    v_and_b32 v16, 7, v13
    v_xor_b32 v17, v16, v15
    v_lshlrev_b32 v17, 4, v17
    v_add_u32 v9, v14, v17
    v_or_b32 v15, 4, v15
    v_xor_b32 v17, v16, v15
    v_lshlrev_b32 v17, 4, v17
    v_add_u32 v10, v14, v17
    v_add_u32 v10, 7168, v10
    """)
    a("s_mul_i32 s35, s24, 3072")
    a(f"s_lshl_b32 s36, s24, 12\ns_add_u32 s36, s36, {XBASE}")
    a("s_memrealtime s[42:43]")
    a("s_waitcnt lgkmcnt(0)")
    if tim0 and PST: tim0(a, 1)
    srd_from(a, SX, 4, 5, 2048 * 1024)
    a("s_cmp_ge_u32 s24, 2\ns_cselect_b32 s6, s8, s6\ns_cselect_b32 s7, s9, s7")
    srd_from(a, SW, 6, 7, 512 * 2752)

    ROT = X_get(X, "rot", 0)
    if ROT:
        if ROT == 1: a("s_lshl_b32 s71, s26, 1\ns_add_u32 s71, s71, s25\ns_and_b32 s71, s71, 7")
        if ROT == 2: a("s_add_u32 s71, s26, s25\ns_and_b32 s71, s71, 3\ns_lshl_b32 s71, s71, 1")
        if ROT == 3: a("s_and_b32 s71, s26, 3\ns_lshl_b32 s71, s71, 1")
        if ROT == 4: a("s_and_b32 s71, s25, 7")
        a("s_lshl_b32 s94, s71, 1")
    skipped = set()
    CM = {0: "", 1: " sc1", 2: " nt", 3: " sc0", 4: " sc0 sc1", 5: " sc1 nt"}
    WL = CM[X_get(X, "wl", 0)]; XL = CM[X_get(X, "xl", 0)]
    skl = set()
    def needvm(tags):
        tags = [t for t in (tags if isinstance(tags, list) else [tags]) if t not in skipped]
        if tags: a.need(vm=tags)
    def dma_w(u, k):
        if "nw" in X and u >= 3:
            skipped.add(("W", u)); return
        if k == 0:
            a(f"s_add_u32 m0, s35, {(u % 4) * 12288}")
            if ROT:
                a(f"s_add_u32 s27, s94, {u}\ns_and_b32 s27, s27, 15\ns_mul_i32 s27, s27, 88064")
            else:
                a(f"s_mov_b32 s27, {u * 88064}")
        if "vw" in X and u >= 3:
            r = 216 + ((u % 3) * 3 + k) * 4
            a.vmop(f"buffer_load_dwordx4 v[{r}:{r+3}], v{6+k}, s[{SW}:{SW+3}], s27 offen offset:{1024*k}", ("W", u))
            return
        a.vmop(f"buffer_load_dwordx4 v{6+k}, s[{SW}:{SW+3}], s27 offen offset:{1024*k}{WL} lds", ("W", u))
    def dma_x(c, k):
        if "nx" in X and c >= 2:
            skipped.add(("X", c)); return
        if k == 0:
            a(f"s_add_u32 m0, s36, {(c & 1) * 16384}")
            if ROT:
                a(f"s_add_u32 s28, s71, {c}\ns_and_b32 s28, s28, 7\ns_lshl_b32 s28, s28, 7")
            else:
                a(f"s_mov_b32 s28, {c * 128}")
        if k == 2:
            if ROT: a("s_add_u32 s28, s28, 14336")
            else: a(f"s_mov_b32 s28, {c * 128 + 14336}")
            a("s_nop 0")
        if "vx" in X and c >= 2:
            r = 16 + k * 4
            a.vmop(f"buffer_load_dwordx4 v[{r}:{r+3}], v{9+(k&1)}, s[{SX}:{SX+3}], s28 offen offset:{1024*k}", ("X", c))
            return
        a.vmop(f"buffer_load_dwordx4 v{9+(k&1)}, s[{SX}:{SX+3}], s28 offen offset:{1024*k}{XL} lds", ("X", c))
    def rd_w(S, jj):
        u, sp = S >> 1, S & 1
        mat, j = jj & 1, jj >> 1
        base = (u % 4) * 12288 + mat * 6144 + 16 * sp * 192 + j * 64
        r = WF(mat, j)
        if S >= 2 and jj >= 6 - X_get(X, "hr", 0):
            a.lg.append(("w", S, jj)); a.lg.pop(); skl.add(("w", S, jj)); return
        a.lgop(f"ds_read_b64_tr_b16 v[{r}:{r+1}], v1 offset:{base}", ("w", S, jj))
        a.lgop(f"ds_read_b64_tr_b16 v[{r+2}:{r+3}], v1 offset:{base + 4*192}", ("w", S, jj))
    def rd_x(c, s):
        r = XF(c & 1, s)
        a.lgop(f"ds_read_b128 v[{r}:{r+3}], v{2+s} offset:{(c & 1) * 16384}", ("x", c, s))

    lbl_nold = a.newlabel("Pnold")
    a(f"s_cmp_lg_u32 s29, 0\ns_cbranch_scc1 {lbl_nold}")
    PS2 = "pst2" in X
    if tim0 and PS2:
        tim = lambda aa, k: None
        tim0(a, 1)
    for k in range(4): dma_x(0, k)
    if tim0 and PS2: tim0(a, 2)
    for k in range(3): dma_w(0, k)
    if tim0 and PS2: tim0(a, 3)
    for k in range(3): dma_w(1, k)
    if tim0 and PS2: tim0(a, 4)
    for k in range(4): dma_x(1, k)
    if tim0 and PS2: tim0(a, 5)
    for k in range(3): dma_w(2, k)
    if tim0 and PS2: tim0(a, 6)
    a(f"{lbl_nold}:")
    if tim0 and PST: tim0(a, 2)
    lbl_nn = a.newlabel("Pnn")
    if "en" in X: a(f"s_branch {lbl_nn}")
    a(f"s_cmp_lg_u32 s2, 240\ns_cbranch_scc1 {lbl_nn}")
    a(f"s_cmp_lg_u32 s24, 0\ns_cbranch_scc1 {lbl_nn}")
    a(f"s_or_b32 s42, s42, 1\nv_mov_b32 v14, s42\nv_mov_b32 v15, s43\nv_mov_b32 v16, 0\ns_mov_b64 exec, 1")
    a(f"global_store_dwordx2 v16, v[14:15], s[{DBG}:{DBG+1}] sc1")
    a("s_mov_b64 exec, -1")
    a(f"{lbl_nn}:")
    srd_from(a, SH, 10, 11, H_SIZE, WS_H)
    srd_from(a, SWS, 10, 11, WS_END)
    srd_from(a, SO, OUT, OUT + 1, 2048 * 1024)
    a("""
    v_lshrrev_b32 v14, 5, v13
    v_lshlrev_b32 v14, 3, v14
    v_bfe_u32 v15, v13, 2, 2
    v_add_u32 v14, v14, v15
    v_mul_u32_u24 v14, 192, v14
    v_bfe_u32 v15, v13, 4, 1
    v_lshlrev_b32 v15, 5, v15
    v_and_b32 v16, 3, v13
    v_lshlrev_b32 v16, 3, v16
    v_add3_u32 v1, v14, v15, v16
    """)
    a("""
    v_and_b32 v14, 31, v13
    v_bfe_u32 v15, v13, 1, 3
    v_lshrrev_b32 v16, 5, v13
    v_xor_b32 v15, v15, v16
    v_lshlrev_b32 v14, 7, v14
    """)
    a(f"s_lshl_b32 s30, s24, 12\ns_add_u32 s30, s30, {XBASE}\nv_add_u32 v14, s30, v14")
    for s in range(4):
        a(f"v_xor_b32 v16, {2*s}, v15\nv_lshlrev_b32 v16, 4, v16\nv_add_u32 v{2+s}, v14, v16")
    a("s_lshl_b32 s30, s26, 2\ns_add_u32 s30, s30, s24\ns_mul_i32 s31, s30, 86\ns_mul_i32 s32, s25, 6\ns_add_u32 s31, s31, s32\ns_lshl_b32 s31, s31, 10")
    a(f"v_lshlrev_b32 v{AL16}, 4, v13\nv_add_u32 v11, s31, v{AL16}")
    a(f"s_lshl_b32 s30, s30, 4\ns_add_u32 s30, s30, s25\ns_lshl_b32 s30, s30, 7\ns_add_u32 s30, s30, {WS_FH}\nv_mov_b32 v{AFHP}, s30\nv_mov_b32 v{VZ}, 0")

    if tim0 and PST: tim0(a, 3)
    a("""
    s_and_b32 s30, s2, 7
    s_lshr_b32 s31, s2, 3
    s_lshl_b32 s56, s30, 3
    s_and_b32 s57, s31, 3
    s_lshl_b32 s57, s57, 1
    s_add_u32 s38, s56, s57                   ; tb0
    s_lshr_b32 s39, s31, 2                    ; group
    s_lshl_b32 s40, s39, 1                    ; cb0
    s_mul_i32 s56, s24, 22
    s_cmp_eq_u32 s24, 3
    s_cselect_b32 s57, 1, 0
    s_sub_u32 s41, s56, s57                   ; ks0
    s_and_b32 s57, s24, 1
    s_lshr_b32 s58, s24, 1
    s_add_u32 s60, s40, s57
    s_add_u32 s61, s38, s58
    s_xor_b32 s62, s60, 1
    s_xor_b32 s63, s61, 1
    """)
    for (dst, blk, base) in ((AW0, 60, WS_WF), (AH0, 61, WS_H), (AW1, 62, WS_WF), (AH1, 63, WS_H)):
        a(f"s_mul_i32 s57, s{blk}, 86\ns_add_u32 s57, s57, s41\ns_lshl_b32 s57, s57, 10")
        if base: a(f"s_add_u32 s57, s57, {base}")
        a(f"v_add_u32 v{dst}, s57, v{AL16}")
    a(f"s_mov_b32 s59, {5*4096}\ns_cmp_ge_u32 s24, 2\ns_cselect_b32 s59, 0x10000000, s59")
    a(f"""
    v_add_u32 v14, s41, v13
    v_lshlrev_b32 v14, 3, v14
    v_add_u32 v14, s39, v14
    v_lshrrev_b32 v15, 2, v14
    v_lshlrev_b32 v15, 7, v15
    v_and_b32 v14, 3, v14
    v_lshlrev_b32 v14, 3, v14
    s_mov_b32 s56, {WS_F1}
    v_add3_u32 v{AF1}, v14, v15, s56
    s_cmp_ge_u32 s24, 2
    s_mov_b32 s72, 0x3fffff
    s_cselect_b32 s72, 0x1fffff, s72
    s_mov_b32 s73, 0
    """)
    a(f"""
    s_lshr_b32 s56, s24, 1
    s_mul_i32 s56, s56, 7
    s_and_b32 s57, s24, 1
    s_mul_i32 s58, s57, 3
    s_add_u32 s56, s56, s58                   ; ct0
    s_cmp_eq_u32 s57, 1
    s_mov_b32 s74, 0xff
    s_cselect_b32 s74, 0x3ff, s74
    s_mov_b32 s75, 0
    s_lshl_b32 s57, s38, 4
    s_add_u32 s56, s56, s57
    s_lshl_b32 s56, s56, 7
    s_add_u32 s56, s56, {WS_FH}
    v_and_b32 v14, 1, v13
    v_lshlrev_b32 v14, 11, v14
    v_lshrrev_b32 v15, 1, v13
    v_lshlrev_b32 v15, 7, v15
    v_add3_u32 v{AFH}, v14, v15, s56
    """)
    a(f"""
    s_lshl_b32 s56, s39, 5
    s_lshl_b32 s57, s38, 2
    s_sub_u32 s57, s57, 32
    v_cmp_gt_u32 vcc, 32, v13
    v_mov_b32 v14, s57
    v_mov_b32 v15, s56
    v_cndmask_b32 v14, v14, v15, vcc
    v_add_u32 v14, v14, v13
    v_lshlrev_b32 v14, 7, v14
    v_add_u32 v{AF3}, {WS_F3}, v14
    s_mov_b32 s76, -1
    s_mov_b32 s77, 0xff
    """)
    a(f"""
    s_lshl_b32 s56, s60, 17
    s_lshl_b32 s57, s61, 6
    s_add_u32 s56, s56, s57
    s_add_u32 s56, s56, {WS_AT}
    v_lshrrev_b32 v14, 2, v13
    v_lshlrev_b32 v14, 12, v14
    v_and_b32 v15, 3, v13
    v_lshlrev_b32 v16, 4, v15
    v_add3_u32 v{AAT}, v14, v16, s56
    v_and_b32 v17, 31, v13                    ; token in tile
    s_lshl_b32 s56, s61, 8
    s_add_u32 s56, s56, {WS_G}
    v_lshlrev_b32 v14, 3, v17
    v_add_u32 v{AG}, s56, v14
    """)
    G2_ST = 49152
    if "wp" in X:
        a("s_mul_i32 s65, s24, 20480\ns_add_u32 s56, s65, 18432")
    else:
        a(f"s_lshl_b32 s56, s24, 11\ns_add_u32 s56, s56, {G2_ST}")
    a(f"""
    v_add_u32 v{AST}, s56, v{AL16}
    v_lshrrev_b32 v14, 5, v13
    v_lshlrev_b32 v14, 2, v14
    v_bfe_u32 v16, v13, 2, 2
    v_add_u32 v14, v14, v16
    v_lshlrev_b32 v14, 6, v14
    v_bfe_u32 v16, v13, 4, 1
    v_lshlrev_b32 v16, 5, v16
    v_lshlrev_b32 v15, 3, v15
    v_add3_u32 v14, v14, v16, v15
    v_add_u32 v{ATR}, s56, v14
    s_lshl_b32 s56, s61, 15
    s_lshl_b32 s57, s60, 6
    s_add_u32 s56, s56, s57
    v_lshlrev_b32 v14, 10, v17
    v_lshrrev_b32 v15, 5, v13
    v_lshlrev_b32 v15, 4, v15
    v_add3_u32 v{AOUT}, v14, v15, s56
    """)
    for i in (1, 2, 3):
        a(f"s_xor_b32 s56, s24, {i}\ns_mul_i32 s56, s56, {20480 if 'wp' in X else 12288}\ns_add_u32 s{65+i}, s56, {(i-1)*4096}")
    a("s_mul_i32 s69, s24, 12288")
    a(f"s_cmp_lg_u32 s29, 0\ns_cbranch_scc1 {lbl_idle}")

    if tim and "es" not in X: tim(a, 1)
    a.need(vm=[("W", 0), ("X", 0)])
    a("s_barrier")
    if tim and "es" not in X: tim(a, 2)
    for s in range(4): rd_x(0, s)
    for jj in range(6): rd_w(0, jj)
    a("s_setprio 2")
    WP = "wp" in X
    NU, FU = X_get(X, "nu", 9), X_get(X, "fu", 11 if WP else 12)
    REGW = list(range(12)) + [21]
    LDSW = list(range(12, 21))
    def wreg(s):
        i = REGW.index(s)
        if i < 5: return 216 + 8 * i
        if i < 8: return 16 + 8 * (i - 5)
        return 176 + 8 * (i - 8)
    cur = [None]
    def soff(s):
        so = (s >> 2) * 4096
        if s == 21: return "s59"
        if so == 0: return "0"
        if cur[0] != so:
            a(f"s_mov_b32 s64, {so}"); cur[0] = so
        return "s64"
    def ldw(s, k):
        r = wreg(s) + 4 * k
        sreg = soff(s)
        a.vmop(f"buffer_load_dwordx4 v[{r}:{r+3}], v{40+2*k}, s[{SWS}:{SWS+3}], {sreg} offen offset:{(s&3)*1024} sc1", ("w2", s, k))
    m0cur = [None]
    def ldw_lds(s, k):
        sreg = soff(s)
        m = k * 9216 + ((s >> 2) - 3) * 4096
        if m0cur[0] != m:
            a(f"s_add_u32 m0, s65, {m}"); m0cur[0] = m
        a.vmop(f"buffer_load_dwordx4 v{40+2*k}, s[{SWS}:{SWS+3}], {sreg} offen offset:{(s&3)*1024} sc1 lds", ("w2", s, k))
    early = [(s_, k_) for s_ in REGW[:8] for k_ in range(2)]
    W0U = X_get(X, "w0u", 13)
    for u in range(16):
        c, hb = u >> 1, u & 1
        for sp in range(2):
            S = 2 * u + sp
            sx = S & 3
            for jj in range(6):
                mat, j = jj & 1, jj >> 1
                lg = [("w", S, jj)]
                if jj == 0: lg.append(("x", c, sx))
                lg = [t_ for t_ in lg if t_ not in skl]
                if lg: a.need(lg=lg)
                d = ACC(mat, j)
                src_c = "0" if S == 0 else f"v[{d}:{d+15}]"
                a(f"v_mfma_f32_32x32x16_bf16 v[{d}:{d+15}], v[{WF(mat,j)}:{WF(mat,j)+3}], v[{XF(c&1,sx)}:{XF(c&1,sx)+3}], {src_c}")
                if sp == 1 and jj == 0 and u < 15:
                    XW = X_get(X, "xw", 0)
                    if u + 1 - XW >= 0: needvm(("W", u + 1 - XW))
                    a("s_barrier")
                if S + 1 < 32: rd_w(S + 1, jj)
                if sp == 0 and jj in (1, 3, 5) and u + 3 < 16:
                    dma_w(u + 3, jj >> 1)
                if hb == 0 and sp == 1 and jj in (1, 2, 3, 4) and c + 2 < 8:
                    if jj == 1:
                        a.need(lg=("x", c, 3))
                    dma_x(c + 2, jj - 1)
                if hb == 1 and sp == 0 and jj in (0, 2, 4) and c + 1 < 8:
                    if jj == 0 and (X_get(X, "xw", 0) < 2 or c < 1): needvm(("X", c + 1))
                    if jj == 0: rd_x(c + 1, 0); rd_x(c + 1, 1)
                    if jj == 2: rd_x(c + 1, 2)
                    if jj == 4: rd_x(c + 1, 3)
                if u == NU and sp == 1 and jj == 5:
                    a.vmop(f"global_load_dwordx2 v[{PV}:{PV+1}], v{VZ}, s[{DBG}:{DBG+1}] sc1", "non")
                if u == NU + 2 and sp == 1 and jj == 5:
                    nonce_get(a, "Pn", PV, NON, DBG, VZ, "non")
                if u == FU and sp == 1 and jj == 5:
                    a("s_mov_b64 exec, s[72:73]")
                    a.vmop(f"buffer_load_dwordx2 v[{PV}:{PV+1}], v{AF1}, s[{SWS}:{SWS+3}], 0 offen sc1", "f1")
                    a("s_mov_b64 exec, -1")
                if WP:
                    if u == W0U - 1 and sp == 1 and jj == 5:
                        spin_wait(a, "Pf1", AF1, PV, SWS, 72, NON, "f1")
                    if u >= W0U and jj in (1, 3, 5) and early:
                        ldw(*early.pop(0))
    if tim: tim(a, 3)
    if X_get(X, "p3p", 2) != 2: a(f"s_setprio {X_get(X, 'p3p', 2)}")
    if not WP: spin_wait(a, "Pf1", AF1, PV, SWS, 72, NON, "f1")
    if WP:
        while early: ldw(*early.pop(0))
        a("s_barrier")
        if tim and "es" in X: tim(a, 1)
        lds_list = [(s_, k_) for k_ in range(2) for s_ in LDSW]
        for _ in range(X_get(X, "d0", 0)): ldw_lds(*lds_list.pop(0))
    lbl_done = a.newlabel("G1done")
    HSC = "" if "sx" in X else " sc1"
    a("s_nop 7\ns_nop 3")
    for j in range(3):
        if j == 1:
            a(f"s_cmp_eq_u32 s25, 14\ns_cbranch_scc1 {lbl_done}")
        g, up = ACC(0, j), ACC(1, j)
        T = 160 if WP else 16
        for r in range(16):
            a(f"v_max_f32 v{g+r}, 0, v{g+r}")
        if "fe" in X:
            for r in range(16):
                a(f"v_mul_f32 v{g+r}, v{g+r}, v{up+r}")
        else:
            for r in range(16):
                a(f"v_cvt_pk_bf16_f32 v{g+r}, 0, v{g+r}")
                a(f"v_cvt_pk_bf16_f32 v{up+r}, 0, v{up+r}")
            for r in range(16):
                a(f"v_mul_f32 v{g+r}, v{g+r}, v{up+r}")
        for r in range(8):
            a(f"v_cvt_pk_bf16_f32 v{T+8*j+r}, v{g+2*r}, v{g+2*r+1}")
        for p in range(2):
            n = T + 8 * j + 4 * p
            a("s_nop 0")
            a(f"v_permlane32_swap_b32 v{n}, v{n+2}")
            a(f"v_permlane32_swap_b32 v{n+1}, v{n+3}")
            a("s_nop 0")
            off = (2 * j + p) * 1024
            so = "0"
            if off > 4095:
                a(f"s_mov_b32 s30, {off}"); so = "s30"; off = 0
            a.vmop(f"buffer_store_dwordx4 v[{n}:{n+3}], v11, s[{SH}:{SH+3}], {so} offen offset:{off}{HSC}", ("st",))
        for _ in range(X_get(X, "pad", 0)): a("s_nop 15")
        if WP and j == 0:
            for _ in range(min(X_get(X, "d1", 0), len(lds_list))): ldw_lds(*lds_list.pop(0))
    a(f"{lbl_done}:")
    if tim and "es" in X: tim(a, 2)
    if WP:
        gemm2_wp(a, tim, X, locals())
        return

    PF = 8
    ACC2 = lambda i: 64 + 16 * i
    FR = lambda b, k: 128 + (b * 4 + k) * 4
    cur = [None]
    def ld(s, k):
        so = (s >> 2) * 4096
        if s == 21:
            sreg = "s59"
        elif so == 0:
            sreg = "0"
        else:
            if cur[0] != so:
                a(f"s_mov_b32 s64, {so}"); cur[0] = so
            sreg = "s64"
        r = FR(s % PF, k)
        a.vmop(f"buffer_load_dwordx4 v[{r}:{r+3}], v{40+k}, s[{SWS}:{SWS+3}], {sreg} offen offset:{(s&3)*1024} sc1", ("f", s, k))
    lbl_j = a.newlabel("Pjoin")
    for s in range(PF):
        ld(s, 0); ld(s, 2)
    a(f"s_waitcnt vmcnt({2*PF})")
    a(f"v_mov_b32 v{PV}, s{NON}\nv_mov_b32 v{PV+1}, s{NON+1}\ns_mov_b64 exec, 1")
    a.vmop(f"buffer_store_dwordx2 v[{PV}:{PV+1}], v{AFHP}, s[{SWS}:{SWS+3}], 0 offen sc1", "fh")
    a("s_mov_b64 exec, -1")
    a(f"s_branch {lbl_j}")
    a(f"{lbl_idle}:")
    sv = (list(a.vm), a.vmdone, list(a.lg), a.lgdone)
    nonce_get(a, "Pi", PV, NON, DBG, VZ)
    spin_wait(a, "Pi1", AF1, PV, SWS, 72, NON)
    cur[0] = None
    for s in range(PF):
        ld(s, 0); ld(s, 2)
    a.vm, a.vmdone, a.lg, a.lgdone = sv
    cur[0] = None
    a(f"{lbl_j}:")
    if tim: tim(a, 4)
    a("s_setprio 2")
    spin_wait(a, "Pfh", AFH, PV, SWS, 74, NON)
    a.vmdone = len(a.vm)
    if tim: tim(a, 5)
    for s in range(PF):
        ld(s, 1); ld(s, 3)
    poll_at, chk_at = X_get(X, "pa", 14), X_get(X, "ca", 19)
    ATB = 16
    for s in range(22):
        b = s % PF
        W0, H0, W1, H1 = (FR(b, k) for k in range(4))
        nxt = s + PF < 22
        def mf(i, W, H):
            d = ACC2(i)
            c = "0" if s == 0 else f"v[{d}:{d+15}]"
            a(f"v_mfma_f32_32x32x16_bf16 v[{d}:{d+15}], v[{W}:{W+3}], v[{H}:{H+3}], {c}")
        if s < PF:
            a.need(vm=[("f", s, 1)]); mf(0, W0, H0); mf(1, W1, H0)
            a.need(vm=[("f", s, 3)]); mf(2, W0, H1)
            mf(3, W1, H1)
            if nxt:
                for k in (1, 3, 0, 2): ld(s + PF, k)
        else:
            a.need(vm=[("f", s, 0), ("f", s, 1), ("f", s, 2), ("f", s, 3)])
            mf(0, W0, H0)
            mf(1, W1, H0)
            mf(2, W0, H1)
            mf(3, W1, H1)
            if nxt:
                for k in (1, 3, 0, 2): ld(s + PF, k)
        if s == poll_at:
            a("s_mov_b64 exec, s[76:77]")
            a.vmop(f"buffer_load_dwordx2 v[{PV}:{PV+1}], v{AF3}, s[{SWS}:{SWS+3}], 0 offen sc1", "poll")
            a("s_mov_b64 exec, -1")
        if s == chk_at:
            if "nof3" not in X: spin_wait(a, "Pf3", AF3, PV, SWS, 76, NON, "poll")
            a.vmop(f"buffer_load_dwordx4 v[{ATB}:{ATB+3}], v{AAT}, s[{SWS}:{SWS+3}], 0 offen sc1", "at")
            a("s_mov_b32 s64, 65536"); cur[0] = 65536
            a.vmop(f"buffer_load_dwordx4 v[{ATB+4}:{ATB+7}], v{AAT}, s[{SWS}:{SWS+3}], s64 offen sc1", "at")
            a.vmop(f"buffer_load_dwordx2 v[{GV}:{GV+1}], v{AG}, s[{SWS}:{SWS+3}], 0 offen sc1", "g")
    if tim: tim(a, 6)
    for i in (1, 2, 3):
        a(f"v_add_u32 v{3+i}, s{65+i}, v{AL16}")
    a(f"v_add_u32 v7, s69, v{AL16}")
    for i in (1, 2, 3):
        for q in range(4):
            r = ACC2(i) + 4 * q
            a.lgop(f"ds_write_b128 v{3+i}, v[{r}:{r+3}] offset:{q*1024}", "rw")
    a.need(vm="at")
    a.lgop(f"ds_write_b128 v{AST}, v[{ATB}:{ATB+3}]", "sa")
    a.lgop(f"ds_write_b128 v{AST}, v[{ATB+4}:{ATB+7}] offset:1024", "sa")
    a.drain(vm=False, lg=True)
    a("s_barrier")
    XR = 128
    for i in range(3):
        for q in range(4):
            r = XR + 16 * i + 4 * q
            a.lgop(f"ds_read_b128 v[{r}:{r+3}], v7 offset:{i*4096 + q*1024}", ("p", i))
    AV = 176
    for q in range(4):
        a.lgop(f"ds_read_b64_tr_b16 v[{AV+2*q}:{AV+2*q+1}], v{ATR} offset:{q*512}", "a")
    A0 = ACC2(0)
    for i in range(3):
        a.need(lg=("p", i))
        for r in range(16):
            a(f"v_add_f32 v{A0+r}, v{A0+r}, v{XR+16*i+r}")
    a.need(lg="a", vm="g")
    U = 184
    for q in range(4):
        for k in range(2):
            a(f"v_lshlrev_b32 v{U+4*q+2*k}, 16, v{AV+2*q+k}")
            a(f"v_and_b32 v{U+4*q+2*k+1}, 0xffff0000, v{AV+2*q+k}")
    for r in range(16):
        a(f"v_cvt_pk_bf16_f32 v{A0+r}, 0, v{A0+r}")
    for r in range(16):
        a(f"v_mul_f32 v{U+r}, v{GV}, v{U+r}")
    for r in range(16):
        a(f"v_mul_f32 v{A0+r}, v{GV+1}, v{A0+r}")
    for r in range(16):
        a(f"v_cvt_pk_bf16_f32 v{U+r}, 0, v{U+r}")
    for r in range(16):
        a(f"v_cvt_pk_bf16_f32 v{A0+r}, 0, v{A0+r}")
    for r in range(16):
        a(f"v_add_f32 v{U+r}, v{U+r}, v{A0+r}")
    P = 200
    for k in range(8):
        a(f"v_cvt_pk_bf16_f32 v{P+k}, v{U+2*k}, v{U+2*k+1}")
    for pr in range(2):
        n = P + 4 * pr
        a(f"v_permlane32_swap_b32 v{n}, v{n+2}")
        a(f"v_permlane32_swap_b32 v{n+1}, v{n+3}")
        a.vmop(f"buffer_store_dwordx4 v[{n}:{n+3}], v{AOUT}, s[{SO}:{SO+3}], 0 offen offset:{pr*32}", "st")

def gemm2_wp(a, tim, X, L):
    g = L
    SWS, SO, NON_, PV, GV = g["SWS"], g["SO"], NON, g["PV"], g["GV"]
    AFHP, AF1, AFH, AF3, AAT, AG, AL16, ATR, AOUT, VZ, DBG = (g[k] for k in "AFHP AF1 AFH AF3 AAT AG AL16 ATR AOUT VZ DBG".split())
    REGW, LDSW, wreg, ldw, ldw_lds, soff, cur, m0cur, lbl_idle = (g[k] for k in "REGW LDSW wreg ldw ldw_lds soff cur m0cur lbl_idle".split())
    ACC2 = lambda i: 64 + 16 * i
    lbl_j = a.newlabel("Pjoin")
    cur[0] = None
    late = [(ldw, s_, k_) for s_ in REGW[8:] for k_ in range(2)] + [(ldw_lds, s_, k_) for (s_, k_) in g["lds_list"]]
    K1 = min(X_get(X, "k1", 14), len(late))
    for f_, s_, k_ in late[:K1]: f_(s_, k_)
    a(f"s_waitcnt vmcnt({K1})")
    if tim and "es" in X: tim(a, 4)
    a(f"v_mov_b32 v{PV}, s{NON}\nv_mov_b32 v{PV+1}, s{NON+1}\ns_mov_b64 exec, 1")
    a.vmop(f"buffer_store_dwordx2 v[{PV}:{PV+1}], v{AFHP}, s[{SWS}:{SWS+3}], 0 offen{'' if 'sx' in X else ' sc1'}", "fh")
    a("s_mov_b64 exec, -1")
    for f_, s_, k_ in late[K1:]: f_(s_, k_)
    a(f"s_branch {lbl_j}")
    a(f"{lbl_idle}:")
    sv = (list(a.vm), a.vmdone, list(a.lg), a.lgdone)
    nonce_get(a, "Pi", PV, NON, DBG, VZ)
    spin_wait(a, "Pi1", AF1, PV, SWS, 72, NON)
    cur[0] = None; m0cur[0] = None
    for s_ in REGW:
        for k_ in range(2): ldw(s_, k_)
    for k_ in range(2):
        for s_ in LDSW: ldw_lds(s_, k_)
    a.vm, a.vmdone, a.lg, a.lgdone = sv
    cur[0] = None
    a(f"{lbl_j}:")
    if tim and "es" not in X: tim(a, 4)
    a(f"s_setprio {X_get(X, 'g2p', 2)}")
    a(f"v_add_u32 v7, s65, v{AL16}")
    spin_wait(a, "Pfh", AFH, PV, SWS, 74, NON)
    a.vmdone = len(a.vm)
    if tim: tim(a, 5)
    HD = X_get(X, "hd", 6)
    free = []
    hslot = {}
    def ldh(s):
        r = hslot[s]
        for k in range(2):
            sreg = soff(s)
            a.vmop(f"buffer_load_dwordx4 v[{r+4*k}:{r+4*k+3}], v{41+2*k}, s[{SWS}:{SWS+3}], {sreg} offen offset:{(s&3)*1024} sc1", ("h", s, k))
    for s in range(HD):
        hslot[s] = 128 + 8 * s; ldh(s)
    nexth = HD
    wslot = {s: wreg(s) for s in REGW}
    def rdw(s):
        r = wslot[s] = free.pop(0)
        for k in range(2):
            a.lgop(f"ds_read_b128 v[{r+4*k}:{r+4*k+3}], v7 offset:{k*9216 + (s-12)*1024}", ("w", s))
    poll_at, chk_at = X_get(X, "pa", 14), X_get(X, "ca", 19)
    ATB = None
    for s in range(22):
        W0, W1 = wslot[s], wslot[s] + 4
        H0, H1 = hslot[s], hslot[s] + 4
        def mf(i, W, H):
            d = ACC2(i)
            c = "0" if s == 0 else f"v[{d}:{d+15}]"
            a(f"v_mfma_f32_32x32x16_bf16 v[{d}:{d+15}], v[{W}:{W+3}], v[{H}:{H+3}], {c}")
        if s in LDSW: a.need(lg=("w", s))
        a.need(vm=[("h", s, 0)]); mf(0, W0, H0); mf(1, W1, H0)
        a.need(vm=[("h", s, 1)]); mf(2, W0, H1); mf(3, W1, H1)
        free += [wslot[s], hslot[s]]
        if s + 2 in LDSW: rdw(s + 2)
        while nexth < 22 and len(free) > (1 if (s + 3 in LDSW) else 0):
            hslot[nexth] = free.pop(0); ldh(nexth); nexth += 1
        if s == poll_at:
            a("s_mov_b64 exec, s[76:77]")
            a.vmop(f"buffer_load_dwordx2 v[{PV}:{PV+1}], v{AF3}, s[{SWS}:{SWS+3}], 0 offen sc1", "poll")
            a("s_mov_b64 exec, -1")
        if s == chk_at:
            ATB = free.pop(0)
            if "nof3" not in X: spin_wait(a, "Pf3", AF3, PV, SWS, 76, NON, "poll")
            a.vmop(f"buffer_load_dwordx4 v[{ATB}:{ATB+3}], v{AAT}, s[{SWS}:{SWS+3}], 0 offen sc1", "at")
            a("s_mov_b32 s64, 65536"); cur[0] = 65536
            a.vmop(f"buffer_load_dwordx4 v[{ATB+4}:{ATB+7}], v{AAT}, s[{SWS}:{SWS+3}], s64 offen sc1", "at")
            a.vmop(f"buffer_load_dwordx2 v[{GV}:{GV+1}], v{AG}, s[{SWS}:{SWS+3}], 0 offen sc1", "g")
    if tim: tim(a, 6)
    for i in (1, 2, 3):
        a(f"v_add_u32 v{3+i}, s{65+i}, v{AL16}")
    for i in (1, 2, 3):
        for q in range(4):
            r = ACC2(i) + 4 * q
            a.lgop(f"ds_write_b128 v7, v[{r}:{r+3}] offset:{(i-1)*4096 + q*1024}", "rw")
    a.need(vm="at")
    a.lgop(f"ds_write_b128 v7, v[{ATB}:{ATB+3}] offset:18432", "sa")
    a.lgop(f"ds_write_b128 v7, v[{ATB+4}:{ATB+7}] offset:19456", "sa")
    a.drain(vm=False, lg=True)
    a("s_barrier")
    XR = 128
    for i in range(3):
        for q in range(4):
            r = XR + 16 * i + 4 * q
            a.lgop(f"ds_read_b128 v[{r}:{r+3}], v{4+i} offset:{q*1024}", ("p", i))
    AV = 176
    for q in range(4):
        a.lgop(f"ds_read_b64_tr_b16 v[{AV+2*q}:{AV+2*q+1}], v{ATR} offset:{q*512}", "a")
    A0 = ACC2(0)
    FE = "fe" in X
    for i in range(3):
        a.need(lg=("p", i))
        if FE:
            for r in range(0, 16, 2):
                a(f"v_pk_add_f32 v[{A0+r}:{A0+r+1}], v[{A0+r}:{A0+r+1}], v[{XR+16*i+r}:{XR+16*i+r+1}]")
        else:
            for r in range(16):
                a(f"v_add_f32 v{A0+r}, v{A0+r}, v{XR+16*i+r}")
    a.need(lg="a", vm="g")
    U = 184
    for q in range(4):
        for k in range(2):
            a(f"v_lshlrev_b32 v{U+4*q+2*k}, 16, v{AV+2*q+k}")
            a(f"v_and_b32 v{U+4*q+2*k+1}, 0xffff0000, v{AV+2*q+k}")
    if FE:
        for r in range(0, 16, 2):
            a(f"v_pk_mul_f32 v[{U+r}:{U+r+1}], v[{U+r}:{U+r+1}], v[{GV}:{GV+1}] op_sel:[0,0] op_sel_hi:[1,0]")
        for r in range(0, 16, 2):
            a(f"v_pk_fma_f32 v[{U+r}:{U+r+1}], v[{A0+r}:{A0+r+1}], v[{GV}:{GV+1}], v[{U+r}:{U+r+1}] op_sel:[0,1,0] op_sel_hi:[1,1,1]")
    else:
        for r in range(16):
            a(f"v_cvt_pk_bf16_f32 v{A0+r}, 0, v{A0+r}")
        for r in range(16):
            a(f"v_mul_f32 v{U+r}, v{GV}, v{U+r}")
        for r in range(16):
            a(f"v_mul_f32 v{A0+r}, v{GV+1}, v{A0+r}")
        for r in range(16):
            a(f"v_cvt_pk_bf16_f32 v{U+r}, 0, v{U+r}")
        for r in range(16):
            a(f"v_cvt_pk_bf16_f32 v{A0+r}, 0, v{A0+r}")
        for r in range(16):
            a(f"v_add_f32 v{U+r}, v{U+r}, v{A0+r}")
    P = 200
    for k in range(8):
        a(f"v_cvt_pk_bf16_f32 v{P+k}, v{U+2*k}, v{U+2*k+1}")
    for pr in range(2):
        n = P + 4 * pr
        a(f"v_permlane32_swap_b32 v{n}, v{n+2}")
        a(f"v_permlane32_swap_b32 v{n+1}, v{n+3}")
        a.vmop(f"buffer_store_dwordx4 v[{n}:{n+3}], v{AOUT}, s[{SO}:{SO+3}], 0 offen offset:{pr*32}", "st")

def X_get(X, key, default):
    for x in X:
        if x.startswith(key + "="): return int(x.split("=")[1])
    return default
```
